```python
import torch

def _softmax(x, axis=-1):
    return torch.softmax(x, dim=axis)
def _gelu(x):
    return torch.nn.functional.gelu(x, approximate="tanh")
def _silu(x):
    return torch.nn.functional.silu(x)
def _sigmoid(x):
    return torch.sigmoid(x)
def _layernorm(x, axis=-1, eps=1e-5):
    m = x.mean(dim=axis, keepdim=True)
    v = x.var(dim=axis, keepdim=True, unbiased=False)
    return (x - m) / torch.sqrt(v + eps)
def _scatter_add(tgt, idx, src, axis=0):
    return tgt.clone().index_add_(axis, idx, src)
def _segment_sum(src, seg, n):
    out = torch.zeros((n,) + src.shape[1:], dtype=src.dtype)
    return out.index_add_(0, seg, src)
def _pad(x, pw):
    flat = tuple(v for pair in reversed(pw) for v in pair)
    return torch.nn.functional.pad(x, flat)

kernel_name = 'concat_heads__softmax_full_mha__sliding_local_dilated__prompt'

def setup_inputs():

    _w = (lambda a: (lambda t: t.to(torch.bfloat16) if t.is_floating_point() else t)(torch.as_tensor(a)))
    def _A_setup():
        B, S, D = 1, 2048, 448
        return {
            "x": _w((lambda *s: torch.randn(*s, dtype=torch.bfloat16) * 0.2)(B, S, D)),
            "wqkv": _w((lambda *s: torch.randn(*s, dtype=torch.bfloat16) * 0.8)(D, 3 * D)),
            "wo": _w((lambda *s: torch.randn(*s, dtype=torch.bfloat16) * 0.2)(D, D)),
        }
    _A_in = _A_setup()

    def _B_setup():
        B, S, D = 1, 2048, 448
        return {
            "x": _w((lambda *s: torch.randn(*s, dtype=torch.bfloat16) * 0.4)(B, S, D)),
            "wqkv": _w((lambda *s: torch.randn(*s, dtype=torch.bfloat16) * 0.8)(D, 3 * D)),
            "wo": _w((lambda *s: torch.randn(*s, dtype=torch.bfloat16) * 0.1)(D, D)),
        }
    _B_in = _B_setup()

    return {
        "A_x": _A_in["x"],
        "A_wqkv": _A_in["wqkv"],
        "A_wo": _A_in["wo"],
        "B_x": _B_in["x"],
        "B_wqkv": _B_in["wqkv"],
        "B_wo": _B_in["wo"],
    }

def reference(A_x, A_wqkv, A_wo, B_x, B_wqkv, B_wo):
    def _A_ref(x, wqkv, wo):
        B, S, D = x.shape
        H = 16; Dh = D // H
        qkv = (lambda x, *d: x.permute(*d))((x @ wqkv).reshape(B, S, 3, H, Dh), 2, 0, 3, 1, 4)
        q, k, v = qkv[0], qkv[1], qkv[2]
        scale = Dh ** -0.5
        scores = torch.einsum("bhqd,bhkd->bhqk", q, k) * scale
        p = _softmax(scores, axis=-1)
        o = torch.einsum("bhqk,bhkd->bhqd", p, v)
        return (lambda x, *d: x.permute(*d))(o, 0, 2, 1, 3).reshape(B, S, D) @ wo

    def _B_ref(x, wqkv, wo):
        B, S, D = x.shape
        H = 16; Dh = D // H
        W, dil = 8, 2
        qkv = (lambda x, *d: x.permute(*d))((x @ wqkv).reshape(B, S, 3, H, Dh), 2, 0, 3, 1, 4)
        q, k, v = qkv[0], qkv[1], qkv[2]
        scale = Dh ** -0.5
        pos = torch.arange(S)
        off = torch.arange(W) * dil
        idx = pos[:, None] - off[None, :]
        mask = idx >= 0
        idx_c = torch.where(mask, idx, 0).reshape(-1)
        kg = k[:, :, idx_c, :].reshape(B, H, S, W, Dh)
        vg = v[:, :, idx_c, :].reshape(B, H, S, W, Dh)
        logits = torch.einsum("bhsd,bhswd->bhsw", q, kg) * scale
        logits = torch.where(mask[None, None, :, :], logits, -1e9)
        attn = _softmax(logits, axis=-1)
        o = torch.einsum("bhsw,bhswd->bhsd", attn, vg)
        return (lambda x, *d: x.permute(*d))(o, 0, 2, 1, 3).reshape(B, S, D) @ wo

    a = _A_ref(A_x, A_wqkv, A_wo)
    b = _B_ref(B_x, B_wqkv, B_wo)
    return torch.concatenate([a, b], axis=-1)
```

```python
import sys, math
NAME = 'concat_heads__softmax_full_mha__sliding_local_dilated__prompt'

class E:
    def __init__(s): s.l = []
    def __call__(s, *lines):
        for x in lines: s.l.append('    ' + x)
    def label(s, n): s.l.append(n + ':')
    def c(s, t): s.l.append('    ; ' + t)
    def text(s): return '\n'.join(s.l)

def vr(a, n): return f'v[{a}:{a+n-1}]'
def sr(a, n): return f's[{a}:{a+n-1}]'

WS_Q   = 0x000000
WS_KV  = 0x200000
WS_PSTRIDE = 0x600000
WS_O   = 0xC00000
WS_BYTES = 0x1000000
QSCALE = (28 ** -0.5) * 1.4426950408889634
import struct
def f32(x): return '0x%08x' % struct.unpack('<I', struct.pack('<f', x))[0]

def srd(e, d, lo, hi, nbytes):
    e(f's_mov_b32 s{d}, s{lo}', f's_mov_b32 s{d+1}, s{hi}', f's_mov_b32 s{d+2}, {nbytes}', f's_mov_b32 s{d+3}, 0x00020000')

def gen_k1(NWG=512, NS=5):
    e = E()
    CH = 28672
    e.label('qkv_kernel')
    e(f's_cmp_ge_u32 s2, {NWG}', 's_cbranch_scc1 L_k1_end')
    e('s_load_dwordx4 s[4:7], s[0:1], 0', 's_load_dwordx4 s[8:11], s[0:1], 24', 's_load_dwordx2 s[12:13], s[0:1], 64')
    e('v_lshrrev_b32 v1, 6, v0', 'v_and_b32 v0, 63, v0')
    e('s_lshr_b32 s29, s2, 8', 's_and_b32 s3, s2, 255', 's_and_b32 s32, s3, 7', 's_lshr_b32 s33, s3, 3')
    e('v_readfirstlane_b32 s28, v1')
    e('s_and_b32 s30, s32, 1', 's_lshl_b32 s30, s30, 3', 's_and_b32 s34, s33, 7', 's_add_u32 s30, s30, s34')
    e('s_lshr_b32 s31, s32, 1', 's_lshl_b32 s31, s31, 2', 's_lshr_b32 s34, s33, 3', 's_add_u32 s31, s31, s34')
    e('s_lshl_b32 s35, s31, 7', 's_lshl_b32 s36, s28, 5', 's_add_u32 s35, s35, s36')
    e('v_lshrrev_b32 v4, 3, v0', 'v_add_u32 v4, s35, v4', 'v_mul_u32_u24 v4, 896, v4')
    e('v_and_b32 v5, 7, v0', 'v_lshrrev_b32 v6, 4, v0', 'v_xor_b32 v5, v5, v6')
    e('v_lshl_add_u32 v2, v5, 4, v4', 'v_xor_b32 v5, 4, v5', 'v_lshl_add_u32 v3, v5, 4, v4')
    e('s_mul_i32 s36, s28, 43008', 's_mul_i32 s37, s30, 56', 's_add_u32 s36, s36, s37')
    for i in range(3):
        e(f'v_add_u32 v7, {64*i}, v0', 'v_mul_u32_u24 v8, 171, v7', 'v_lshrrev_b32 v8, 11, v8')
        e('v_mul_u32_u24 v9, 12, v8', 'v_sub_u32 v9, v7, v9')
        e('v_mul_u32_u24 v8, 2688, v8', 'v_lshrrev_b32 v10, 2, v9', 'v_mul_u32_u24 v10, 896, v10', 'v_and_b32 v9, 3, v9')
        e('v_lshl_add_u32 v8, v9, 4, v8', f'v_add3_u32 v{4+i}, v8, v10, s36')
    e('s_waitcnt lgkmcnt(0)')
    e('s_cmp_eq_u32 s29, 0', 's_cselect_b32 s14, s4, s8', 's_cselect_b32 s15, s5, s9', 's_cselect_b32 s40, s6, s10', 's_cselect_b32 s41, s7, s11')
    srd(e, 16, 14, 15, 2048*896)
    srd(e, 20, 40, 41, 448*2688)
    srd(e, 24, 12, 13, WS_BYTES)
    e('s_mov_b32 s44, 0', 's_mov_b32 s45, 7168', 's_mov_b32 s46, 14336', 's_mov_b32 s47, 21504')
    e('s_lshl_b32 s48, s28, 12', 's_mul_i32 s49, s28, 3072')
    def dma(c):
        slot = c % NS
        e(f's_mov_b32 s50, {c*172032}')
        for i in range(3):
            e(f's_add_u32 m0, s49, {slot*CH + i*1024}', 's_nop 0',
              f'buffer_load_dwordx4 v{4+i}, s[20:23], s50 offen lds')
        for q in range(4):
            e(f's_add_u32 m0, s48, {slot*CH + 12288 + q*1024 - c*128}', 's_nop 0',
              f'buffer_load_dwordx4 v{2+(q&1)}, s[16:19], s{44+q} offen offset:{c*128} lds')
    nup = min(NS, 7)
    for c in range(nup): dma(c)
    e('v_and_b32 v20, 31, v0', 'v_lshrrev_b32 v21, 5, v0')
    e('v_bfe_u32 v22, v20, 1, 3', 'v_xor_b32 v22, v22, v21')
    e('v_lshlrev_b32 v23, 7, v20', 'v_add_u32 v23, s48, v23', 'v_add_u32 v23, 12288, v23')
    for t in range(4):
        e(f'v_xor_b32 v24, {2*t}, v22', f'v_lshl_add_u32 v{10+t}, v24, 4, v23')
    e('v_bfe_u32 v24, v0, 2, 2', 'v_lshl_add_u32 v24, v21, 3, v24', 'v_mul_u32_u24 v24, 192, v24')
    e('v_bfe_u32 v25, v0, 4, 1', 'v_lshl_add_u32 v24, v25, 5, v24', 'v_and_b32 v25, 3, v0', 'v_lshl_add_u32 v14, v25, 3, v24')
    FR = 32
    ACC = 80
    issued = nup
    def reads(T):
        c, t = divmod(T, 4)
        base = FR + 16*(T % 3)
        r = [f'ds_read_b128 {vr(base,4)}, v{15+t}']
        for s3 in range(3):
            for ee in range(2):
                r.append(f'ds_read_b64_tr_b16 {vr(base+4+4*s3+2*ee,2)}, v19 offset:{t*3072 + ee*768 + s3*64}')
        return r
    def sync(c):
        nonlocal issued
        e(f's_waitcnt vmcnt({7*(issued-1-c)})', 's_barrier')
        slot = c % NS
        for t in range(4): e(f'v_add_u32 v{15+t}, {slot*CH}, v{10+t}')
        e(f'v_add_u32 v19, {slot*CH}, v14')
        if c >= 2 and issued < 7:
            dma(issued); issued += 1
    sync(0)
    e(*reads(0)); e(*reads(1))
    for T in range(28):
        base = FR + 16*(T % 3)
        nxt = T + 2
        e(f's_waitcnt lgkmcnt({7 if T < 27 else 0})')
        rd = []
        if nxt < 28:
            if nxt % 4 == 0:
                sync(nxt // 4)
            rd = reads(nxt)
        cz = (T == 0)
        def C(a): return '0' if cz else vr(a, 16)
        e(f'v_mfma_f32_32x32x16_bf16 {vr(ACC,16)}, {vr(base+4,4)}, {vr(base,4)}, {C(ACC)}')
        e(*rd[:4])
        e(f'v_mfma_f32_32x32x16_bf16 {vr(ACC+16,16)}, {vr(base+8,4)}, {vr(base,4)}, {C(ACC+16)}')
        e(*rd[4:])
        e(f'v_mfma_f32_32x32x16_bf16 {vr(ACC+32,16)}, {vr(base,4)}, {vr(base+12,4)}, {C(ACC+32)}')
    e('s_mul_i32 s50, s29, %d' % WS_PSTRIDE)
    e('s_lshl_b32 s51, s31, 2', 's_add_u32 s51, s51, s28')
    e('s_lshl_b32 s52, s30, 17', 's_lshl_b32 s53, s51, 11', 's_add_u32 s52, s52, s53', 's_add_u32 s52, s52, s50')
    e('s_lshl_b32 s54, s30, 18', 's_lshl_b32 s53, s51, 12', 's_add_u32 s54, s54, s53', 's_add_u32 s54, s54, s50', f's_add_u32 s54, s54, {WS_KV}')
    e('v_lshlrev_b32 v2, 4, v0')
    e(f's_mov_b32 s55, {f32(QSCALE)}', 's_cmp_eq_u32 s29, 0', 's_cselect_b32 s55, s55, 1.0')
    e('v_cmp_lt_u32 vcc, 31, v0')
    e('v_cmp_eq_u32 s[56:57], 28, v20', 'v_cmp_lt_u32 s[58:59], 28, v20')
    e('v_mov_b32 v3, 0x3f803f80', 'v_mov_b32 v4, 0x00003f80', 'v_mov_b32 v5, 0')
    e('s_nop 4')
    for r in range(16): e(f'v_mul_f32 v{ACC+r}, s55, v{ACC+r}')
    for k in range(8): e(f'v_cvt_pk_bf16_f32 v{32+k}, v{ACC+2*k}, v{ACC+2*k+1}')
    e('v_cndmask_b32 v38, v38, v5, vcc', 'v_cndmask_b32 v39, v39, v5, vcc')
    e('buffer_store_dwordx4 v[32:35], v2, s[24:27], s52 offen', 'buffer_store_dwordx4 v[36:39], v2, s[24:27], s52 offen offset:1024')
    for k in range(8): e(f'v_cvt_pk_bf16_f32 v{40+k}, v{ACC+16+2*k}, v{ACC+16+2*k+1}')
    e('v_cndmask_b32 v46, v46, v3, vcc', 'v_cndmask_b32 v47, v47, v4, vcc')
    e('buffer_store_dwordx4 v[40:43], v2, s[24:27], s54 offen', 'buffer_store_dwordx4 v[44:47], v2, s[24:27], s54 offen offset:1024')
    for k in range(8): e(f'v_cvt_pk_bf16_f32 v{48+k}, v{ACC+32+2*k}, v{ACC+32+2*k+1}')
    for k in range(8): e(f'v_cndmask_b32 v{48+k}, v{48+k}, v3, s[56:57]')
    for k in range(8): e(f'v_cndmask_b32 v{48+k}, v{48+k}, v5, s[58:59]')
    e('buffer_store_dwordx4 v[48:51], v2, s[24:27], s54 offen offset:2048', 'buffer_store_dwordx4 v[52:55], v2, s[24:27], s54 offen offset:3072')
    e.label('L_k1_end')
    e('s_endpgm')
    return e.text(), dict(name='qkv_kernel', vgpr=128, sgpr=64, grid=NWG, block=256, lds=min(NS,7)*CH)

def assemble(kernels, path):
    hdr = open('cdna_kernels/%s.s.ref' % NAME).read().split('\n')
    out = [l for l in hdr if l.startswith(';') and '@launch' not in l and 'Override' not in l and 'grid=ceil' not in l]
    for txt, k in kernels:
        out.append(f"; @launch kernel={k['name']} grid=({k['grid']},1,1) block=({k['block']},1,1) lds={k['lds']}")
    out += ['.amdgcn_target "amdgcn-amd-amdhsa--gfx950"', '.text']
    for txt, k in kernels:
        out += [f".globl {k['name']}", '.p2align 8', f".type {k['name']},@function", txt]
    out += ['.section .rodata,"a"']
    for txt, k in kernels:
        acc = (k['vgpr'] + 3)//4*4
        out += ['.p2align 6', f".amdhsa_kernel {k['name']}", f"  .amdhsa_next_free_vgpr {k['vgpr']}", f"  .amdhsa_next_free_sgpr {k['sgpr']}",
                f"  .amdhsa_accum_offset {acc}", '  .amdhsa_group_segment_fixed_size 0', '  .amdhsa_kernarg_size 72', '  .amdhsa_user_sgpr_count 2',
                '  .amdhsa_user_sgpr_kernarg_segment_ptr 1', '  .amdhsa_system_sgpr_workgroup_id_x 1', '.end_amdhsa_kernel']
    open(path, 'w').write('\n'.join(out) + '\n')

if __name__ == '__main__':
    ks = [gen_k1()]
    assemble(ks, sys.argv[1] if len(sys.argv) > 1 else 'cdna_kernels/%s.s' % NAME)
```

```python
from gen import *

OFFM = 32.0

def stamp(e, kidx, which, sws, tmp=90, vt=None):
    pass

def gen_k2():
    e = E()
    SL = 32768
    e.label('attn_kernel')
    e('s_cmp_ge_u32 s2, 256', 's_cbranch_scc1 L_k2_end')
    e('s_load_dwordx2 s[12:13], s[0:1], 64')
    e('v_lshrrev_b32 v1, 6, v0', 'v_and_b32 v0, 63, v0')
    e('s_and_b32 s3, s2, 7', 's_lshl_b32 s30, s3, 1', 's_bfe_u32 s3, s2, 0x10003', 's_add_u32 s30, s30, s3')
    e('v_readfirstlane_b32 s28, v1')
    e('s_lshr_b32 s31, s2, 4')
    e('v_lshlrev_b32 v2, 4, v0')
    e('s_and_b32 s32, s28, 3', 's_lshr_b32 s33, s28, 2')
    e('s_lshl_b32 s34, s30, 18', 's_lshl_b32 s35, s33, 17', 's_add_u32 s34, s34, s35', 's_lshl_b32 s35, s32, 12', 's_add_u32 s34, s34, s35', f's_add_u32 s34, s34, {WS_KV}')
    e('s_lshl_b32 s36, s28, 12')
    e('s_lshl_b32 s37, s30, 17', 's_lshl_b32 s38, s31, 13', 's_add_u32 s37, s37, s38', 's_lshl_b32 s38, s32, 11', 's_add_u32 s37, s37, s38')
    e('s_waitcnt lgkmcnt(0)')
    srd(e, 24, 12, 13, WS_BYTES)
    QF = 8
    S0, S1 = 16, 32
    P = 48
    O = 56
    KB = 72
    VB = 88
    vCur, vNxt, vLane = 104, 105, 106
    def dma(soff_sgpr, m0_expr):
        e(m0_expr, 's_nop 0')
        for i in range(4):
            e(f'buffer_load_dwordx4 v2, s[24:27], s{soff_sgpr} offen offset:{1024*i} lds')
    e('s_mov_b32 s60, 0')
    e(f'buffer_load_dwordx4 {vr(QF,4)}, v2, s[24:27], s37 offen', f'buffer_load_dwordx4 {vr(QF+4,4)}, v2, s[24:27], s37 offen offset:1024')
    e('s_add_u32 s40, s34, 16384')
    dma(34, 's_mov_b32 m0, s36')
    dma(40, f's_add_u32 m0, s36, {SL}')
    e.c('B local attention')
    e('s_lshl_b32 s41, s31, 3', 's_add_u32 s41, s41, s28')
    e('s_sub_u32 s42, s41, 1', 's_max_i32 s42, s42, 0')
    e('v_and_b32 v3, 15, v0', 'v_lshrrev_b32 v4, 4, v0')
    e('v_lshrrev_b32 v5, 1, v4', 'v_and_b32 v6, 1, v4', 'v_lshlrev_b32 v7, 10, v5', 'v_lshl_add_u32 v7, v6, 9, v7', 'v_lshl_add_u32 v7, v3, 4, v7')
    e('v_lshlrev_b32 v44, 9, v6', 'v_lshl_add_u32 v44, v3, 4, v44', 'v_lshl_add_u32 v44, v5, 3, v44')
    QBb = WS_PSTRIDE + WS_Q; KVBb = WS_PSTRIDE + WS_KV
    e('s_lshr_b32 s43, s41, 1', 's_and_b32 s44, s41, 1')
    e('s_lshr_b32 s45, s42, 1', 's_and_b32 s46, s42, 1')
    e('s_lshl_b32 s47, s30, 17', 's_lshl_b32 s48, s43, 11', 's_add_u32 s47, s47, s48', 's_lshl_b32 s48, s44, 8', 's_add_u32 s47, s47, s48', f's_add_u32 s47, s47, {QBb}')
    e('s_lshl_b32 s49, s30, 18', f's_add_u32 s49, s49, {KVBb}')
    e('s_lshl_b32 s50, s43, 12', 's_add_u32 s50, s50, s49')
    e('s_lshl_b32 s51, s45, 12', 's_add_u32 s51, s51, s49')
    e('s_lshl_b32 s52, s44, 8', 's_add_u32 s52, s52, s50')
    e('s_lshl_b32 s53, s46, 8', 's_add_u32 s53, s53, s51')
    e('s_lshl_b32 s54, s44, 10', 's_add_u32 s54, s54, s50')
    e('s_lshl_b32 s55, s46, 10', 's_add_u32 s55, s55, s51')
    e('buffer_load_dwordx4 v[16:19], v7, s[24:27], s47 offen')
    e('buffer_load_dwordx4 v[20:23], v7, s[24:27], s53 offen')
    e('buffer_load_dwordx4 v[24:27], v7, s[24:27], s52 offen')
    e('buffer_load_dwordx2 v[28:29], v44, s[24:27], s55 offen offset:2048')
    e('buffer_load_dwordx2 v[30:31], v44, s[24:27], s54 offen offset:2048')
    e('buffer_load_dwordx2 v[32:33], v44, s[24:27], s55 offen offset:2304')
    e('buffer_load_dwordx2 v[34:35], v44, s[24:27], s54 offen offset:2304')
    e('v_lshlrev_b32 v45, 2, v4', 'v_sub_u32 v45, v3, v45')
    e('s_cmp_eq_u32 s41, 0', 's_cselect_b32 s56, 48, 16')
    e('v_add_u32 v46, s56, v45')
    e(f's_mov_b32 s57, {f32(28 ** -0.5)}', f's_mov_b32 s58, {f32(1.4426950408889634)}', 's_mov_b32 s59, 0xffff0000')
    e('v_mov_b32 v47, 0xf149f2ca')
    e('s_waitcnt vmcnt(4)')
    e('v_mfma_f32_16x16x32_bf16 v[36:39], v[20:23], v[16:19], 0')
    e('v_mfma_f32_16x16x32_bf16 v[40:43], v[24:27], v[16:19], 0')
    e('s_nop 7')
    for k in range(4): e(f'v_cvt_pk_bf16_f32 v{48+k}, v{36+2*k}, v{37+2*k}')
    for k in range(4):
        e(f'v_lshlrev_b32 v{36+2*k}, 16, v{48+k}', f'v_and_b32 v{37+2*k}, s59, v{48+k}')
    for r in range(8): e(f'v_mul_f32 v{36+r}, s57, v{36+r}')
    for k in range(4): e(f'v_cvt_pk_bf16_f32 v{48+k}, v{36+2*k}, v{37+2*k}')
    for k in range(4):
        e(f'v_lshlrev_b32 v{36+2*k}, 16, v{48+k}', f'v_and_b32 v{37+2*k}, s59, v{48+k}')
    for r in range(8):
        src = 46 if r < 4 else 45
        e(f'v_subrev_u32 v52, {r%4}, v{src}', 'v_and_b32 v52, 0xfffffff1, v52', 'v_cmp_eq_u32 vcc, 0, v52', 's_nop 1',
          f'v_cndmask_b32 v{36+r}, v47, v{36+r}, vcc')
    e('v_max3_f32 v52, v36, v37, v38', 'v_max3_f32 v52, v52, v39, v40', 'v_max3_f32 v52, v52, v41, v42', 'v_max_f32 v52, v52, v43')
    e('v_mov_b32 v53, v52', 's_nop 1', 'v_permlane32_swap_b32 v52, v53', 'v_max_f32 v52, v52, v53')
    e('v_mov_b32 v53, v52', 's_nop 1', 'v_permlane16_swap_b32 v52, v53', 'v_max_f32 v52, v52, v53')
    for r in range(8): e(f'v_sub_f32 v{36+r}, v{36+r}, v52')
    for r in range(8): e(f'v_mul_f32 v{36+r}, s58, v{36+r}')
    for r in range(8): e(f'v_exp_f32 v{36+r}, v{36+r}')
    e('s_nop 0')
    e('v_add_f32 v52, v36, v37', 'v_add_f32 v53, v38, v39', 'v_add_f32 v54, v40, v41', 'v_add_f32 v55, v42, v43')
    e('v_add_f32 v52, v52, v53', 'v_add_f32 v54, v54, v55', 'v_add_f32 v52, v52, v54')
    e('v_mov_b32 v53, v52', 's_nop 1', 'v_permlane32_swap_b32 v52, v53', 'v_add_f32 v52, v52, v53')
    e('v_mov_b32 v53, v52', 's_nop 1', 'v_permlane16_swap_b32 v52, v53', 'v_add_f32 v52, v52, v53')
    e('v_rcp_f32 v52, v52', 's_nop 0')
    for r in range(8): e(f'v_mul_f32 v{36+r}, v52, v{36+r}')
    for k in range(4): e(f'v_cvt_pk_bf16_f32 v{48+k}, v{36+2*k}, v{37+2*k}')
    e('s_waitcnt vmcnt(0)', 's_nop 0')
    e('v_mfma_f32_16x16x32_bf16 v[36:39], v[28:31], v[48:51], 0')
    e('v_mfma_f32_16x16x32_bf16 v[40:43], v[32:35], v[48:51], 0')
    e('s_lshl_b32 s47, s43, 15', 's_lshl_b32 s48, s30, 11', 's_add_u32 s47, s47, s48', 's_lshl_b32 s48, s44, 8', 's_add_u32 s47, s47, s48', f's_add_u32 s47, s47, {WS_O + 0x200000}')
    e('v_cmp_eq_u32 vcc, 3, v4', 'v_mov_b32 v53, 0')
    e('s_nop 1')
    e('v_cvt_pk_bf16_f32 v48, v36, v37', 'v_cvt_pk_bf16_f32 v49, v38, v39', 'v_cvt_pk_bf16_f32 v50, v40, v41', 'v_cvt_pk_bf16_f32 v51, v42, v43')
    e('v_cndmask_b32 v50, v50, v53, vcc', 'v_cndmask_b32 v51, v51, v53, vcc')
    e('buffer_store_dwordx2 v[48:49], v44, s[24:27], s47 offen', 'buffer_store_dwordx2 v[50:51], v44, s[24:27], s47 offen offset:1024')
    e.c('stand-in max')
    e('s_lshl_b32 s41, s33, 14', f'v_add_u32 v{vLane}, s41, v2')
    e('s_waitcnt vmcnt(0)', 's_barrier')
    e(f'ds_read_b128 {vr(KB,4)}, v2', f'ds_read_b128 {vr(KB+4,4)}, v2 offset:1024')
    e('s_waitcnt lgkmcnt(0)')
    e(f'v_mfma_f32_32x32x16_bf16 {vr(S0,16)}, {vr(KB,4)}, {vr(QF,4)}, 0')
    e(f'v_mfma_f32_32x32x16_bf16 {vr(S0,16)}, {vr(KB+4,4)}, {vr(QF+4,4)}, {vr(S0,16)}')
    e('s_nop 7', 's_nop 3')
    e(f'v_max3_f32 v3, v{S0}, v{S0+1}, v{S0+2}')
    for k in range(3, 15, 2): e(f'v_max3_f32 v3, v3, v{S0+k}, v{S0+k+1}')
    e(f'v_max_f32 v3, v3, v{S0+15}')
    e('v_mov_b32 v4, v3', 's_nop 1', 'v_permlane32_swap_b32 v3, v4', 'v_max_f32 v3, v3, v4')
    e(f'v_add_f32 v3, {f32(OFFM)}, v3')
    e.label('L_k2_setmax')
    e('v_sub_f32 v3, 0, v3', 's_mov_b32 s59, 0xffff0000', 'v_and_b32 v4, s59, v3', 'v_sub_f32 v3, v3, v4', 'v_and_b32 v5, s59, v3', 'v_sub_f32 v3, v3, v5')
    e('v_lshrrev_b32 v4, 16, v4', 'v_or_b32 v4, v4, v5', 'v_lshrrev_b32 v3, 16, v3')
    e('v_cmp_lt_u32 vcc, 31, v0', 's_nop 1')
    e(f'v_cndmask_b32 v{QF+6}, v{QF+6}, v4, vcc', f'v_cndmask_b32 v{QF+7}, v{QF+7}, v3, vcc')
    e(f'ds_read_b128 {vr(KB,4)}, v{vLane}', f'ds_read_b128 {vr(KB+4,4)}, v{vLane} offset:1024')
    e(f'ds_read_b128 {vr(KB+8,4)}, v{vLane} offset:4096', f'ds_read_b128 {vr(KB+12,4)}, v{vLane} offset:5120')
    e(f'ds_read_b128 {vr(VB,4)}, v{vLane} offset:2048', f'ds_read_b128 {vr(VB+4,4)}, v{vLane} offset:3072')
    for r in range(16): e(f'v_mov_b32 v{O+r}, 0')
    e('s_waitcnt lgkmcnt(4)')
    e(f'v_mfma_f32_32x32x16_bf16 {vr(S0,16)}, {vr(KB,4)}, {vr(QF,4)}, 0')
    e(f'v_mfma_f32_32x32x16_bf16 {vr(S0,16)}, {vr(KB+4,4)}, {vr(QF+4,4)}, {vr(S0,16)}')
    e('s_mov_b32 s61, 0', 's_mov_b32 s62, 0', f's_mov_b32 s63, {SL}', f's_mov_b32 s64, {2*SL}', 's_add_u32 s65, s34, 32768')
    e('s_nop 4')
    e('.p2align 6')
    e.label('L_k2_loop')
    e('s_waitcnt vmcnt(0)', 's_barrier')
    e(f'v_add_u32 v{vCur}, s62, v{vLane}', f'v_add_u32 v{vNxt}, s63, v{vLane}')
    e('s_cmp_ge_u32 s61, 6', 's_cbranch_scc1 L_k2_nodma')
    dma(65, 's_add_u32 m0, s64, s36')
    e.label('L_k2_nodma')
    for i in range(4):
        Sc = S0 if i % 2 == 0 else S1
        Sn = S1 if i % 2 == 0 else S0
        Kn = KB + 8*((i+1) % 2)
        Kl = KB + 8*(i % 2)
        Vc = VB + 8*(i % 2)
        Vl = VB + 8*((i+1) % 2)
        ka, ko = (vCur, (i+2)*4096) if i+2 < 4 else (vNxt, (i+2-4)*4096)
        va, vo = (vCur, (i+1)*4096) if i+1 < 4 else (vNxt, 0)
        e('s_waitcnt lgkmcnt(0)')
        e(f'v_mfma_f32_32x32x16_bf16 {vr(Sn,16)}, {vr(Kn,4)}, {vr(QF,4)}, 0')
        e(f'ds_read_b128 {vr(Kl,4)}, v{ka} offset:{ko}', f'ds_read_b128 {vr(Kl+4,4)}, v{ka} offset:{ko+1024}')
        for r in range(4): e(f'v_exp_f32 v{Sc+r}, v{Sc+r}')
        e(f'v_mfma_f32_32x32x16_bf16 {vr(Sn,16)}, {vr(Kn+4,4)}, {vr(QF+4,4)}, {vr(Sn,16)}')
        e(f'ds_read_b128 {vr(Vl,4)}, v{va} offset:{vo+2048}', f'ds_read_b128 {vr(Vl+4,4)}, v{va} offset:{vo+3072}')
        for r in range(4, 8): e(f'v_exp_f32 v{Sc+r}, v{Sc+r}')
        e(f'v_cvt_pk_bf16_f32 v{P}, v{Sc}, v{Sc+1}', f'v_cvt_pk_bf16_f32 v{P+1}, v{Sc+2}, v{Sc+3}')
        e(f'v_cvt_pk_bf16_f32 v{P+2}, v{Sc+4}, v{Sc+5}', f'v_cvt_pk_bf16_f32 v{P+3}, v{Sc+6}, v{Sc+7}')
        for r in range(8, 12): e(f'v_exp_f32 v{Sc+r}, v{Sc+r}')
        e(f'v_mfma_f32_32x32x16_bf16 {vr(O,16)}, {vr(Vc,4)}, {vr(P,4)}, {vr(O,16)}')
        for r in range(12, 16): e(f'v_exp_f32 v{Sc+r}, v{Sc+r}')
        e(f'v_cvt_pk_bf16_f32 v{P+4}, v{Sc+8}, v{Sc+9}', f'v_cvt_pk_bf16_f32 v{P+5}, v{Sc+10}, v{Sc+11}')
        e(f'v_cvt_pk_bf16_f32 v{P+6}, v{Sc+12}, v{Sc+13}', f'v_cvt_pk_bf16_f32 v{P+7}, v{Sc+14}, v{Sc+15}')
        if i == 3:
            e('s_mov_b32 s66, s62', 's_mov_b32 s62, s63', 's_mov_b32 s63, s64', 's_mov_b32 s64, s66', 's_add_u32 s65, s65, 16384', 's_add_u32 s61, s61, 1', 's_cmp_lt_u32 s61, 8')
        else:
            e('s_nop 1')
        e(f'v_mfma_f32_32x32x16_bf16 {vr(O,16)}, {vr(Vc+4,4)}, {vr(P+4,4)}, {vr(O,16)}')
    e('s_cbranch_scc1 L_k2_loop')
    e('s_waitcnt lgkmcnt(0)', 's_barrier')
    e('s_lshl_b32 s41, s32, 12', 'v_add_u32 v3, s41, v2')
    e('s_cmp_eq_u32 s33, 0', 's_cbranch_scc1 L_k2_lo')
    e('s_nop 7')
    for k in range(4): e(f'ds_write_b128 v3, {vr(O+4*k,4)} offset:{1024*k}')
    e('s_waitcnt lgkmcnt(0)', 's_barrier')
    e('s_barrier')
    e('v_mov_b32 v4, 16384', 'ds_read_b32 v4, v4', 's_waitcnt lgkmcnt(0)', 'v_readfirstlane_b32 s41, v4', 's_nop 3')
    e('s_cmp_eq_u32 s41, 0', 's_cbranch_scc1 L_k2_end', 's_branch L_k2_fallback')
    e.label('L_k2_lo')
    e('v_mov_b32 v4, 16384', 'v_mov_b32 v5, 0', 'ds_write_b32 v4, v5')
    e('s_waitcnt lgkmcnt(0)', 's_barrier')
    for k in range(4): e(f'ds_read_b128 {vr(S0+4*k,4)}, v3 offset:{1024*k}')
    e('s_waitcnt lgkmcnt(0)')
    for r in range(16): e(f'v_add_f32 v{O+r}, v{O+r}, v{S0+r}')
    e(f'v_mov_b32 v5, v{O+12}', f'v_mov_b32 v6, v{O+12}', 's_nop 1', 'v_permlane32_swap_b32 v6, v5')
    e(f'v_max3_f32 v6, |v{O}|, |v{O+1}|, |v{O+2}|')
    for k in range(3, 15, 2): e(f'v_max3_f32 v6, v6, |v{O+k}|, |v{O+k+1}|')
    e(f'v_max_f32 v6, v6, |v{O+15}|')
    e(f'v_add_f32 v7, v{O}, v{O+1}')
    for k in range(2, 16): e(f'v_add_f32 v7, v7, v{O+k}')
    e('s_mov_b32 s42, 0x7e800000')
    e('v_cmp_ngt_f32 vcc, s42, v6')
    e('v_cmp_u_f32 s[44:45], v7, v7')
    e('s_or_b64 vcc, vcc, s[44:45]')
    e('s_cmp_eq_u32 s60, 1', 's_cselect_b64 vcc, 0, vcc')
    e('s_cmp_eq_u64 vcc, 0', 's_cbranch_scc1 L_k2_ok')
    e('v_mov_b32 v6, 1', 'ds_write_b32 v4, v6', 's_waitcnt lgkmcnt(0)')
    e.label('L_k2_ok')
    e('s_barrier')
    e('ds_read_b32 v4, v4', 's_waitcnt lgkmcnt(0)', 'v_readfirstlane_b32 s41, v4', 's_nop 3')
    e('s_cmp_lg_u32 s41, 0', 's_cbranch_scc1 L_k2_fallback')
    e('v_rcp_f32 v5, v5', 'v_cmp_lt_u32 vcc, 31, v0', 'v_mov_b32 v6, 0')
    for r in range(16): e(f'v_mul_f32 v{O+r}, v5, v{O+r}')
    for k in range(8): e(f'v_cvt_pk_bf16_f32 v{P+k}, v{O+2*k}, v{O+2*k+1}')
    e(f'v_cndmask_b32 v{P+6}, v{P+6}, v6, vcc', f'v_cndmask_b32 v{P+7}, v{P+7}, v6, vcc')
    e('s_lshl_b32 s41, s31, 17', 's_lshl_b32 s42, s32, 15', 's_add_u32 s41, s41, s42', 's_lshl_b32 s42, s30, 11', 's_add_u32 s41, s41, s42', f's_add_u32 s41, s41, {WS_O}')
    e(f'buffer_store_dwordx4 {vr(P,4)}, v2, s[24:27], s41 offen', f'buffer_store_dwordx4 {vr(P+4,4)}, v2, s[24:27], s41 offen offset:1024')
    e('s_endpgm')
    e.label('L_k2_fallback')
    e('s_barrier')
    e('s_mov_b32 s60, 1')
    e('s_add_u32 s40, s34, 16384')
    dma(34, 's_mov_b32 m0, s36')
    dma(40, f's_add_u32 m0, s36, {SL}')
    e(f'buffer_load_dwordx4 {vr(QF+4,4)}, v2, s[24:27], s37 offen offset:1024')
    e('s_lshl_b32 s41, s30, 18', f's_add_u32 s41, s41, {WS_KV}', 's_mov_b32 s42, 0')
    e('v_mov_b32 v3, 0xff800000')
    e.label('L_k2_maxloop')
    e(f'buffer_load_dwordx4 {vr(KB,4)}, v2, s[24:27], s41 offen', f'buffer_load_dwordx4 {vr(KB+4,4)}, v2, s[24:27], s41 offen offset:1024')
    e('s_waitcnt vmcnt(0)')
    e(f'v_mfma_f32_32x32x16_bf16 {vr(S0,16)}, {vr(KB,4)}, {vr(QF,4)}, 0')
    e(f'v_mfma_f32_32x32x16_bf16 {vr(S0,16)}, {vr(KB+4,4)}, {vr(QF+4,4)}, {vr(S0,16)}')
    e('s_nop 7', 's_nop 3')
    for k in range(0, 16, 2): e(f'v_max3_f32 v3, v3, v{S0+k}, v{S0+k+1}')
    e('s_add_u32 s41, s41, 4096', 's_add_u32 s42, s42, 1', 's_cmp_lt_u32 s42, 64', 's_cbranch_scc1 L_k2_maxloop')
    e('v_mov_b32 v4, v3', 's_nop 1', 'v_permlane32_swap_b32 v3, v4', 'v_max_f32 v3, v3, v4')
    e('s_barrier')
    e('s_branch L_k2_setmax')
    e.label('L_k2_end')
    e('s_endpgm')
    return e.text(), dict(name='attn_kernel', vgpr=112, sgpr=72, grid=256, block=512, lds=3*SL)

def gen_k3():
    e = E()
    e.label('proj_kernel')
    e('s_cmp_ge_u32 s2, 256', 's_cbranch_scc1 L_k3_end')
    e('s_load_dwordx2 s[4:5], s[0:1], 16', 's_load_dwordx2 s[6:7], s[0:1], 40', 's_load_dwordx2 s[8:9], s[0:1], 48', 's_load_dwordx2 s[12:13], s[0:1], 64')
    e('v_lshrrev_b32 v1, 6, v0', 'v_and_b32 v0, 63, v0')
    e('s_and_b32 s3, s2, 7', 's_lshr_b32 s29, s3, 2')
    e('v_readfirstlane_b32 s28, v1')
    e('s_and_b32 s3, s3, 3', 's_lshl_b32 s3, s3, 3', 's_bfe_u32 s31, s2, 0x30003', 's_add_u32 s31, s31, s3')
    e('s_lshr_b32 s30, s2, 6')
    e('v_and_b32 v3, 15, v0', 'v_lshrrev_b32 v4, 4, v0')
    e('s_mul_i32 s32, s28, 28*896', 's_mul_i32 s33, s30, 224', 's_add_u32 s32, s32, s33')
    e('v_lshrrev_b32 v7, 1, v3', 'v_xor_b32 v7, v7, v4', 'v_and_b32 v8, 1, v3')
    e('v_mul_u32_u24 v9, 896, v4', 'v_lshl_add_u32 v9, v8, 4, v9', 'v_add_u32 v9, s32, v9')
    e('v_lshl_add_u32 v5, v7, 5, v9', 'v_xor_b32 v7, 4, v7', 'v_lshl_add_u32 v6, v7, 5, v9')
    e('v_lshrrev_b32 v7, 1, v4', 'v_and_b32 v8, 1, v4', 'v_lshlrev_b32 v10, 10, v7', 'v_lshl_add_u32 v10, v8, 9, v10', 'v_lshl_add_u32 v10, v3, 4, v10')
    e('s_and_b32 s34, s28, 1', 's_lshl_b32 s34, s34, 8', 's_lshr_b32 s35, s28, 1', 's_lshl_b32 s36, s31, 1', 's_add_u32 s35, s35, s36', 's_lshl_b32 s35, s35, 15', 's_add_u32 s34, s34, s35')
    e('s_lshl_b32 s35, s29, 21', 's_add_u32 s34, s34, s35', f's_add_u32 s34, s34, {WS_O}')
    e('s_mul_i32 s37, s28, 7168')
    e('s_waitcnt lgkmcnt(0)')
    e('s_cmp_eq_u32 s29, 0', 's_cselect_b32 s14, s4, s6', 's_cselect_b32 s15, s5, s7')
    srd(e, 16, 14, 15, 448*896)
    srd(e, 20, 8, 9, 2048*1792)
    srd(e, 24, 12, 13, WS_BYTES)
    OF = 64
    for grp in range(4):
        for n in range(7):
            e(f's_add_u32 m0, s37, {grp*4*7168 + n*1024}', f's_mov_b32 s38, {(grp*112 + 4*n)*896}',
              f'buffer_load_dwordx4 v{5 + (n&1)}, s[16:19], s38 offen lds')
        for hh in range(0, 4, 2):
            hd = grp*4 + hh
            e(f's_add_u32 s38, s34, {hd*2048}')
            e(f'buffer_load_dwordx4 {vr(OF+4*hd,4)}, v10, s[24:27], s38 offen', f'buffer_load_dwordx4 {vr(OF+4*hd+4,4)}, v10, s[24:27], s38 offen offset:2048')
    e('v_bfe_u32 v11, v0, 2, 2', 'v_lshl_add_u32 v11, v8, 2, v11')
    e('v_lshl_add_u32 v27, v7, 4, v11', 'v_lshlrev_b32 v27, 8, v27', 'v_and_b32 v28, 3, v0', 'v_lshl_add_u32 v27, v28, 3, v27')
    e('v_cmp_eq_u32 vcc, 3, v4', 'v_mov_b32 v28, 2048', 'v_mov_b32 v29, 0', 'v_cndmask_b32 v28, v28, v29, vcc')
    for q in range(7):
        e(f'v_xor_b32 v29, {q}, v11', f'v_lshl_add_u32 v{12+q}, v29, 5, v27', f'v_add_u32 v{20+q}, v{12+q}, v28')
    ACC = 32
    AF = 128
    def reads(hd):
        b = AF + 28*(hd % 2); off = (hd % 8)*7168
        r = []
        for q in range(7):
            r.append(f'ds_read_b64_tr_b16 {vr(b+4*q,2)}, v{12+q} offset:{off}')
            r.append(f'ds_read_b64_tr_b16 {vr(b+4*q+2,2)}, v{20+q} offset:{off}')
        return r
    def sync(grp):
        e(f's_waitcnt vmcnt({11*(3-grp)})', 's_barrier')
    sync(0)
    e(*reads(0))
    for hd in range(16):
        b = AF + 28*(hd % 2)
        nxt = hd + 1
        if nxt < 16 and nxt % 4 == 0: sync(nxt // 4)
        if nxt == 8:
            e('s_waitcnt lgkmcnt(0)')
            for q in range(7): e(f'v_add_u32 v{12+q}, {8*7168}, v{12+q}', f'v_add_u32 v{20+q}, {8*7168}, v{20+q}')
        e('s_waitcnt lgkmcnt(0)')
        rd = reads(nxt) if nxt < 16 else []
        for q in range(7):
            Cc = '0' if hd == 0 else vr(ACC+4*q, 4)
            e(f'v_mfma_f32_16x16x32_bf16 {vr(ACC+4*q,4)}, {vr(b+4*q,4)}, {vr(OF+4*hd,4)}, {Cc}')
            e(*rd[2*q:2*q+2])
    RS = 240
    e('s_lshl_b32 s38, s28, 12', f's_add_u32 s38, s38, 114688')
    e(f'v_mul_u32_u24 v5, {RS}, v3', 'v_lshl_add_u32 v5, v4, 3, v5', 'v_add_u32 v5, s38, v5')
    e('s_nop 1')
    for q in range(7):
        e(f'v_cvt_pk_bf16_f32 v{64+2*q}, v{ACC+4*q}, v{ACC+4*q+1}', f'v_cvt_pk_bf16_f32 v{65+2*q}, v{ACC+4*q+2}, v{ACC+4*q+3}')
        e(f'ds_write_b64 v5, {vr(64+2*q,2)} offset:{32*q}')
    e('s_lshl_b32 s39, s31, 6', 's_lshl_b32 s40, s28, 4', 's_add_u32 s39, s39, s40', 's_mul_i32 s39, s39, 1792', 's_mul_i32 s40, s29, 896', 's_add_u32 s39, s39, s40', 's_add_u32 s39, s39, s33')
    for i in range(4):
        e(f'v_add_u32 v6, {64*i}, v0', 'v_mul_u32_u24 v7, 2341, v6', 'v_lshrrev_b32 v7, 15, v7')
        e('v_mul_u32_u24 v8, 14, v7', 'v_sub_u32 v8, v6, v8')
        e(f'v_mul_u32_u24 v9, {RS}, v7', 'v_lshl_add_u32 v9, v8, 4, v9', f'v_add_u32 v{12+i}, s38, v9')
        e('v_mul_u32_u24 v9, 1792, v7', f'v_lshl_add_u32 v{16+i}, v8, 4, v9')
    e('v_cmp_lt_u32 vcc, 31, v0', 'v_mov_b32 v9, 0x7fffff00', 'v_mov_b32 v8, s38', 'v_cndmask_b32 v19, v19, v9, vcc', 'v_cndmask_b32 v15, v15, v8, vcc')
    e('s_waitcnt lgkmcnt(0)')
    for i in range(4): e(f'ds_read_b128 {vr(80+4*i,4)}, v{12+i}')
    for i in range(4):
        e(f's_waitcnt lgkmcnt({3-i})', f'buffer_store_dwordx4 {vr(80+4*i,4)}, v{16+i}, s[20:23], s39 offen')
    e.label('L_k3_end')
    e('s_endpgm')
    return e.text(), dict(name='proj_kernel', vgpr=184, sgpr=64, grid=256, block=256, lds=114688+16384)

if __name__ == '__main__':
    assert all((s*2341)>>15 == s//14 for s in range(256))
    ks = [gen_k1(), gen_k2(), gen_k3()]
    assemble(ks, sys.argv[1] if len(sys.argv) > 1 else 'k.s')
```

```python
import sys, math
NAME = 'concat_heads__softmax_full_mha__sliding_local_dilated__prompt'

class E:
    def __init__(s): s.l = []
    def __call__(s, *lines):
        for x in lines: s.l.append('    ' + x)
    def label(s, n): s.l.append(n + ':')
    def c(s, t): s.l.append('    ; ' + t)
    def text(s): return '\n'.join(s.l)

def vr(a, n): return f'v[{a}:{a+n-1}]'
def sr(a, n): return f's[{a}:{a+n-1}]'

WS_Q   = 0x000000
WS_KV  = 0x200000
WS_PSTRIDE = 0x600000
WS_O   = 0xC00000
WS_BYTES = 0x1000000
QSCALE = (28 ** -0.5) * 1.4426950408889634
import struct
def f32(x): return '0x%08x' % struct.unpack('<I', struct.pack('<f', x))[0]

def srd(e, d, lo, hi, nbytes):
    e(f's_mov_b32 s{d}, s{lo}', f's_mov_b32 s{d+1}, s{hi}', f's_mov_b32 s{d+2}, {nbytes}', f's_mov_b32 s{d+3}, 0x00020000')

def gen_k1(NWG=512, NS=5):
    e = E()
    CH = 28672
    e.label('qkv_kernel')
    e(f's_cmp_ge_u32 s2, {NWG}', 's_cbranch_scc1 L_k1_end')
    e('s_load_dwordx4 s[4:7], s[0:1], 0', 's_load_dwordx4 s[8:11], s[0:1], 24', 's_load_dwordx2 s[12:13], s[0:1], 64')
    e('v_lshrrev_b32 v1, 6, v0', 'v_and_b32 v0, 63, v0')
    e('s_lshr_b32 s29, s2, 8', 's_and_b32 s3, s2, 255', 's_and_b32 s32, s3, 7', 's_lshr_b32 s33, s3, 3')
    e('v_readfirstlane_b32 s28, v1')
    e('s_and_b32 s30, s32, 1', 's_lshl_b32 s30, s30, 3', 's_and_b32 s34, s33, 7', 's_add_u32 s30, s30, s34')
    e('s_lshr_b32 s31, s32, 1', 's_lshl_b32 s31, s31, 2', 's_lshr_b32 s34, s33, 3', 's_add_u32 s31, s31, s34')
    e('s_lshl_b32 s35, s31, 7', 's_lshl_b32 s36, s28, 5', 's_add_u32 s35, s35, s36')
    e('v_lshrrev_b32 v4, 3, v0', 'v_add_u32 v4, s35, v4', 'v_mul_u32_u24 v4, 896, v4')
    e('v_and_b32 v5, 7, v0', 'v_lshrrev_b32 v6, 4, v0', 'v_xor_b32 v5, v5, v6')
    e('v_lshl_add_u32 v2, v5, 4, v4', 'v_xor_b32 v5, 4, v5', 'v_lshl_add_u32 v3, v5, 4, v4')
    e('s_mul_i32 s36, s28, 43008', 's_mul_i32 s37, s30, 56', 's_add_u32 s36, s36, s37')
    for i in range(3):
        e(f'v_add_u32 v7, {64*i}, v0', 'v_mul_u32_u24 v8, 171, v7', 'v_lshrrev_b32 v8, 11, v8')
        e('v_mul_u32_u24 v9, 12, v8', 'v_sub_u32 v9, v7, v9')
        e('v_mul_u32_u24 v8, 2688, v8', 'v_lshrrev_b32 v10, 2, v9', 'v_mul_u32_u24 v10, 896, v10', 'v_and_b32 v9, 3, v9')
        e('v_lshl_add_u32 v8, v9, 4, v8', f'v_add3_u32 v{4+i}, v8, v10, s36')
    e('s_waitcnt lgkmcnt(0)')
    e('s_cmp_eq_u32 s29, 0', 's_cselect_b32 s14, s4, s8', 's_cselect_b32 s15, s5, s9', 's_cselect_b32 s40, s6, s10', 's_cselect_b32 s41, s7, s11')
    srd(e, 16, 14, 15, 2048*896)
    srd(e, 20, 40, 41, 448*2688)
    srd(e, 24, 12, 13, WS_BYTES)
    e('s_mov_b32 s44, 0', 's_mov_b32 s45, 7168', 's_mov_b32 s46, 14336', 's_mov_b32 s47, 21504')
    e('s_lshl_b32 s48, s28, 12', 's_mul_i32 s49, s28, 3072')
    def dma(c):
        slot = c % NS
        e(f's_mov_b32 s50, {c*172032}')
        for i in range(3):
            e(f's_add_u32 m0, s49, {slot*CH + i*1024}', 's_nop 0',
              f'buffer_load_dwordx4 v{4+i}, s[20:23], s50 offen lds')
        for q in range(4):
            e(f's_add_u32 m0, s48, {slot*CH + 12288 + q*1024 - c*128}', 's_nop 0',
              f'buffer_load_dwordx4 v{2+(q&1)}, s[16:19], s{44+q} offen offset:{c*128} lds')
    nup = min(NS, 7)
    for c in range(nup): dma(c)
    e('v_and_b32 v20, 31, v0', 'v_lshrrev_b32 v21, 5, v0')
    e('v_bfe_u32 v22, v20, 1, 3', 'v_xor_b32 v22, v22, v21')
    e('v_lshlrev_b32 v23, 7, v20', 'v_add_u32 v23, s48, v23', 'v_add_u32 v23, 12288, v23')
    for t in range(4):
        e(f'v_xor_b32 v24, {2*t}, v22', f'v_lshl_add_u32 v{10+t}, v24, 4, v23')
    e('v_bfe_u32 v24, v0, 2, 2', 'v_lshl_add_u32 v24, v21, 3, v24', 'v_mul_u32_u24 v24, 192, v24')
    e('v_bfe_u32 v25, v0, 4, 1', 'v_lshl_add_u32 v24, v25, 5, v24', 'v_and_b32 v25, 3, v0', 'v_lshl_add_u32 v14, v25, 3, v24')
    FR = 32
    ACC = 80
    issued = nup
    def reads(T):
        c, t = divmod(T, 4)
        base = FR + 16*(T % 3)
        r = [f'ds_read_b128 {vr(base,4)}, v{15+t}']
        for s3 in range(3):
            for ee in range(2):
                r.append(f'ds_read_b64_tr_b16 {vr(base+4+4*s3+2*ee,2)}, v19 offset:{t*3072 + ee*768 + s3*64}')
        return r
    def sync(c):
        nonlocal issued
        e(f's_waitcnt vmcnt({7*(issued-1-c)})', 's_barrier')
        slot = c % NS
        for t in range(4): e(f'v_add_u32 v{15+t}, {slot*CH}, v{10+t}')
        e(f'v_add_u32 v19, {slot*CH}, v14')
        if c >= 2 and issued < 7:
            dma(issued); issued += 1
    e.c('STAMP 0')
    sync(0)
    e.c('STAMP 1')
    e(*reads(0)); e(*reads(1))
    for T in range(28):
        base = FR + 16*(T % 3)
        nxt = T + 2
        e(f's_waitcnt lgkmcnt({7 if T < 27 else 0})')
        rd = []
        if nxt < 28:
            if nxt % 4 == 0:
                sync(nxt // 4)
            rd = reads(nxt)
        cz = (T == 0)
        def C(a): return '0' if cz else vr(a, 16)
        e(f'v_mfma_f32_32x32x16_bf16 {vr(ACC,16)}, {vr(base+4,4)}, {vr(base,4)}, {C(ACC)}')
        e(*rd[:4])
        e(f'v_mfma_f32_32x32x16_bf16 {vr(ACC+16,16)}, {vr(base+8,4)}, {vr(base,4)}, {C(ACC+16)}')
        e(*rd[4:])
        e(f'v_mfma_f32_32x32x16_bf16 {vr(ACC+32,16)}, {vr(base,4)}, {vr(base+12,4)}, {C(ACC+32)}')
    e.c('STAMP 2')
    e('s_mul_i32 s50, s29, %d' % WS_PSTRIDE)
    e('s_lshl_b32 s51, s31, 2', 's_add_u32 s51, s51, s28')
    e('s_lshl_b32 s52, s30, 17', 's_lshl_b32 s53, s51, 11', 's_add_u32 s52, s52, s53', 's_add_u32 s52, s52, s50')
    e('s_lshl_b32 s54, s30, 18', 's_lshl_b32 s53, s51, 12', 's_add_u32 s54, s54, s53', 's_add_u32 s54, s54, s50', f's_add_u32 s54, s54, {WS_KV}')
    e('v_lshlrev_b32 v2, 4, v0')
    e(f's_mov_b32 s55, {f32(QSCALE)}', 's_cmp_eq_u32 s29, 0', 's_cselect_b32 s55, s55, 1.0')
    e('v_cmp_lt_u32 vcc, 31, v0')
    e('v_cmp_eq_u32 s[56:57], 28, v20', 'v_cmp_lt_u32 s[58:59], 28, v20')
    e('v_mov_b32 v3, 0x3f803f80', 'v_mov_b32 v4, 0x00003f80', 'v_mov_b32 v5, 0')
    e('s_nop 4')
    for r in range(16): e(f'v_mul_f32 v{ACC+r}, s55, v{ACC+r}')
    for k in range(8): e(f'v_cvt_pk_bf16_f32 v{32+k}, v{ACC+2*k}, v{ACC+2*k+1}')
    e('v_cndmask_b32 v38, v38, v5, vcc', 'v_cndmask_b32 v39, v39, v5, vcc')
    e('buffer_store_dwordx4 v[32:35], v2, s[24:27], s52 offen', 'buffer_store_dwordx4 v[36:39], v2, s[24:27], s52 offen offset:1024')
    for k in range(8): e(f'v_cvt_pk_bf16_f32 v{40+k}, v{ACC+16+2*k}, v{ACC+16+2*k+1}')
    e('v_cndmask_b32 v46, v46, v3, vcc', 'v_cndmask_b32 v47, v47, v4, vcc')
    e('buffer_store_dwordx4 v[40:43], v2, s[24:27], s54 offen', 'buffer_store_dwordx4 v[44:47], v2, s[24:27], s54 offen offset:1024')
    for k in range(8): e(f'v_cvt_pk_bf16_f32 v{48+k}, v{ACC+32+2*k}, v{ACC+32+2*k+1}')
    for k in range(8): e(f'v_cndmask_b32 v{48+k}, v{48+k}, v3, s[56:57]')
    for k in range(8): e(f'v_cndmask_b32 v{48+k}, v{48+k}, v5, s[58:59]')
    e('buffer_store_dwordx4 v[48:51], v2, s[24:27], s54 offen offset:2048', 'buffer_store_dwordx4 v[52:55], v2, s[24:27], s54 offen offset:3072')
    e.label('L_k1_end')
    e('s_endpgm')
    return e.text(), dict(name='qkv_kernel', vgpr=128, sgpr=64, grid=NWG, block=256, lds=min(NS,7)*CH)

def assemble(kernels, path):
    hdr = open('cdna_kernels/%s.s.ref' % NAME).read().split('\n')
    out = [l for l in hdr if l.startswith(';') and '@launch' not in l and 'Override' not in l and 'grid=ceil' not in l]
    for txt, k in kernels:
        out.append(f"; @launch kernel={k['name']} grid=({k['grid']},1,1) block=({k['block']},1,1) lds={k['lds']}")
    out += ['.amdgcn_target "amdgcn-amd-amdhsa--gfx950"', '.text']
    for txt, k in kernels:
        out += [f".globl {k['name']}", '.p2align 8', f".type {k['name']},@function", txt]
    out += ['.section .rodata,"a"']
    for txt, k in kernels:
        acc = (k['vgpr'] + 3)//4*4
        out += ['.p2align 6', f".amdhsa_kernel {k['name']}", f"  .amdhsa_next_free_vgpr {k['vgpr']}", f"  .amdhsa_next_free_sgpr {k['sgpr']}",
                f"  .amdhsa_accum_offset {acc}", '  .amdhsa_group_segment_fixed_size 0', '  .amdhsa_kernarg_size 72', '  .amdhsa_user_sgpr_count 2',
                '  .amdhsa_user_sgpr_kernarg_segment_ptr 1', '  .amdhsa_system_sgpr_workgroup_id_x 1', '.end_amdhsa_kernel']
    open(path, 'w').write('\n'.join(out) + '\n')

if __name__ == '__main__':
    ks = [gen_k1()]
    assemble(ks, sys.argv[1] if len(sys.argv) > 1 else 'cdna_kernels/%s.s' % NAME)
```

```python
from gen import *

OFFM = 32.0

def stamp(e, kidx, which, sws, tmp=90, vt=None):
    pass

def gen_k2():
    e = E()
    SL = 32768
    e.label('attn_kernel')
    e('s_cmp_ge_u32 s2, 256', 's_cbranch_scc1 L_k2_end')
    e('s_load_dwordx2 s[12:13], s[0:1], 64')
    e('v_lshrrev_b32 v1, 6, v0', 'v_and_b32 v0, 63, v0')
    e('s_and_b32 s3, s2, 7', 's_lshl_b32 s30, s3, 1', 's_bfe_u32 s3, s2, 0x10003', 's_add_u32 s30, s30, s3')
    e('v_readfirstlane_b32 s28, v1')
    e('s_lshr_b32 s31, s2, 4')
    e('v_lshlrev_b32 v2, 4, v0')
    e('s_and_b32 s32, s28, 3', 's_lshr_b32 s33, s28, 2')
    e('s_lshl_b32 s34, s30, 18', 's_lshl_b32 s35, s33, 17', 's_add_u32 s34, s34, s35', 's_lshl_b32 s35, s32, 12', 's_add_u32 s34, s34, s35', f's_add_u32 s34, s34, {WS_KV}')
    e('s_lshl_b32 s36, s28, 12')
    e('s_lshl_b32 s37, s30, 17', 's_lshl_b32 s38, s31, 13', 's_add_u32 s37, s37, s38', 's_lshl_b32 s38, s32, 11', 's_add_u32 s37, s37, s38')
    e('s_waitcnt lgkmcnt(0)')
    srd(e, 24, 12, 13, WS_BYTES)
    QF = 8
    S0, S1 = 16, 32
    P = 48
    O = 56
    KB = 72
    VB = 88
    vCur, vNxt, vLane = 104, 105, 106
    def dma(soff_sgpr, m0_expr):
        e(m0_expr, 's_nop 0')
        for i in range(4):
            e(f'buffer_load_dwordx4 v2, s[24:27], s{soff_sgpr} offen offset:{1024*i} lds')
    e('s_mov_b32 s60, 0')
    e(f'buffer_load_dwordx4 {vr(QF,4)}, v2, s[24:27], s37 offen', f'buffer_load_dwordx4 {vr(QF+4,4)}, v2, s[24:27], s37 offen offset:1024')
    e('s_add_u32 s40, s34, 16384')
    dma(34, 's_mov_b32 m0, s36')
    dma(40, f's_add_u32 m0, s36, {SL}')
    e.c('B local attention')
    e('s_lshl_b32 s41, s31, 3', 's_add_u32 s41, s41, s28')
    e('s_sub_u32 s42, s41, 1', 's_max_i32 s42, s42, 0')
    e('v_and_b32 v3, 15, v0', 'v_lshrrev_b32 v4, 4, v0')
    e('v_lshrrev_b32 v5, 1, v4', 'v_and_b32 v6, 1, v4', 'v_lshlrev_b32 v7, 10, v5', 'v_lshl_add_u32 v7, v6, 9, v7', 'v_lshl_add_u32 v7, v3, 4, v7')
    e('v_lshlrev_b32 v44, 9, v6', 'v_lshl_add_u32 v44, v3, 4, v44', 'v_lshl_add_u32 v44, v5, 3, v44')
    QBb = WS_PSTRIDE + WS_Q; KVBb = WS_PSTRIDE + WS_KV
    e('s_lshr_b32 s43, s41, 1', 's_and_b32 s44, s41, 1')
    e('s_lshr_b32 s45, s42, 1', 's_and_b32 s46, s42, 1')
    e('s_lshl_b32 s47, s30, 17', 's_lshl_b32 s48, s43, 11', 's_add_u32 s47, s47, s48', 's_lshl_b32 s48, s44, 8', 's_add_u32 s47, s47, s48', f's_add_u32 s47, s47, {QBb}')
    e('s_lshl_b32 s49, s30, 18', f's_add_u32 s49, s49, {KVBb}')
    e('s_lshl_b32 s50, s43, 12', 's_add_u32 s50, s50, s49')
    e('s_lshl_b32 s51, s45, 12', 's_add_u32 s51, s51, s49')
    e('s_lshl_b32 s52, s44, 8', 's_add_u32 s52, s52, s50')
    e('s_lshl_b32 s53, s46, 8', 's_add_u32 s53, s53, s51')
    e('s_lshl_b32 s54, s44, 10', 's_add_u32 s54, s54, s50')
    e('s_lshl_b32 s55, s46, 10', 's_add_u32 s55, s55, s51')
    e('buffer_load_dwordx4 v[16:19], v7, s[24:27], s47 offen')
    e('buffer_load_dwordx4 v[20:23], v7, s[24:27], s53 offen')
    e('buffer_load_dwordx4 v[24:27], v7, s[24:27], s52 offen')
    e('buffer_load_dwordx2 v[28:29], v44, s[24:27], s55 offen offset:2048')
    e('buffer_load_dwordx2 v[30:31], v44, s[24:27], s54 offen offset:2048')
    e('buffer_load_dwordx2 v[32:33], v44, s[24:27], s55 offen offset:2304')
    e('buffer_load_dwordx2 v[34:35], v44, s[24:27], s54 offen offset:2304')
    e('v_lshlrev_b32 v45, 2, v4', 'v_sub_u32 v45, v3, v45')
    e('s_cmp_eq_u32 s41, 0', 's_cselect_b32 s56, 48, 16')
    e('v_add_u32 v46, s56, v45')
    e(f's_mov_b32 s57, {f32(28 ** -0.5)}', f's_mov_b32 s58, {f32(1.4426950408889634)}', 's_mov_b32 s59, 0xffff0000')
    e('v_mov_b32 v47, 0xf149f2ca')
    e('s_waitcnt vmcnt(4)')
    e('v_mfma_f32_16x16x32_bf16 v[36:39], v[20:23], v[16:19], 0')
    e('v_mfma_f32_16x16x32_bf16 v[40:43], v[24:27], v[16:19], 0')
    e('s_nop 7')
    for k in range(4): e(f'v_cvt_pk_bf16_f32 v{48+k}, v{36+2*k}, v{37+2*k}')
    for k in range(4):
        e(f'v_lshlrev_b32 v{36+2*k}, 16, v{48+k}', f'v_and_b32 v{37+2*k}, s59, v{48+k}')
    for r in range(8): e(f'v_mul_f32 v{36+r}, s57, v{36+r}')
    for k in range(4): e(f'v_cvt_pk_bf16_f32 v{48+k}, v{36+2*k}, v{37+2*k}')
    for k in range(4):
        e(f'v_lshlrev_b32 v{36+2*k}, 16, v{48+k}', f'v_and_b32 v{37+2*k}, s59, v{48+k}')
    for r in range(8):
        src = 46 if r < 4 else 45
        e(f'v_subrev_u32 v52, {r%4}, v{src}', 'v_and_b32 v52, 0xfffffff1, v52', 'v_cmp_eq_u32 vcc, 0, v52', 's_nop 1',
          f'v_cndmask_b32 v{36+r}, v47, v{36+r}, vcc')
    e('v_max3_f32 v52, v36, v37, v38', 'v_max3_f32 v52, v52, v39, v40', 'v_max3_f32 v52, v52, v41, v42', 'v_max_f32 v52, v52, v43')
    e('v_mov_b32 v53, v52', 's_nop 1', 'v_permlane32_swap_b32 v52, v53', 'v_max_f32 v52, v52, v53')
    e('v_mov_b32 v53, v52', 's_nop 1', 'v_permlane16_swap_b32 v52, v53', 'v_max_f32 v52, v52, v53')
    for r in range(8): e(f'v_sub_f32 v{36+r}, v{36+r}, v52')
    for r in range(8): e(f'v_mul_f32 v{36+r}, s58, v{36+r}')
    for r in range(8): e(f'v_exp_f32 v{36+r}, v{36+r}')
    e('s_nop 0')
    e('v_add_f32 v52, v36, v37', 'v_add_f32 v53, v38, v39', 'v_add_f32 v54, v40, v41', 'v_add_f32 v55, v42, v43')
    e('v_add_f32 v52, v52, v53', 'v_add_f32 v54, v54, v55', 'v_add_f32 v52, v52, v54')
    e('v_mov_b32 v53, v52', 's_nop 1', 'v_permlane32_swap_b32 v52, v53', 'v_add_f32 v52, v52, v53')
    e('v_mov_b32 v53, v52', 's_nop 1', 'v_permlane16_swap_b32 v52, v53', 'v_add_f32 v52, v52, v53')
    e('v_rcp_f32 v52, v52', 's_nop 0')
    for r in range(8): e(f'v_mul_f32 v{36+r}, v52, v{36+r}')
    for k in range(4): e(f'v_cvt_pk_bf16_f32 v{48+k}, v{36+2*k}, v{37+2*k}')
    e('s_waitcnt vmcnt(0)', 's_nop 0')
    e('v_mfma_f32_16x16x32_bf16 v[36:39], v[28:31], v[48:51], 0')
    e('v_mfma_f32_16x16x32_bf16 v[40:43], v[32:35], v[48:51], 0')
    e('s_lshl_b32 s47, s43, 15', 's_lshl_b32 s48, s30, 11', 's_add_u32 s47, s47, s48', 's_lshl_b32 s48, s44, 8', 's_add_u32 s47, s47, s48', f's_add_u32 s47, s47, {WS_O + 0x200000}')
    e('v_cmp_eq_u32 vcc, 3, v4', 'v_mov_b32 v53, 0')
    e('s_nop 1')
    e('v_cvt_pk_bf16_f32 v48, v36, v37', 'v_cvt_pk_bf16_f32 v49, v38, v39', 'v_cvt_pk_bf16_f32 v50, v40, v41', 'v_cvt_pk_bf16_f32 v51, v42, v43')
    e('v_cndmask_b32 v50, v50, v53, vcc', 'v_cndmask_b32 v51, v51, v53, vcc')
    e('buffer_store_dwordx2 v[48:49], v44, s[24:27], s47 offen', 'buffer_store_dwordx2 v[50:51], v44, s[24:27], s47 offen offset:1024')
    e.c('STAMP 0')
    e.c('stand-in max')
    e('s_lshl_b32 s41, s33, 14', f'v_add_u32 v{vLane}, s41, v2')
    e('s_waitcnt vmcnt(0)', 's_barrier')
    e(f'ds_read_b128 {vr(KB,4)}, v2', f'ds_read_b128 {vr(KB+4,4)}, v2 offset:1024')
    e('s_waitcnt lgkmcnt(0)')
    e(f'v_mfma_f32_32x32x16_bf16 {vr(S0,16)}, {vr(KB,4)}, {vr(QF,4)}, 0')
    e(f'v_mfma_f32_32x32x16_bf16 {vr(S0,16)}, {vr(KB+4,4)}, {vr(QF+4,4)}, {vr(S0,16)}')
    e('s_nop 7', 's_nop 3')
    e(f'v_max3_f32 v3, v{S0}, v{S0+1}, v{S0+2}')
    for k in range(3, 15, 2): e(f'v_max3_f32 v3, v3, v{S0+k}, v{S0+k+1}')
    e(f'v_max_f32 v3, v3, v{S0+15}')
    e('v_mov_b32 v4, v3', 's_nop 1', 'v_permlane32_swap_b32 v3, v4', 'v_max_f32 v3, v3, v4')
    e(f'v_add_f32 v3, {f32(OFFM)}, v3')
    e.label('L_k2_setmax')
    e('v_sub_f32 v3, 0, v3', 's_mov_b32 s59, 0xffff0000', 'v_and_b32 v4, s59, v3', 'v_sub_f32 v3, v3, v4', 'v_and_b32 v5, s59, v3', 'v_sub_f32 v3, v3, v5')
    e('v_lshrrev_b32 v4, 16, v4', 'v_or_b32 v4, v4, v5', 'v_lshrrev_b32 v3, 16, v3')
    e('v_cmp_lt_u32 vcc, 31, v0', 's_nop 1')
    e(f'v_cndmask_b32 v{QF+6}, v{QF+6}, v4, vcc', f'v_cndmask_b32 v{QF+7}, v{QF+7}, v3, vcc')
    e(f'ds_read_b128 {vr(KB,4)}, v{vLane}', f'ds_read_b128 {vr(KB+4,4)}, v{vLane} offset:1024')
    e(f'ds_read_b128 {vr(KB+8,4)}, v{vLane} offset:4096', f'ds_read_b128 {vr(KB+12,4)}, v{vLane} offset:5120')
    e(f'ds_read_b128 {vr(VB,4)}, v{vLane} offset:2048', f'ds_read_b128 {vr(VB+4,4)}, v{vLane} offset:3072')
    for r in range(16): e(f'v_mov_b32 v{O+r}, 0')
    e('s_waitcnt lgkmcnt(4)')
    e(f'v_mfma_f32_32x32x16_bf16 {vr(S0,16)}, {vr(KB,4)}, {vr(QF,4)}, 0')
    e(f'v_mfma_f32_32x32x16_bf16 {vr(S0,16)}, {vr(KB+4,4)}, {vr(QF+4,4)}, {vr(S0,16)}')
    e('s_mov_b32 s61, 0', 's_mov_b32 s62, 0', f's_mov_b32 s63, {SL}', f's_mov_b32 s64, {2*SL}', 's_add_u32 s65, s34, 32768')
    e('s_nop 4')
    e.c('STAMP 1')
    e('.p2align 6')
    e.label('L_k2_loop')
    e('s_waitcnt vmcnt(0)', 's_barrier')
    e(f'v_add_u32 v{vCur}, s62, v{vLane}', f'v_add_u32 v{vNxt}, s63, v{vLane}')
    e('s_cmp_ge_u32 s61, 6', 's_cbranch_scc1 L_k2_nodma')
    dma(65, 's_add_u32 m0, s64, s36')
    e.label('L_k2_nodma')
    for i in range(4):
        Sc = S0 if i % 2 == 0 else S1
        Sn = S1 if i % 2 == 0 else S0
        Kn = KB + 8*((i+1) % 2)
        Kl = KB + 8*(i % 2)
        Vc = VB + 8*(i % 2)
        Vl = VB + 8*((i+1) % 2)
        ka, ko = (vCur, (i+2)*4096) if i+2 < 4 else (vNxt, (i+2-4)*4096)
        va, vo = (vCur, (i+1)*4096) if i+1 < 4 else (vNxt, 0)
        e('s_waitcnt lgkmcnt(0)')
        e(f'v_mfma_f32_32x32x16_bf16 {vr(Sn,16)}, {vr(Kn,4)}, {vr(QF,4)}, 0')
        e(f'ds_read_b128 {vr(Kl,4)}, v{ka} offset:{ko}', f'ds_read_b128 {vr(Kl+4,4)}, v{ka} offset:{ko+1024}')
        for r in range(4): e(f'v_exp_f32 v{Sc+r}, v{Sc+r}')
        e(f'v_mfma_f32_32x32x16_bf16 {vr(Sn,16)}, {vr(Kn+4,4)}, {vr(QF+4,4)}, {vr(Sn,16)}')
        e(f'ds_read_b128 {vr(Vl,4)}, v{va} offset:{vo+2048}', f'ds_read_b128 {vr(Vl+4,4)}, v{va} offset:{vo+3072}')
        for r in range(4, 8): e(f'v_exp_f32 v{Sc+r}, v{Sc+r}')
        e(f'v_cvt_pk_bf16_f32 v{P}, v{Sc}, v{Sc+1}', f'v_cvt_pk_bf16_f32 v{P+1}, v{Sc+2}, v{Sc+3}')
        e(f'v_cvt_pk_bf16_f32 v{P+2}, v{Sc+4}, v{Sc+5}', f'v_cvt_pk_bf16_f32 v{P+3}, v{Sc+6}, v{Sc+7}')
        for r in range(8, 12): e(f'v_exp_f32 v{Sc+r}, v{Sc+r}')
        e(f'v_mfma_f32_32x32x16_bf16 {vr(O,16)}, {vr(Vc,4)}, {vr(P,4)}, {vr(O,16)}')
        for r in range(12, 16): e(f'v_exp_f32 v{Sc+r}, v{Sc+r}')
        e(f'v_cvt_pk_bf16_f32 v{P+4}, v{Sc+8}, v{Sc+9}', f'v_cvt_pk_bf16_f32 v{P+5}, v{Sc+10}, v{Sc+11}')
        e(f'v_cvt_pk_bf16_f32 v{P+6}, v{Sc+12}, v{Sc+13}', f'v_cvt_pk_bf16_f32 v{P+7}, v{Sc+14}, v{Sc+15}')
        if i == 3:
            e('s_mov_b32 s66, s62', 's_mov_b32 s62, s63', 's_mov_b32 s63, s64', 's_mov_b32 s64, s66', 's_add_u32 s65, s65, 16384', 's_add_u32 s61, s61, 1', 's_cmp_lt_u32 s61, 8')
        else:
            e('s_nop 1')
        e(f'v_mfma_f32_32x32x16_bf16 {vr(O,16)}, {vr(Vc+4,4)}, {vr(P+4,4)}, {vr(O,16)}')
    e('s_cbranch_scc1 L_k2_loop')
    e.c('STAMP 2')
    e('s_waitcnt lgkmcnt(0)', 's_barrier')
    e('s_lshl_b32 s41, s32, 12', 'v_add_u32 v3, s41, v2')
    e('s_cmp_eq_u32 s33, 0', 's_cbranch_scc1 L_k2_lo')
    e('s_nop 7')
    for k in range(4): e(f'ds_write_b128 v3, {vr(O+4*k,4)} offset:{1024*k}')
    e('s_waitcnt lgkmcnt(0)', 's_barrier')
    e('s_barrier')
    e('v_mov_b32 v4, 16384', 'ds_read_b32 v4, v4', 's_waitcnt lgkmcnt(0)', 'v_readfirstlane_b32 s41, v4', 's_nop 3')
    e('s_cmp_eq_u32 s41, 0', 's_cbranch_scc1 L_k2_end', 's_branch L_k2_fallback')
    e.label('L_k2_lo')
    e('v_mov_b32 v4, 16384', 'v_mov_b32 v5, 0', 'ds_write_b32 v4, v5')
    e('s_waitcnt lgkmcnt(0)', 's_barrier')
    for k in range(4): e(f'ds_read_b128 {vr(S0+4*k,4)}, v3 offset:{1024*k}')
    e('s_waitcnt lgkmcnt(0)')
    for r in range(16): e(f'v_add_f32 v{O+r}, v{O+r}, v{S0+r}')
    e(f'v_mov_b32 v5, v{O+12}', f'v_mov_b32 v6, v{O+12}', 's_nop 1', 'v_permlane32_swap_b32 v6, v5')
    e(f'v_max3_f32 v6, |v{O}|, |v{O+1}|, |v{O+2}|')
    for k in range(3, 15, 2): e(f'v_max3_f32 v6, v6, |v{O+k}|, |v{O+k+1}|')
    e(f'v_max_f32 v6, v6, |v{O+15}|')
    e(f'v_add_f32 v7, v{O}, v{O+1}')
    for k in range(2, 16): e(f'v_add_f32 v7, v7, v{O+k}')
    e('s_mov_b32 s42, 0x7e800000')
    e('v_cmp_ngt_f32 vcc, s42, v6')
    e('v_cmp_u_f32 s[44:45], v7, v7')
    e('s_or_b64 vcc, vcc, s[44:45]')
    e('s_cmp_eq_u32 s60, 1', 's_cselect_b64 vcc, 0, vcc')
    e('s_cmp_eq_u64 vcc, 0', 's_cbranch_scc1 L_k2_ok')
    e('v_mov_b32 v6, 1', 'ds_write_b32 v4, v6', 's_waitcnt lgkmcnt(0)')
    e.label('L_k2_ok')
    e('s_barrier')
    e('ds_read_b32 v4, v4', 's_waitcnt lgkmcnt(0)', 'v_readfirstlane_b32 s41, v4', 's_nop 3')
    e('s_cmp_lg_u32 s41, 0', 's_cbranch_scc1 L_k2_fallback')
    e('v_rcp_f32 v5, v5', 'v_cmp_lt_u32 vcc, 31, v0', 'v_mov_b32 v6, 0')
    for r in range(16): e(f'v_mul_f32 v{O+r}, v5, v{O+r}')
    for k in range(8): e(f'v_cvt_pk_bf16_f32 v{P+k}, v{O+2*k}, v{O+2*k+1}')
    e(f'v_cndmask_b32 v{P+6}, v{P+6}, v6, vcc', f'v_cndmask_b32 v{P+7}, v{P+7}, v6, vcc')
    e('s_lshl_b32 s41, s31, 17', 's_lshl_b32 s42, s32, 15', 's_add_u32 s41, s41, s42', 's_lshl_b32 s42, s30, 11', 's_add_u32 s41, s41, s42', f's_add_u32 s41, s41, {WS_O}')
    e(f'buffer_store_dwordx4 {vr(P,4)}, v2, s[24:27], s41 offen', f'buffer_store_dwordx4 {vr(P+4,4)}, v2, s[24:27], s41 offen offset:1024')
    e('s_endpgm')
    e.label('L_k2_fallback')
    e('s_barrier')
    e('s_mov_b32 s60, 1')
    e('s_add_u32 s40, s34, 16384')
    dma(34, 's_mov_b32 m0, s36')
    dma(40, f's_add_u32 m0, s36, {SL}')
    e(f'buffer_load_dwordx4 {vr(QF+4,4)}, v2, s[24:27], s37 offen offset:1024')
    e('s_lshl_b32 s41, s30, 18', f's_add_u32 s41, s41, {WS_KV}', 's_mov_b32 s42, 0')
    e('v_mov_b32 v3, 0xff800000')
    e.label('L_k2_maxloop')
    e(f'buffer_load_dwordx4 {vr(KB,4)}, v2, s[24:27], s41 offen', f'buffer_load_dwordx4 {vr(KB+4,4)}, v2, s[24:27], s41 offen offset:1024')
    e('s_waitcnt vmcnt(0)')
    e(f'v_mfma_f32_32x32x16_bf16 {vr(S0,16)}, {vr(KB,4)}, {vr(QF,4)}, 0')
    e(f'v_mfma_f32_32x32x16_bf16 {vr(S0,16)}, {vr(KB+4,4)}, {vr(QF+4,4)}, {vr(S0,16)}')
    e('s_nop 7', 's_nop 3')
    for k in range(0, 16, 2): e(f'v_max3_f32 v3, v3, v{S0+k}, v{S0+k+1}')
    e('s_add_u32 s41, s41, 4096', 's_add_u32 s42, s42, 1', 's_cmp_lt_u32 s42, 64', 's_cbranch_scc1 L_k2_maxloop')
    e('v_mov_b32 v4, v3', 's_nop 1', 'v_permlane32_swap_b32 v3, v4', 'v_max_f32 v3, v3, v4')
    e('s_barrier')
    e('s_branch L_k2_setmax')
    e.label('L_k2_end')
    e('s_endpgm')
    return e.text(), dict(name='attn_kernel', vgpr=112, sgpr=72, grid=256, block=512, lds=3*SL)

def gen_k3():
    e = E()
    e.label('proj_kernel')
    e('s_cmp_ge_u32 s2, 256', 's_cbranch_scc1 L_k3_end')
    e('s_load_dwordx2 s[4:5], s[0:1], 16', 's_load_dwordx2 s[6:7], s[0:1], 40', 's_load_dwordx2 s[8:9], s[0:1], 48', 's_load_dwordx2 s[12:13], s[0:1], 64')
    e('v_lshrrev_b32 v1, 6, v0', 'v_and_b32 v0, 63, v0')
    e('s_and_b32 s3, s2, 7', 's_lshr_b32 s29, s3, 2')
    e('v_readfirstlane_b32 s28, v1')
    e('s_and_b32 s3, s3, 3', 's_lshl_b32 s3, s3, 3', 's_bfe_u32 s31, s2, 0x30003', 's_add_u32 s31, s31, s3')
    e('s_lshr_b32 s30, s2, 6')
    e('v_and_b32 v3, 15, v0', 'v_lshrrev_b32 v4, 4, v0')
    e('s_mul_i32 s32, s28, 28*896', 's_mul_i32 s33, s30, 224', 's_add_u32 s32, s32, s33')
    e('v_lshrrev_b32 v7, 1, v3', 'v_xor_b32 v7, v7, v4', 'v_and_b32 v8, 1, v3')
    e('v_mul_u32_u24 v9, 896, v4', 'v_lshl_add_u32 v9, v8, 4, v9', 'v_add_u32 v9, s32, v9')
    e('v_lshl_add_u32 v5, v7, 5, v9', 'v_xor_b32 v7, 4, v7', 'v_lshl_add_u32 v6, v7, 5, v9')
    e('v_lshrrev_b32 v7, 1, v4', 'v_and_b32 v8, 1, v4', 'v_lshlrev_b32 v10, 10, v7', 'v_lshl_add_u32 v10, v8, 9, v10', 'v_lshl_add_u32 v10, v3, 4, v10')
    e('s_and_b32 s34, s28, 1', 's_lshl_b32 s34, s34, 8', 's_lshr_b32 s35, s28, 1', 's_lshl_b32 s36, s31, 1', 's_add_u32 s35, s35, s36', 's_lshl_b32 s35, s35, 15', 's_add_u32 s34, s34, s35')
    e('s_lshl_b32 s35, s29, 21', 's_add_u32 s34, s34, s35', f's_add_u32 s34, s34, {WS_O}')
    e('s_mul_i32 s37, s28, 7168')
    e('s_waitcnt lgkmcnt(0)')
    e('s_cmp_eq_u32 s29, 0', 's_cselect_b32 s14, s4, s6', 's_cselect_b32 s15, s5, s7')
    srd(e, 16, 14, 15, 448*896)
    srd(e, 20, 8, 9, 2048*1792)
    srd(e, 24, 12, 13, WS_BYTES)
    OF = 64
    for grp in range(4):
        for n in range(7):
            e(f's_add_u32 m0, s37, {grp*4*7168 + n*1024}', f's_mov_b32 s38, {(grp*112 + 4*n)*896}',
              f'buffer_load_dwordx4 v{5 + (n&1)}, s[16:19], s38 offen lds')
        for hh in range(0, 4, 2):
            hd = grp*4 + hh
            e(f's_add_u32 s38, s34, {hd*2048}')
            e(f'buffer_load_dwordx4 {vr(OF+4*hd,4)}, v10, s[24:27], s38 offen', f'buffer_load_dwordx4 {vr(OF+4*hd+4,4)}, v10, s[24:27], s38 offen offset:2048')
    e('v_bfe_u32 v11, v0, 2, 2', 'v_lshl_add_u32 v11, v8, 2, v11')
    e('v_lshl_add_u32 v27, v7, 4, v11', 'v_lshlrev_b32 v27, 8, v27', 'v_and_b32 v28, 3, v0', 'v_lshl_add_u32 v27, v28, 3, v27')
    e('v_cmp_eq_u32 vcc, 3, v4', 'v_mov_b32 v28, 2048', 'v_mov_b32 v29, 0', 'v_cndmask_b32 v28, v28, v29, vcc')
    for q in range(7):
        e(f'v_xor_b32 v29, {q}, v11', f'v_lshl_add_u32 v{12+q}, v29, 5, v27', f'v_add_u32 v{20+q}, v{12+q}, v28')
    ACC = 32
    AF = 128
    def reads(hd):
        b = AF + 28*(hd % 2); off = (hd % 8)*7168
        r = []
        for q in range(7):
            r.append(f'ds_read_b64_tr_b16 {vr(b+4*q,2)}, v{12+q} offset:{off}')
            r.append(f'ds_read_b64_tr_b16 {vr(b+4*q+2,2)}, v{20+q} offset:{off}')
        return r
    def sync(grp):
        e(f's_waitcnt vmcnt({11*(3-grp)})', 's_barrier')
    e.c('STAMP 0')
    sync(0)
    e.c('STAMP 1')
    e(*reads(0))
    for hd in range(16):
        b = AF + 28*(hd % 2)
        nxt = hd + 1
        if nxt < 16 and nxt % 4 == 0: sync(nxt // 4)
        if nxt == 8:
            e('s_waitcnt lgkmcnt(0)')
            for q in range(7): e(f'v_add_u32 v{12+q}, {8*7168}, v{12+q}', f'v_add_u32 v{20+q}, {8*7168}, v{20+q}')
        e('s_waitcnt lgkmcnt(0)')
        rd = reads(nxt) if nxt < 16 else []
        for q in range(7):
            Cc = '0' if hd == 0 else vr(ACC+4*q, 4)
            e(f'v_mfma_f32_16x16x32_bf16 {vr(ACC+4*q,4)}, {vr(b+4*q,4)}, {vr(OF+4*hd,4)}, {Cc}')
            e(*rd[2*q:2*q+2])
    RS = 240
    e.c('STAMP 2')
    e('s_lshl_b32 s38, s28, 12', f's_add_u32 s38, s38, 114688')
    e(f'v_mul_u32_u24 v5, {RS}, v3', 'v_lshl_add_u32 v5, v4, 3, v5', 'v_add_u32 v5, s38, v5')
    e('s_nop 1')
    for q in range(7):
        e(f'v_cvt_pk_bf16_f32 v{64+2*q}, v{ACC+4*q}, v{ACC+4*q+1}', f'v_cvt_pk_bf16_f32 v{65+2*q}, v{ACC+4*q+2}, v{ACC+4*q+3}')
        e(f'ds_write_b64 v5, {vr(64+2*q,2)} offset:{32*q}')
    e('s_lshl_b32 s39, s31, 6', 's_lshl_b32 s40, s28, 4', 's_add_u32 s39, s39, s40', 's_mul_i32 s39, s39, 1792', 's_mul_i32 s40, s29, 896', 's_add_u32 s39, s39, s40', 's_add_u32 s39, s39, s33')
    for i in range(4):
        e(f'v_add_u32 v6, {64*i}, v0', 'v_mul_u32_u24 v7, 2341, v6', 'v_lshrrev_b32 v7, 15, v7')
        e('v_mul_u32_u24 v8, 14, v7', 'v_sub_u32 v8, v6, v8')
        e(f'v_mul_u32_u24 v9, {RS}, v7', 'v_lshl_add_u32 v9, v8, 4, v9', f'v_add_u32 v{12+i}, s38, v9')
        e('v_mul_u32_u24 v9, 1792, v7', f'v_lshl_add_u32 v{16+i}, v8, 4, v9')
    e('v_cmp_lt_u32 vcc, 31, v0', 'v_mov_b32 v9, 0x7fffff00', 'v_mov_b32 v8, s38', 'v_cndmask_b32 v19, v19, v9, vcc', 'v_cndmask_b32 v15, v15, v8, vcc')
    e('s_waitcnt lgkmcnt(0)')
    for i in range(4): e(f'ds_read_b128 {vr(80+4*i,4)}, v{12+i}')
    for i in range(4):
        e(f's_waitcnt lgkmcnt({3-i})', f'buffer_store_dwordx4 {vr(80+4*i,4)}, v{16+i}, s[20:23], s39 offen')
    e.label('L_k3_end')
    e('s_endpgm')
    return e.text(), dict(name='proj_kernel', vgpr=184, sgpr=64, grid=256, block=256, lds=114688+16384)

if __name__ == '__main__':
    assert all((s*2341)>>15 == s//14 for s in range(256))
    ks = [gen_k1(), gen_k2(), gen_k3()]
    assemble(ks, sys.argv[1] if len(sys.argv) > 1 else 'k.s')
```

```python
from gen2 import *
def empty(n):
    e=E(); e.label(f'nop{n}_kernel'); e('s_endpgm')
    return e.text(), dict(name=f'nop{n}_kernel', vgpr=8, sgpr=16, grid=256, block=256, lds=0)
ks=[gen_k1(), gen_k2(), gen_k3()]
assemble(ks, 'v_base.s')
assemble(ks+[empty(1)], 'v_plus1.s')
assemble(ks+[empty(1),empty(2),empty(3)], 'v_plus3.s')
assemble([empty(1)]+ks, 'v_pre1.s')
t,k=gen_k1()
import re
t2='\n'.join(l+' sc1' if 'buffer_store' in l else l for l in t.split('\n'))
assemble([(t2,k)]+ks[1:], 'v_sc1.s')
t3='\n'.join(l+' nt' if 'buffer_store' in l else l for l in t.split('\n'))
assemble([(t3,k)]+ks[1:], 'v_nt.s')
```

```python
from g8 import *

def gen_k1(st=' sc1', rot=True, ahead=2):
    e = E()
    CH = 32768; NS = 5; WVR = 2*CH
    e.label('qkv_kernel')
    e('s_cmp_ge_u32 s2, 256', 's_cbranch_scc1 L_k1_end')
    e('s_load_dwordx4 s[4:7], s[0:1], 0', 's_load_dwordx4 s[8:11], s[0:1], 24', 's_load_dwordx2 s[12:13], s[0:1], 64')
    e('v_lshrrev_b32 v1, 6, v0', 'v_and_b32 v0, 63, v0')
    e('s_and_b32 s32, s2, 7', 's_lshr_b32 s33, s2, 3')
    e('v_readfirstlane_b32 s28, v1')
    e('s_cmp_ge_u32 s33, 28', 's_cbranch_scc1 L_k1_pads')
    e('s_lshr_b32 s29, s32, 2')
    e('s_and_b32 s31, s32, 3', 's_lshl_b32 s31, s31, 2', 's_and_b32 s34, s33, 3', 's_add_u32 s31, s31, s34')
    e('s_lshr_b32 s30, s33, 2')
    e('s_cmp_ge_u32 s28, 4', 's_cbranch_scc1 L_k1_loader')
    e('v_and_b32 v20, 31, v0', 'v_lshrrev_b32 v21, 5, v0')
    e('v_bfe_u32 v22, v20, 1, 3', 'v_xor_b32 v22, v22, v21')
    e('s_lshl_b32 s36, s28, 12')
    e('v_lshlrev_b32 v23, 7, v20', 'v_add_u32 v23, s36, v23')
    for t in range(4):
        e(f'v_xor_b32 v24, {2*t}, v22', f'v_lshl_add_u32 v{10+t}, v24, 4, v23')
    e('v_bfe_u32 v24, v0, 2, 2', 'v_lshl_add_u32 v25, v21, 3, v24', 'v_lshlrev_b32 v25, 7, v25')
    e('v_lshrrev_b32 v24, 1, v24', 'v_lshl_add_u32 v25, v24, 6, v25')
    e('v_bfe_u32 v24, v0, 4, 1', 'v_lshl_add_u32 v25, v24, 5, v25', 'v_and_b32 v24, 3, v0', 'v_lshl_add_u32 v14, v24, 3, v25')
    e('v_xor_b32 v15, 64, v14', 'v_add_u32 v16, 0x10000, v14', 'v_add_u32 v17, 0x10000, v15', 'v_add_u32 v18, 0x20000, v14', 'v_add_u32 v19, 0x20000, v15')
    for t in range(4): e(f'v_add_u32 v{2+t}, 0x10000, v{10+t}', f'v_add_u32 v{6+t}, 0x20000, v{10+t}')
    e('s_lshl_b32 s36, s30, 4')
    e('v_and_b32 v30, 1, v0', 'v_lshl_add_u32 v31, v30, 1, v21', 'v_and_b32 v30, 30, v20')
    for ch in range(2):
        for k in range(2):
            e(f'v_add_u32 v24, {8*ch+4*k}, v31', 'v_add_u32 v24, s36, v24')
            e('v_mul_u32_u24 v25, 147, v24', 'v_lshrrev_b32 v25, 10, v25')
            e('v_mul_u32_u24 v26, 7, v25', 'v_sub_u32 v26, v24, v26')
            e('v_lshlrev_b32 v27, 8, v26', 'v_lshl_add_u32 v27, v30, 3, v27')
            e(f'v_lshl_add_u32 v{192+2*ch+k}, v25, 17, v27', f'v_lshl_add_u32 v{196+2*ch+k}, v25, 18, v27')
    e('s_mov_b32 s56, 0x55555555', 's_mov_b32 s57, 0x55555555', 's_mov_b32 s58, 0xaaaaaaaa', 's_mov_b32 s59, 0xaaaaaaaa')
    e('s_lshl_b32 s36, s30, 6')
    for ch in range(2):
        e(f'v_add_u32 v24, {32*ch}, v20', 'v_add_u32 v24, s36, v24', 'v_mul_u32_u24 v25, 2341, v24', 'v_lshrrev_b32 v25, 16, v25')
        e('v_mul_u32_u24 v26, 28, v25', 'v_sub_u32 v26, v24, v26')
        e('v_bfe_u32 v27, v26, 3, 1', 'v_xor_b32 v27, v27, v21', 'v_lshlrev_b32 v27, 6, v27', 'v_and_b32 v24, 3, v26', 'v_lshl_add_u32 v27, v24, 4, v27')
        e('v_lshrrev_b32 v26, 2, v26', 'v_lshl_add_u32 v27, v26, 7, v27', f'v_lshl_add_u32 v{200+ch}, v25, 18, v27')
    e('s_mul_i32 s50, s29, %d' % WS_PSTRIDE)
    e('s_lshl_b32 s51, s31, 2', 's_add_u32 s51, s51, s28')
    e('s_lshl_b32 s52, s51, 11', 's_add_u32 s52, s52, s50')
    e('s_lshl_b32 s54, s51, 12', 's_add_u32 s54, s54, s50', f's_add_u32 s54, s54, {WS_KV}')
    e(f's_mov_b32 s55, {f32(QSCALE)}', 's_cmp_eq_u32 s29, 0', 's_cselect_b32 s55, s55, 1.0')
    e('s_waitcnt lgkmcnt(0)')
    srd(e, 24, 12, 13, WS_BYTES)
    XF = 32; WF = 144
    accs = {0: (204, 220), 1: (236, 176-8+8), 2: (204, 220)}
    accs = {0: (204, 220), 1: (236, 176), 2: (204, 220)}
    def ldsref(base3, off):
        return base3[off >> 16], off & 0xffff
    def readsA(T):
        b = WF + 16*(T % 2); r = []
        j, t = divmod(T, 4)
        so = (j % NS)*CH
        v, o = ldsref((10+t, 2+t, 6+t), so)
        r.append(f'ds_read_b128 {vr(XF+4*T,4)}, v{v} offset:{o}')
        for L in range(2):
            for ch in range(2):
                for ee in range(2):
                    v, o = ldsref((14+ch, 16+ch, 18+ch), so + 16384 + L*8192 + t*2048 + ee*512)
                    r.append(f'ds_read_b64_tr_b16 {vr(b+8*L+4*ch+2*ee,2)}, v{v} offset:{o}')
        return r
    def readsB(n):
        ch, T = divmod(n, 28)
        b = WF + 4*(n % 4)
        return [f'ds_read_b64_tr_b16 {vr(b+2*ee,2)}, v{16+ch} offset:{WVR - 0x10000 + T*2048 + ee*512}' for ee in range(2)]
    def epi(ps, chs=(0, 1)):
        o = []
        for ch in chs:
            a = accs[ps][ch]
            if ps == 0: o += [f'v_mul_f32 v{a+r}, s55, v{a+r}' for r in range(16)]
            o += [f'v_cvt_pk_bf16_f32 v{a+k}, v{a+2*k}, v{a+2*k+1}' for k in range(8)]
            if ps < 2:
                dp = 'quad_perm:[1,0,3,2] row_mask:0xf bank_mask:0xf'
                o += ['s_mov_b64 vcc, s[56:57]', 's_nop 0']
                for k in range(2):
                    A = a+4*k; B = A+2; D = a+8+4*k
                    o += [f'v_cndmask_b32_dpp v{D}, v{B}, v{A}, vcc {dp}', f'v_cndmask_b32_dpp v{D+1}, v{B+1}, v{A+1}, vcc {dp}']
                o += ['s_mov_b64 vcc, s[58:59]', 's_nop 0']
                for k in range(2):
                    A = a+4*k; B = A+2; D = a+8+4*k
                    o += [f'v_cndmask_b32_dpp v{D+2}, v{A}, v{B}, vcc {dp}', f'v_cndmask_b32_dpp v{D+3}, v{A+1}, v{B+1}, vcc {dp}']
                ab, so = (192, 52) if ps == 0 else (196, 54)
                o += [f'buffer_store_dwordx4 {vr(a+8+4*k,4)}, v{ab+2*ch+k}, s[24:27], s{so} offen{st}' for k in range(2)]
            else:
                o += [f'buffer_store_dwordx4 {vr(a,4)}, v{200+ch}, s[24:27], s54 offen offset:2048{st}', f'buffer_store_dwordx4 {vr(a+4,4)}, v{200+ch}, s[24:27], s54 offen offset:3072{st}']
        return o
    vacc = (160, 204)
    def epiV(ch):
        a = vacc[ch]
        o = [f'v_cvt_pk_bf16_f32 v{a+k}, v{a+2*k}, v{a+2*k+1}' for k in range(8)]
        return o + [f'buffer_store_dwordx4 {vr(a,4)}, v{200+ch}, s[24:27], s54 offen offset:2048{st}', f'buffer_store_dwordx4 {vr(a+4,4)}, v{200+ch}, s[24:27], s54 offen offset:3072{st}']
    e.c('STAMP 0')
    e('s_barrier')
    e.c('STAMP 1')
    e(*readsA(0))
    for T in range(28):
        b = WF + 16*(T % 2)
        e('s_waitcnt lgkmcnt(0)')
        if T + 1 < 28:
            if (T+1) % 4 == 0: e('s_barrier')
            rd = readsA(T+1)
        else:
            e('s_barrier')
            rd = []
        k = 0
        for L in range(2):
            for ch in range(2):
                a = accs[L][ch]
                Cc = '0' if T == 0 else vr(a, 16)
                e(f'{MF32} {vr(a,16)}, {vr(b+8*L+4*ch,4)}, {vr(XF+4*T,4)}, {Cc}')
                e(*rd[3*k:3*k+3]); k += 1
    e.c('STAMP 2')
    VA = (160, 252-16)
    pend = epi(0) + epi(1)
    e(*readsB(0)); e(*readsB(1)); e(*readsB(2))
    vacc = (160, 204)
    for n in range(56):
        ch, T = divmod(n, 28)
        if n + 3 < 56:
            if n + 3 == 16: e('s_barrier')
        e(f's_waitcnt lgkmcnt({2*min(2, 55-n)})')
        a = vacc[ch]
        Cc = '0' if T == 0 else vr(a, 16)
        e(f'{MF32} {vr(a,16)}, {vr(XF+4*T,4)}, {vr(WF+4*(n%4),4)}, {Cc}')
        if n + 3 < 56: e(*readsB(n+3))
        if n == 30: pend += epiV(0)
        if n >= 3 and pend:
            e(*pend[:4]); pend = pend[4:]
    assert not pend
    e.c('STAMP 3')
    e('s_nop 7', 's_nop 3')
    e(*epiV(1))
    e('s_endpgm')
    e.label('L_k1_loader')
    e('s_sub_u32 s28, s28, 4')
    e('s_lshl_b32 s35, s31, 7', 's_lshl_b32 s36, s28, 5', 's_add_u32 s35, s35, s36')
    e('v_lshrrev_b32 v7, 3, v0', 'v_add_u32 v4, s35, v7', 'v_mul_u32_u24 v4, 896, v4')
    e('v_and_b32 v5, 7, v0', 'v_lshrrev_b32 v6, 4, v0', 'v_xor_b32 v8, v5, v6')
    e('v_lshl_add_u32 v2, v8, 4, v4', 'v_xor_b32 v8, 4, v8', 'v_lshl_add_u32 v3, v8, 4, v4')
    e('v_add_u32 v3, 7168, v3', 'v_add_u32 v9, 14336, v2', 'v_add_u32 v10, 14336, v3')
    e('s_lshl_b32 s36, s28, 4', 'v_add_u32 v7, s36, v7', 'v_mul_u32_u24 v7, 2688, v7', 'v_and_b32 v6, 1, v6', 'v_lshlrev_b32 v6, 2, v6', 'v_xor_b32 v5, v5, v6')
    e('v_lshl_add_u32 v4, v5, 4, v7', 's_lshl_b32 s37, s30, 7', 'v_add_u32 v4, s37, v4', 'v_add_u32 v5, 21504, v4')
    e('s_lshl_b32 s48, s28, 12', 's_lshl_b32 s49, s28, 11')
    if rot:
        e('s_add_u32 s38, s31, s30', 's_sub_u32 s39, s38, 14', 's_cselect_b32 s38, s38, s39', 's_sub_u32 s39, s38, 7', 's_cselect_b32 s38, s38, s39')
        e('s_sub_u32 s39, s38, 7', 's_cselect_b32 s38, s38, s39')
    else:
        e('s_mov_b32 s38, 0')
    for j in range(7):
        e(f's_lshl_b32 s{60+j}, s38, 7', f's_mul_i32 s{50+j}, s38, 172032', 's_add_u32 s38, s38, 1', 's_cmp_eq_u32 s38, 7', 's_cselect_b32 s38, 0, s38')
    e('s_waitcnt lgkmcnt(0)')
    e('s_cmp_eq_u32 s29, 0', 's_cselect_b32 s14, s4, s8', 's_cselect_b32 s15, s5, s9', 's_cselect_b32 s40, s6, s10', 's_cselect_b32 s41, s7, s11')
    srd(e, 16, 14, 15, 2048*896)
    srd(e, 20, 40, 41, 448*2688)
    q_ = []
    def X(j):
        for q, v in enumerate((2, 3, 9, 10)):
            e(f's_add_u32 m0, s48, {(j % NS)*CH + q*1024}', 's_nop 0', f'buffer_load_dwordx4 v{v}, s[16:19], s{60+j} offen lds'); q_.append(('C', j))
    def W(L, j):
        base = (j % NS)*CH + 16384 + L*8192 if L < 2 else WVR + j*8192
        for i in range(2):
            e(f's_add_u32 m0, s49, {base + i*1024 - L*896}', 's_nop 0', f'buffer_load_dwordx4 v{4+i}, s[20:23], s{50+j} offen offset:{L*896} lds'); q_.append(('C', j) if L < 2 else ('V', j))
    def Cc(j): X(j); W(0, j); W(1, j)
    def waitfor(tags):
        last = max(i for i, t in enumerate(q_) if t in tags)
        e(f's_waitcnt vmcnt({len(q_)-1-last})', 's_barrier')
    e.c('STAMP 0')
    for j in range(ahead): Cc(j)
    e.c('STAMP 1')
    nxt = ahead
    for k in range(7):
        waitfor({('C', k)})
        if k == 0: e.c('STAMP 2')
        if nxt < 7 and (nxt < NS or nxt - NS <= k - 1): Cc(nxt); nxt += 1
        if k == 0 and nxt < 7 and ahead < 3: Cc(nxt); nxt += 1
        if k == 4: [W(2, j) for j in range(4)]
        if k == 5: [W(2, j) for j in range(4, 7)]
    assert nxt == 7
    e.c('STAMP 3')
    waitfor({('V', j) for j in range(4)})
    waitfor({('V', j) for j in range(7)})
    e('s_endpgm')
    e.label('L_k1_pads')
    e('s_sub_u32 s33, s33, 28', 's_lshl_b32 s33, s33, 3', 's_add_u32 s33, s33, s32', 's_lshl_b32 s33, s33, 3', 's_add_u32 s33, s33, s28', 's_lshl_b32 s33, s33, 6')
    e('v_add_u32 v1, s33, v0')
    e('v_mov_b32 v8, 0', 'v_mov_b32 v12, 0x3f803f80', 'v_mov_b32 v13, 0x00003f80', 'v_mov_b32 v14, 0x3f803f80', 'v_mov_b32 v15, 0x00003f80')
    e('v_and_b32 v2, 15, v1', 'v_lshrrev_b32 v6, 4, v1', 'v_lshlrev_b32 v6, 12, v6', 'v_lshl_add_u32 v5, v2, 4, v6', 'v_add_u32 v5, 1792, v5')
    e('v_and_b32 v2, 3, v1', 'v_bfe_u32 v3, v1, 3, 1', 'v_and_b32 v4, 7, v1')
    e('v_lshl_add_u32 v6, v3, 10, v6', 'v_lshl_add_u32 v6, v4, 4, v6', 'v_add_u32 v6, %d, v6' % (2048 + 896))
    e('v_cmp_eq_u32 vcc, 0, v2', 's_nop 1')
    for k in range(4): e(f'v_cndmask_b32 v{16+k}, v8, v12, vcc')
    e('s_waitcnt lgkmcnt(0)')
    srd(e, 24, 12, 13, WS_BYTES)
    for p in range(2):
        e(f's_mov_b32 s42, {p*WS_PSTRIDE + WS_KV}', f'buffer_store_dwordx4 v[12:15], v5, s[24:27], s42 offen{st}', f'buffer_store_dwordx4 v[16:19], v6, s[24:27], s42 offen{st}')
    e.label('L_k1_end')
    e('s_endpgm')
    return e.text(), dict(name='qkv_kernel', vgpr=252, sgpr=80, grid=256, block=512, lds=163840)


def gen_k2(st=' sc1', wopf=False, mimic=False):
    e = E()
    SL = 32768; NSL = 4; BO = NSL*SL
    QO = 3*SL
    e.label('attn_kernel')
    e('s_cmp_ge_u32 s2, 256', 's_cbranch_scc1 L_k2_end')
    e('s_load_dwordx2 s[12:13], s[0:1], 64')
    if wopf: e('s_load_dwordx2 s[4:5], s[0:1], 16', 's_load_dwordx2 s[6:7], s[0:1], 40')
    e('v_lshrrev_b32 v1, 6, v0', 'v_and_b32 v0, 63, v0')
    e('s_and_b32 s3, s2, 7', 's_lshl_b32 s30, s3, 1', 's_bfe_u32 s3, s2, 0x10003', 's_add_u32 s30, s30, s3')
    e('v_readfirstlane_b32 s28, v1')
    e('s_lshr_b32 s31, s2, 4')
    e('v_lshlrev_b32 v2, 4, v0')
    e('s_and_b32 s32, s28, 3', 's_lshr_b32 s33, s28, 2')
    e('s_lshl_b32 s41, s30, 18', 's_lshl_b32 s35, s33, 17', 's_add_u32 s34, s41, s35', 's_lshl_b32 s35, s32, 12', 's_add_u32 s34, s34, s35', f's_add_u32 s34, s34, {WS_KV}')
    e('s_lshl_b32 s36, s28, 12')
    e('s_lshl_b32 s37, s30, 17', 's_lshl_b32 s38, s31, 13', 's_add_u32 s37, s37, s38')
    e(f's_add_u32 s39, s37, {WS_PSTRIDE + WS_Q}')
    e('s_lshl_b32 s38, s28, 10', 's_add_u32 s37, s37, s38')
    e('s_lshl_b32 s40, s31, 2', 's_add_u32 s40, s40, s28', 's_sub_u32 s40, s40, 3', 's_max_i32 s40, s40, 0', 's_min_u32 s40, s40, 63')
    e('s_lshl_b32 s40, s40, 12', 's_add_u32 s40, s40, s41', f's_add_u32 s40, s40, {WS_PSTRIDE + WS_KV}')
    e('s_add_u32 s39, s39, s36', 's_cmp_lt_u32 s28, 2', 's_cselect_b32 s40, s39, s40')
    QF = 8; S0, S1 = 16, 32; P = 48; O = 56; KB = 72; VB = 88; TT = 104
    vNxt, vLane, vK8, vKLane = 120, 121, 122, 123
    bQ, bKp, bKc, bV0, bV1, bS, bC, bT = 128, 132, 136, 140, 144, 148, 156, 164
    e('v_and_b32 v3, 31, v0', 'v_lshrrev_b32 v4, 5, v0', f'v_lshlrev_b32 v{vK8}, 3, v3', f'v_lshl_add_u32 v{vK8}, v4, 8, v{vK8}')
    e('v_bfe_u32 v5, v0, 3, 1', 'v_xor_b32 v5, v5, v4', 'v_lshlrev_b32 v5, 6, v5', 'v_and_b32 v6, 3, v0', 'v_lshl_add_u32 v5, v6, 4, v5', 'v_lshrrev_b32 v6, 2, v3', 'v_lshl_add_u32 v5, v6, 7, v5')
    e('s_lshl_b32 s41, s33, 14', f'v_add_u32 v{vLane}, s41, v5', f'v_add_u32 v{vKLane}, s41, v{vK8}', f'v_add_u32 v{vNxt}, 0x10000, v{vLane}')
    e('v_and_b32 v3, 15, v0', 'v_lshrrev_b32 v4, 4, v0', 'v_lshrrev_b32 v5, 1, v4', 'v_and_b32 v6, 1, v4')
    e('v_lshlrev_b32 v7, 10, v5', 'v_lshl_add_u32 v7, v6, 8, v7', 'v_lshl_add_u32 v7, v3, 3, v7')
    e(f'v_lshlrev_b32 v{bT+5}, 9, v6', f'v_lshl_add_u32 v{bT+5}, v3, 4, v{bT+5}', f'v_lshl_add_u32 v{bT+5}, v5, 10, v{bT+5}')
    e('s_lshr_b32 s43, s28, 1', 's_and_b32 s44, s28, 1', 's_add_u32 s45, s28, 1', 's_and_b32 s46, s45, 1', 's_lshr_b32 s45, s45, 1')
    e('s_lshl_b32 s47, s43, 11', 's_lshl_b32 s48, s44, 7', 's_add_u32 s47, s47, s48', f's_add_u32 s47, s47, {BO}')
    e('s_lshl_b32 s49, s43, 12', f's_add_u32 s49, s49, {BO + 8192 + 4096}')
    e('s_lshl_b32 s50, s45, 12', f's_add_u32 s50, s50, {BO + 8192}')
    e('s_add_u32 s51, s49, s48', 's_lshl_b32 s52, s46, 7', 's_add_u32 s52, s52, s50')
    e('s_lshl_b32 s53, s44, 10', 's_add_u32 s53, s53, s49', 's_lshl_b32 s54, s46, 10', 's_add_u32 s54, s54, s50')
    e('s_waitcnt lgkmcnt(0)')
    e.c('STAMP 0')
    srd(e, 24, 12, 13, WS_BYTES)
    def dma(soff, m0_expr, rng=range(4)):
        return [m0_expr, 's_nop 0'] + [f'buffer_load_dwordx4 v2, s[24:27], s{soff} offen offset:{1024*i} lds' for i in rng]
    e(*dma(37, f's_add_u32 m0, s38, {QO}', range(1)))
    e(*dma(34, 's_mov_b32 m0, s36'))
    e('s_add_u32 s61, s34, 16384')
    e(*dma(61, f's_add_u32 m0, s36, {SL}'))
    e(f'v_add_u32 v{bT}, s47, v7', f'v_add_u32 v{bT+1}, s51, v7', f'v_add_u32 v{bT+2}, s52, v7')
    e('v_bfe_u32 v7, v0, 3, 1', 'v_xor_b32 v7, v7, v6', 'v_lshlrev_b32 v7, 6, v7', 'v_and_b32 v6, 3, v0', 'v_lshl_add_u32 v7, v6, 4, v7', 'v_lshrrev_b32 v6, 2, v3', 'v_lshl_add_u32 v7, v6, 7, v7', 'v_lshl_add_u32 v7, v5, 3, v7')
    e(f'v_add_u32 v{bT+3}, s53, v7', f'v_add_u32 v{bT+4}, s54, v7')
    e('v_mov_b32 v7, 0xf149f2ca', 'v_mov_b32 v1, 0')
    e('s_or_b32 s55, s31, s28')
    for r in range(8):
        m = 0
        for l in range(64):
            d = (l & 15) - 4*(l >> 4) - (r % 4) + (16 if r < 4 else 0)
            if 0 <= d <= 14 and d % 2 == 0: m |= 1 << l
        e(f's_mov_b32 s{42 if r%2 else 62}, 0x{m & 0xffffffff:08x}', f's_mov_b32 s{43 if r%2 else 63}, 0x{m >> 32:08x}') if False else None
        sp = 62 + 2*(r % 2)
        e(f's_mov_b32 s{sp}, 0x{m & 0xffffffff:08x}', f's_mov_b32 s{sp+1}, 0x{m >> 32:08x}')
        if r < 4: e('s_cmp_eq_u32 s55, 0', f's_cselect_b64 s[{sp}:{sp+1}], 0, s[{sp}:{sp+1}]')
        e(f'v_cndmask_b32 v{bC+r}, v7, v1, s[{sp}:{sp+1}]')
    e('s_mov_b32 s70, 0', 's_mov_b32 s71, 0xffff0000', 's_mov_b32 s68, 0', 's_mov_b32 s69, -1')
    e(f's_mov_b32 s57, {f32(28 ** -0.5 * 1.4426950408889634)}', 's_mov_b32 s59, 0xffff0000')
    e('s_lshl_b32 s47, s31, 2', 's_add_u32 s47, s47, s43', 's_lshl_b32 s47, s47, 15', 's_lshl_b32 s48, s30, 11', 's_add_u32 s47, s47, s48', 's_lshl_b32 s48, s44, 8', 's_add_u32 s47, s47, s48', f's_add_u32 s47, s47, {WS_O + 0x200000}')
    e('s_mov_b32 s60, 0', 's_add_u32 s65, s34, 32768')
    e('s_lshl_b32 s41, s32, 11', f's_add_u32 s41, s41, {QO}', f'v_add_u32 v{bT+6}, s41, v{vK8}')
    def zero_state():
        z = [f'v_mov_b32 v{O+r}, 0' for r in range(16)]
        for r in range(4): z += [f'v_mov_b32 v{P+4+r}, 0', f'v_mov_b32 v{TT+12+r}, 0', f'v_mov_b32 v{VB+12+r}, 0']
        return z
    e(*zero_state())
    T = bT + 8; a, b2 = T+4, T+5
    Bp = [[], [], [], []]
    Bp[0] = [f'ds_read2st64_b64 {vr(bQ,4)}, v{bT} offset0:0 offset1:1', f'ds_read2st64_b64 {vr(bKp,4)}, v{bT+2} offset0:0 offset1:1', f'ds_read2st64_b64 {vr(bKc,4)}, v{bT+1} offset0:0 offset1:1',
      f'ds_read_b64 {vr(bV0,2)}, v{bT+4} offset:2048', f'ds_read_b64 {vr(bV0+2,2)}, v{bT+3} offset:2048', f'ds_read_b64 {vr(bV1,2)}, v{bT+4} offset:2560', f'ds_read_b64 {vr(bV1+2,2)}, v{bT+3} offset:2560']
    b = [(0, f'v_cndmask_b32 v{bQ+2}, v{bQ+2}, v1, s[70:71]'), (0, f'v_cndmask_b32 v{bQ+3}, v{bQ+3}, v1, s[70:71]')]
    b += [(2, f'{MF16} {vr(bS,4)}, {vr(bKp,4)}, {vr(bQ,4)}, {vr(bC,4)}'), (2, f'{MF16} {vr(bS+4,4)}, {vr(bKc,4)}, {vr(bQ,4)}, {vr(bC+4,4)}')]
    b += [(8, f'v_max3_f32 v{a}, v{bS}, v{bS+1}, v{bS+2}'), (0, f'v_max3_f32 v{b2}, v{bS+3}, v{bS+4}, v{bS+5}'), (0, f'v_max3_f32 v{a}, v{a}, v{bS+6}, v{bS+7}'), (0, f'v_max_f32 v{a}, v{a}, v{b2}')]
    b += [(0, f'v_mov_b32 v{b2}, v{a}'), (2, f'v_permlane32_swap_b32 v{a}, v{b2}'), (0, f'v_max_f32 v{a}, v{a}, v{b2}')]
    b += [(0, f'v_mov_b32 v{b2}, v{a}'), (2, f'v_permlane16_swap_b32 v{a}, v{b2}'), (0, f'v_max_f32 v{a}, v{a}, v{b2}')]
    b += [(0, f'v_mul_f32 v{a}, s57, v{a}')]
    Bp[1] = b
    b = [(0, f'v_fma_f32 v{bS+r}, v{bS+r}, s57, -v{a}') for r in range(8)]
    b += [(0, f'v_exp_f32 v{bS+r}, v{bS+r}') for r in range(8)]
    b += [(0, f'v_cvt_pk_bf16_f32 v{T+k}, v{bS+2*k}, v{bS+2*k+1}') for k in range(4)]
    b += [(2, f'{MF16} {vr(bS+4,4)}, {vr(bV1,4)}, {vr(T,4)}, 0'), (2, f'{MF16} {vr(bS,4)}, {vr(bV0,4)}, {vr(T,4)}, 0')]
    Bp[2] = b
    b = [(8, f'v_mov_b32 v{a}, v{bS+4}'), (0, f'v_mov_b32 v{b2}, v{bS+4}'), (2, f'v_permlane32_swap_b32 v{b2}, v{a}')]
    b += [(0, f'v_mov_b32 v{b2}, v{a}'), (2, f'v_permlane16_swap_b32 v{b2}, v{a}'), (0, f'v_rcp_f32 v{a}, v{a}')]
    b += [(1 if r == 0 else 0, f'v_mul_f32 v{bS+r}, v{a}, v{bS+r}') for r in range(8)]
    b += [(0, f'v_cvt_pk_bf16_f32 v{T+k}, v{bS+2*k}, v{bS+2*k+1}') for k in range(4)]
    b += [(0, f'v_cndmask_b32 v{T+2}, v{T+2}, v1, s[70:71]'), (0, f'v_cndmask_b32 v{T+3}, v{T+3}, v1, s[70:71]')]
    b += [(2, f'v_permlane32_swap_b32 v{T}, v{T+2}'), (0, f'v_permlane32_swap_b32 v{T+1}, v{T+3}'), (0, f'buffer_store_dwordx4 {vr(T,4)}, v{bT+5}, s[24:27], s47 offen{st}')]
    Bp[3] = b
    Bp[0] = [(0, x) for x in Bp[0]]
    def weave(host, guest):
        out = []; hi = 0; n = len(guest)
        need = sum(g for g, _ in guest)
        spare = len(host) - need
        assert spare >= 0, (len(host), need)
        acc = 0.0
        for k, (g, ins) in enumerate(guest):
            acc += spare / n
            take = g + int(acc); acc -= int(acc)
            out += host[hi:hi+take]; hi += take
            out.append(ins)
        return out + host[hi:]
    e('s_waitcnt vmcnt(4)', 's_barrier')
    e.c('STAMP 1')
    e(f'ds_read2st64_b64 {vr(QF,4)}, v{bT+6} offset0:0 offset1:1', f'ds_read2st64_b64 {vr(QF+4,4)}, v{bT+6} offset0:2 offset1:3')
    e(f'ds_read2st64_b64 {vr(KB,4)}, v{vK8} offset0:0 offset1:1', f'ds_read2st64_b64 {vr(KB+4,4)}, v{vK8} offset0:2 offset1:3')
    e(*dma(65, f's_add_u32 m0, s36, {2*SL}', range(2)))
    e('s_waitcnt lgkmcnt(1)')
    e(f'v_cndmask_b32 v{QF+6}, v{QF+6}, v1, s[68:69]', f'v_cndmask_b32 v{QF+7}, v{QF+7}, v1, s[68:69]')
    e(f'{MF32} {vr(S0,16)}, {vr(KB,4)}, {vr(QF,4)}, 0')
    e('s_waitcnt lgkmcnt(0)')
    e(f'{MF32} {vr(S0,16)}, {vr(KB+4,4)}, {vr(QF+4,4)}, {vr(S0,16)}')
    e('s_nop 7', 's_nop 3')
    e(f'v_max3_f32 v3, v{S0}, v{S0+1}, v{S0+2}', f'v_max3_f32 v4, v{S0+3}, v{S0+4}, v{S0+5}')
    e(f'v_max3_f32 v3, v3, v{S0+6}, v{S0+7}', f'v_max3_f32 v4, v4, v{S0+8}, v{S0+9}', f'v_max3_f32 v3, v3, v{S0+10}, v{S0+11}', f'v_max3_f32 v4, v4, v{S0+12}, v{S0+13}')
    e(f'v_max3_f32 v3, v3, v{S0+14}, v{S0+15}', 'v_max_f32 v3, v3, v4')
    e('v_mov_b32 v4, v3', 's_nop 1', 'v_permlane32_swap_b32 v3, v4', 'v_max_f32 v3, v3, v4', f'v_add_f32 v3, {f32(OFFM)}, v3')
    e.label('L_k2_setmax')
    e(f'ds_read2st64_b64 {vr(KB,4)}, v{vKLane} offset0:0 offset1:1', f'ds_read2st64_b64 {vr(KB+4,4)}, v{vKLane} offset0:2 offset1:3')
    e('v_sub_f32 v3, 0, v3', 'v_and_b32 v4, s59, v3', 'v_sub_f32 v3, v3, v4', 'v_and_b32 v5, s59, v3', 'v_sub_f32 v3, v3, v5')
    e(f'ds_read2st64_b64 {vr(KB+8,4)}, v{vKLane} offset0:8 offset1:9', f'ds_read2st64_b64 {vr(KB+12,4)}, v{vKLane} offset0:10 offset1:11')
    e('v_lshrrev_b32 v4, 16, v4', 'v_or_b32 v4, v4, v5', 'v_lshrrev_b32 v3, 16, v3')
    e(f'ds_read_b128 {vr(VB,4)}, v{vLane} offset:2048', f'ds_read_b128 {vr(VB+4,4)}, v{vLane} offset:3072')
    e(f'v_cndmask_b32 v{QF+6}, v{QF+6}, v4, s[68:69]', f'v_cndmask_b32 v{QF+7}, v{QF+7}, v3, s[68:69]')
    e('s_waitcnt lgkmcnt(4)')
    e(f'{MF32} {vr(S0,16)}, {vr(KB,4)}, {vr(QF,4)}, 0')
    e(f'{MF32} {vr(S0,16)}, {vr(KB+4,4)}, {vr(QF+4,4)}, {vr(S0,16)}')
    e('s_nop 7')
    e.c('STAMP 2')
    vq = ['KV1']*4 + ['KV2']*2
    BST = 3
    def tile_addr(g): return ((g // 4) % NSL)*SL + (g % 4)*4096
    for s in range(8):
        for i in range(4):
            g = 4*s + i
            Sc = S0 if i % 2 == 0 else S1
            Sn = S1 if i % 2 == 0 else S0
            Kn = KB + 8*((i+1) % 2); Kl = KB + 8*(i % 2)
            Vc = VB + 8*(i % 2); Vl = VB + 8*((i+1) % 2)
            def ex(r0): return [f'v_exp_f32 v{TT+r}, v{Sc+r}' for r in range(r0, r0+4)]
            def cv(r0): return [f'v_cvt_pk_bf16_f32 v{P+r0//2}, v{TT+r0}, v{TT+r0+1}', f'v_cvt_pk_bf16_f32 v{P+r0//2+1}, v{TT+r0+2}, v{TT+r0+3}']
            if i == 2 and s < 7:
                need = {f'KV{s+1}'} | ({'B'} if s == BST-1 else set())
                last = max(k for k, t in enumerate(vq) if t in need)
                e(f's_waitcnt vmcnt({len(vq)-1-last}) lgkmcnt(0)', 's_barrier')
                vq = vq[last+1:]
                if s + 3 < 8: e('s_add_u32 s65, s65, 16384', f's_add_u32 m0, s36, {((s+3) % NSL)*SL}')
            else:
                e('s_waitcnt lgkmcnt(0)')
            t = []
            if g + 1 < 32: t += [f'{MF32} {vr(Sn,16)}, {vr(Kn,4)}, {vr(QF,4)}, 0']
            if g + 2 < 32:
                ko = tile_addr(g+2)//512
                t += [f'ds_read2st64_b64 {vr(Kl,4)}, v{vKLane} offset0:{ko} offset1:{ko+1}', f'ds_read2st64_b64 {vr(Kl+4,4)}, v{vKLane} offset0:{ko+2} offset1:{ko+3}']
            t += cv(12) + ex(0)
            t += [f'{MF32} {vr(O,16)}, {vr(Vl+4,4)}, {vr(P+4,4)}, {vr(O,16)}']
            if g + 1 < 32:
                vo = tile_addr(g+1); va = vLane if vo < 65536 else vNxt; vo %= 65536
                t += [f'ds_read_b128 {vr(Vl,4)}, v{va} offset:{vo+2048}', f'ds_read_b128 {vr(Vl+4,4)}, v{va} offset:{vo+3072}']
            t += cv(0) + ex(4)
            if g + 1 < 32: t += [f'{MF32} {vr(Sn,16)}, {vr(Kn+4,4)}, {vr(QF+4,4)}, {vr(Sn,16)}']
            grp = s + 2 if i < 2 else s + 3
            if grp < 8:
                t += [f'buffer_load_dwordx4 v2, s[24:27], s65 offen offset:{1024*((i+2)%4)} lds']; vq.append(f'KV{grp}')
            t += cv(4) + ex(8)
            t += [f'{MF32} {vr(O,16)}, {vr(Vc,4)}, {vr(P,4)}, {vr(O,16)}']
            if s == 0 and i == 1:
                t += dma(40, f's_add_u32 m0, s36, {BO}'); vq += ['B']*4
            t += cv(8) + ex(12)
            if s == BST:
                t = weave(t, Bp[i])
                if i == 3: vq += ['st']
            e(*t)
            if wopf and s == 4 and i == 0:
                e('s_cmp_lt_u32 s2, 98', 's_cselect_b32 s41, s28, 1', 's_cmp_lg_u32 s41, 0', 's_cbranch_scc1 L_k2_nopf')
                e('s_cmp_lt_u32 s2, 49', 's_cselect_b32 s16, s4, s6', 's_cselect_b32 s17, s5, s7', f's_mov_b32 s18, {448*896}', 's_mov_b32 s19, 0x00020000')
                e('s_sub_u32 s41, s2, 49', 's_cselect_b32 s41, s2, s41')
                e('s_lshl_b32 s41, s41, 13', 'v_lshlrev_b32 v3, 7, v0', 'buffer_load_dword v127, v3, s[16:19], s41 offen')
                e.label('L_k2_nopf')
    e.c('STAMP 3')
    X = 0
    e('s_lshl_b32 s41, s32, 12')
    e(f'v_cvt_pk_bf16_f32 v{P+6}, v{TT+12}, v{TT+13}', f'v_cvt_pk_bf16_f32 v{P+7}, v{TT+14}, v{TT+15}')
    e('s_lshl_b32 s42, s33, 11', 's_add_u32 s43, s41, s42')
    e(f'{MF32} {vr(O,16)}, {vr(VB+12,4)}, {vr(P+4,4)}, {vr(O,16)}')
    e('s_xor_b32 s42, s42, 2048', 's_add_u32 s44, s41, s42')
    e('v_add_u32 v3, s43, v2', 'v_add_u32 v4, s44, v2')
    e('s_lshl_b32 s41, s28, 8', f's_add_u32 s41, s41, {X+16384}', 's_xor_b32 s42, s41, 1024')
    e('v_lshlrev_b32 v5, 2, v0', 'v_add_u32 v6, s42, v5', 'v_add_u32 v5, s41, v5')
    e(f'v_mov_b32 v7, {X+20480}')
    e('s_cmp_eq_u32 s33, 0', 's_cbranch_scc1 L_k2_e0')
    e(f'ds_write_b128 v3, {vr(O,4)}', f'ds_write_b128 v3, {vr(O+4,4)} offset:1024', f'ds_write_b32 v5, v{O+12}')
    for r in range(8): e(f'v_mov_b32 v{O+r}, v{O+8+r}')
    e('s_branch L_k2_e1')
    e.label('L_k2_e0')
    e(f'ds_write_b128 v3, {vr(O+8,4)}', f'ds_write_b128 v3, {vr(O+12,4)} offset:1024', f'ds_write_b32 v5, v{O+12}', 'ds_write_b32 v7, v1')
    e.label('L_k2_e1')
    e('s_waitcnt lgkmcnt(0)', 's_barrier')
    e(f'ds_read_b32 v{S0+8}, v6', f'ds_read_b128 {vr(S0,4)}, v4', f'ds_read_b128 {vr(S0+4,4)}, v4 offset:1024')
    e('s_lshl_b32 s41, s31, 17', 's_lshl_b32 s42, s32, 15', 's_add_u32 s41, s41, s42', 's_lshl_b32 s42, s30, 11', 's_add_u32 s41, s41, s42', 's_lshl_b32 s42, s33, 10', 's_add_u32 s41, s41, s42', f's_add_u32 s41, s41, {WS_O}')
    e('s_cmp_eq_u32 s33, 1', 's_cselect_b64 s[44:45], s[68:69], 0', 's_mov_b32 s42, 0x7e800000')
    e('s_waitcnt lgkmcnt(2)')
    e(f'v_add_f32 v5, v{O+12}, v{S0+8}', 'v_mov_b32 v6, v5')
    e('s_waitcnt lgkmcnt(0)')
    e(f'v_add_f32 v{O}, v{O}, v{S0}')
    e('v_permlane32_swap_b32 v6, v5')
    for r in range(1, 8): e(f'v_add_f32 v{O+r}, v{O+r}, v{S0+r}')
    e('v_rcp_f32 v4, v5', 'v_cmp_ngt_f32 vcc, s42, v5')
    e(f'v_mul_f32 v6, 0, v{O}', f'v_mul_f32 v3, 0, v{O+1}')
    for r in range(2, 8, 2): e(f'v_fma_f32 v6, v{O+r}, 0, v6', f'v_fma_f32 v3, v{O+r+1}, 0, v3')
    for r in range(8): e(f'v_mul_f32 v{O+r}, v4, v{O+r}')
    for k in range(4): e(f'v_cvt_pk_bf16_f32 v{P+k}, v{O+2*k}, v{O+2*k+1}')
    e(f'v_cndmask_b32 v{P+2}, v{P+2}, v1, s[44:45]', f'v_cndmask_b32 v{P+3}, v{P+3}, v1, s[44:45]')
    e('v_cmp_u_f32 s[46:47], v6, v3')
    e(f'buffer_store_dwordx4 {vr(P,4)}, v2, s[24:27], s41 offen{st}')
    e('s_or_b64 vcc, vcc, s[46:47]', 's_cmp_eq_u32 s60, 1', 's_cselect_b64 vcc, 0, vcc')
    e('s_cmp_eq_u64 vcc, 0', 's_cbranch_scc1 L_k2_ok')
    e('v_mov_b32 v6, 1', 'ds_write_b32 v7, v6', 's_waitcnt lgkmcnt(0)')
    e.label('L_k2_ok')
    e('s_barrier')
    e('ds_read_b32 v4, v7', 's_waitcnt lgkmcnt(0)', 'v_readfirstlane_b32 s41, v4', 's_nop 3')
    e('s_cmp_eq_u32 s41, 0', 's_cbranch_scc1 L_k2_end')
    e('s_waitcnt vmcnt(0)', 's_barrier')
    e('s_mov_b32 s60, 1', 's_add_u32 s65, s34, 32768')
    e(*dma(34, 's_mov_b32 m0, s36'))
    e(*dma(61, f's_add_u32 m0, s36, {SL}'))
    e(*dma(65, f's_add_u32 m0, s36, {2*SL}', range(2)))
    e('s_lshl_b32 s41, s30, 18', f's_add_u32 s41, s41, {WS_KV}', 's_mov_b32 s42, 0')
    e(f'v_cndmask_b32 v{QF+6}, v{QF+6}, v1, s[68:69]', f'v_cndmask_b32 v{QF+7}, v{QF+7}, v1, s[68:69]')
    e('v_mov_b32 v3, 0xff800000')
    e(*zero_state())
    e.label('L_k2_maxloop')
    for k in range(4): e(f'buffer_load_dwordx2 {vr(KB+2*k,2)}, v{vK8}, s[24:27], s41 offen offset:{512*k}')
    e('s_waitcnt vmcnt(0)')
    e(f'{MF32} {vr(S0,16)}, {vr(KB,4)}, {vr(QF,4)}, 0')
    e(f'{MF32} {vr(S0,16)}, {vr(KB+4,4)}, {vr(QF+4,4)}, {vr(S0,16)}')
    e('s_nop 7', 's_nop 3')
    for k in range(0, 16, 2): e(f'v_max3_f32 v3, v3, v{S0+k}, v{S0+k+1}')
    e('s_add_u32 s41, s41, 4096', 's_add_u32 s42, s42, 1', 's_cmp_lt_u32 s42, 64', 's_cbranch_scc1 L_k2_maxloop')
    e('v_mov_b32 v4, v3', 's_nop 1', 'v_permlane32_swap_b32 v3, v4', 'v_max_f32 v3, v3, v4')
    e('s_barrier')
    e('s_branch L_k2_setmax')
    e.label('L_k2_end')
    e('s_endpgm')
    return e.text(), dict(name='attn_kernel', vgpr=184, sgpr=72, grid=256, block=512, lds=BO+32768)

if __name__ == '__main__':
    from g3 import gen_k3
    ks = [gen_k1(), gen_k2(), gen_k3(st=' sc1')]
    assemble(ks, sys.argv[1] if len(sys.argv) > 1 else 'k.s')
```

```python
from g11 import *

def gen_k2(st=' sc1', prio=0):
    e = E()
    SL = 32768; NSL = 4; BO = NSL*SL; QO = 3*SL
    e.label('attn_kernel')
    e('s_cmp_ge_u32 s2, 256', 's_cbranch_scc1 L_k2_end')
    e('s_load_dwordx2 s[12:13], s[0:1], 64')
    e('v_lshrrev_b32 v1, 6, v0', 'v_and_b32 v0, 63, v0')
    e('s_and_b32 s3, s2, 7', 's_lshl_b32 s30, s3, 1', 's_bfe_u32 s3, s2, 0x10003', 's_add_u32 s30, s30, s3')
    e('v_readfirstlane_b32 s28, v1')
    e('s_lshr_b32 s31, s2, 4')
    e('v_lshlrev_b32 v2, 4, v0', 's_mov_b32 s60, 0', 'v_mov_b32 v1, 0')
    X = 0
    e(f'v_mov_b32 v7, {X+20480}')
    e('s_cmp_ge_u32 s28, 8', 's_cbranch_scc1 L_k2_aux')
    e('s_and_b32 s32, s28, 3', 's_lshr_b32 s33, s28, 2')
    QF = 8; S0, S1 = 16, 32; P = 48; O = 56; KB = 72; VB = 88; TT = 104
    vNxt, vLane, vK8, vKLane, vQ = 120, 121, 122, 123, 124
    e('v_and_b32 v3, 31, v0', 'v_lshrrev_b32 v4, 5, v0', f'v_lshlrev_b32 v{vK8}, 3, v3', f'v_lshl_add_u32 v{vK8}, v4, 8, v{vK8}')
    e('v_bfe_u32 v5, v0, 3, 1', 'v_xor_b32 v5, v5, v4', 'v_lshlrev_b32 v5, 6, v5', 'v_and_b32 v6, 3, v0', 'v_lshl_add_u32 v5, v6, 4, v5', 'v_lshrrev_b32 v6, 2, v3', 'v_lshl_add_u32 v5, v6, 7, v5')
    e('s_lshl_b32 s41, s33, 14', f'v_add_u32 v{vLane}, s41, v5', f'v_add_u32 v{vKLane}, s41, v{vK8}', f'v_add_u32 v{vNxt}, 0x10000, v{vLane}')
    e('s_lshl_b32 s41, s32, 11', f's_add_u32 s41, s41, {QO}', f'v_add_u32 v{vQ}, s41, v{vK8}')
    e('s_mov_b32 s68, 0', 's_mov_b32 s69, -1', 's_mov_b32 s59, 0xffff0000')
    def zero_state():
        z = [f'v_mov_b32 v{O+r}, 0' for r in range(16)]
        for r in range(4): z += [f'v_mov_b32 v{P+4+r}, 0', f'v_mov_b32 v{TT+12+r}, 0', f'v_mov_b32 v{VB+12+r}, 0']
        return z
    e(*zero_state())
    e('s_waitcnt lgkmcnt(0)')
    srd(e, 24, 12, 13, WS_BYTES)
    if prio: e(f's_setprio {prio}')
    e.c('STAMP 0')
    e('s_barrier')
    e.c('STAMP 1')
    e(f'ds_read2st64_b64 {vr(QF,4)}, v{vQ} offset0:0 offset1:1', f'ds_read2st64_b64 {vr(TT,4)}, v{vK8} offset0:0 offset1:1')
    e(f'ds_read2st64_b64 {vr(QF+4,4)}, v{vQ} offset0:2 offset1:3', f'ds_read2st64_b64 {vr(TT+4,4)}, v{vK8} offset0:2 offset1:3')
    e('s_waitcnt lgkmcnt(2)')
    e(f'{MF32} {vr(S1,16)}, {vr(TT,4)}, {vr(QF,4)}, 0')
    e(f'ds_read2st64_b64 {vr(KB,4)}, v{vKLane} offset0:0 offset1:1', f'ds_read2st64_b64 {vr(KB+4,4)}, v{vKLane} offset0:2 offset1:3')
    e('s_waitcnt lgkmcnt(2)')
    e(f'v_cndmask_b32 v{QF+6}, v{QF+6}, v1, s[68:69]', f'v_cndmask_b32 v{QF+7}, v{QF+7}, v1, s[68:69]', 's_nop 1')
    e(f'{MF32} {vr(S1,16)}, {vr(TT+4,4)}, {vr(QF+4,4)}, {vr(S1,16)}')
    e('s_waitcnt lgkmcnt(0)')
    e(f'{MF32} {vr(S0,16)}, {vr(KB,4)}, {vr(QF,4)}, 0')
    e(f'{MF32} {vr(S0,16)}, {vr(KB+4,4)}, {vr(QF+4,4)}, {vr(S0,16)}')
    e(f'ds_read2st64_b64 {vr(KB+8,4)}, v{vKLane} offset0:8 offset1:9', f'ds_read2st64_b64 {vr(KB+12,4)}, v{vKLane} offset0:10 offset1:11')
    e(f'ds_read_b128 {vr(VB,4)}, v{vLane} offset:2048', f'ds_read_b128 {vr(VB+4,4)}, v{vLane} offset:3072')
    e('s_nop 4')
    e(f'v_max3_f32 v3, v{S1}, v{S1+1}, v{S1+2}', f'v_max3_f32 v4, v{S1+3}, v{S1+4}, v{S1+5}')
    e(f'v_max3_f32 v3, v3, v{S1+6}, v{S1+7}', f'v_max3_f32 v4, v4, v{S1+8}, v{S1+9}', f'v_max3_f32 v3, v3, v{S1+10}, v{S1+11}', f'v_max3_f32 v4, v4, v{S1+12}, v{S1+13}')
    e(f'v_max3_f32 v3, v3, v{S1+14}, v{S1+15}', 'v_max_f32 v3, v3, v4')
    e('v_mov_b32 v4, v3', 's_nop 1', 'v_permlane32_swap_b32 v3, v4', 'v_max_f32 v3, v3, v4', f'v_add_f32 v3, {f32(OFFM)}, v3')
    e.label('L_k2_setmax')
    e('v_sub_f32 v6, 0, v3', 'v_and_b32 v4, s59, v6', 'v_sub_f32 v6, v6, v4', 'v_and_b32 v5, s59, v6', 'v_sub_f32 v6, v6, v5')
    e('v_lshrrev_b32 v4, 16, v4', 'v_or_b32 v4, v4, v5', 'v_lshrrev_b32 v6, 16, v6')
    e(f'v_cndmask_b32 v{QF+6}, v{QF+6}, v4, s[68:69]', f'v_cndmask_b32 v{QF+7}, v{QF+7}, v6, s[68:69]')
    for r in range(16): e(f'v_sub_f32 v{S0+r}, v{S0+r}, v3')
    e.c('STAMP 2')
    def tile_addr(g): return ((g // 4) % NSL)*SL + (g % 4)*4096
    for s in range(8):
        for i in range(4):
            g = 4*s + i
            Sc = S0 if i % 2 == 0 else S1
            Sn = S1 if i % 2 == 0 else S0
            Kn = KB + 8*((i+1) % 2); Kl = KB + 8*(i % 2)
            Vc = VB + 8*(i % 2); Vl = VB + 8*((i+1) % 2)
            def ex(r0): return [f'v_exp_f32 v{TT+r}, v{Sc+r}' for r in range(r0, r0+4)]
            def cv(r0): return [f'v_cvt_pk_bf16_f32 v{P+r0//2}, v{TT+r0}, v{TT+r0+1}', f'v_cvt_pk_bf16_f32 v{P+r0//2+1}, v{TT+r0+2}, v{TT+r0+3}']
            e('s_waitcnt lgkmcnt(0)')
            if i == 2 and s < 7: e('s_barrier')
            t = []
            if g + 1 < 32: t += [f'{MF32} {vr(Sn,16)}, {vr(Kn,4)}, {vr(QF,4)}, 0']
            if g + 2 < 32:
                ko = tile_addr(g+2)//512
                t += [f'ds_read2st64_b64 {vr(Kl,4)}, v{vKLane} offset0:{ko} offset1:{ko+1}', f'ds_read2st64_b64 {vr(Kl+4,4)}, v{vKLane} offset0:{ko+2} offset1:{ko+3}']
            t += cv(12) + ex(0)
            t += [f'{MF32} {vr(O,16)}, {vr(Vl+4,4)}, {vr(P+4,4)}, {vr(O,16)}']
            if g + 1 < 32:
                vo = tile_addr(g+1); va = vLane if vo < 65536 else vNxt; vo %= 65536
                t += [f'ds_read_b128 {vr(Vl,4)}, v{va} offset:{vo+2048}', f'ds_read_b128 {vr(Vl+4,4)}, v{va} offset:{vo+3072}']
            t += cv(0) + ex(4)
            if g + 1 < 32: t += [f'{MF32} {vr(Sn,16)}, {vr(Kn+4,4)}, {vr(QF+4,4)}, {vr(Sn,16)}']
            t += cv(4) + ex(8)
            t += [f'{MF32} {vr(O,16)}, {vr(Vc,4)}, {vr(P,4)}, {vr(O,16)}']
            t += cv(8) + ex(12)
            e(*t)
    e.c('STAMP 3')
    e('s_lshl_b32 s41, s32, 12')
    e(f'v_cvt_pk_bf16_f32 v{P+6}, v{TT+12}, v{TT+13}', f'v_cvt_pk_bf16_f32 v{P+7}, v{TT+14}, v{TT+15}')
    e('s_lshl_b32 s42, s33, 11', 's_add_u32 s43, s41, s42')
    e(f'{MF32} {vr(O,16)}, {vr(VB+12,4)}, {vr(P+4,4)}, {vr(O,16)}')
    e('s_xor_b32 s42, s42, 2048', 's_add_u32 s44, s41, s42')
    e('v_add_u32 v3, s43, v2', 'v_add_u32 v4, s44, v2')
    e('s_lshl_b32 s41, s28, 8', f's_add_u32 s41, s41, {X+16384}', 's_xor_b32 s42, s41, 1024')
    e('v_lshlrev_b32 v5, 2, v0', 'v_add_u32 v6, s42, v5', 'v_add_u32 v5, s41, v5')
    e('s_nop 0')
    e('s_cmp_eq_u32 s33, 0', 's_cbranch_scc1 L_k2_e0')
    e(f'ds_write_b128 v3, {vr(O,4)}', f'ds_write_b128 v3, {vr(O+4,4)} offset:1024', f'ds_write_b32 v5, v{O+12}')
    for r in range(8): e(f'v_mov_b32 v{O+r}, v{O+8+r}')
    e('s_branch L_k2_e1')
    e.label('L_k2_e0')
    e(f'ds_write_b128 v3, {vr(O+8,4)}', f'ds_write_b128 v3, {vr(O+12,4)} offset:1024', f'ds_write_b32 v5, v{O+12}')
    e.label('L_k2_e1')
    e('s_waitcnt lgkmcnt(0)', 's_barrier')
    e(f'ds_read_b32 v{S0+8}, v6', f'ds_read_b128 {vr(S0,4)}, v4', f'ds_read_b128 {vr(S0+4,4)}, v4 offset:1024')
    e('s_lshl_b32 s41, s31, 17', 's_lshl_b32 s42, s32, 15', 's_add_u32 s41, s41, s42', 's_lshl_b32 s42, s30, 11', 's_add_u32 s41, s41, s42', 's_lshl_b32 s42, s33, 10', 's_add_u32 s41, s41, s42', f's_add_u32 s41, s41, {WS_O}')
    e('s_cmp_eq_u32 s33, 1', 's_cselect_b64 s[44:45], s[68:69], 0', 's_mov_b32 s42, 0x7e800000')
    e('s_waitcnt lgkmcnt(2)')
    e(f'v_add_f32 v5, v{O+12}, v{S0+8}', 'v_mov_b32 v6, v5')
    e('s_waitcnt lgkmcnt(0)')
    e(f'v_add_f32 v{O}, v{O}, v{S0}')
    e('v_permlane32_swap_b32 v6, v5')
    for r in range(1, 8): e(f'v_add_f32 v{O+r}, v{O+r}, v{S0+r}')
    e('v_rcp_f32 v4, v5', 'v_cmp_ngt_f32 vcc, s42, v5')
    e(f'v_mul_f32 v6, 0, v{O}', f'v_mul_f32 v3, 0, v{O+1}')
    for r in range(2, 8, 2): e(f'v_fma_f32 v6, v{O+r}, 0, v6', f'v_fma_f32 v3, v{O+r+1}, 0, v3')
    for r in range(8): e(f'v_mul_f32 v{O+r}, v4, v{O+r}')
    for k in range(4): e(f'v_cvt_pk_bf16_f32 v{P+k}, v{O+2*k}, v{O+2*k+1}')
    e(f'v_cndmask_b32 v{P+2}, v{P+2}, v1, s[44:45]', f'v_cndmask_b32 v{P+3}, v{P+3}, v1, s[44:45]')
    e('v_cmp_u_f32 s[46:47], v6, v3')
    e(f'buffer_store_dwordx4 {vr(P,4)}, v2, s[24:27], s41 offen{st}')
    e('s_or_b64 vcc, vcc, s[46:47]', 's_cmp_eq_u32 s60, 1', 's_cselect_b64 vcc, 0, vcc')
    e('s_cmp_eq_u64 vcc, 0', 's_cbranch_scc1 L_k2_ok')
    e('v_mov_b32 v6, 1', 'ds_write_b32 v7, v6', 's_waitcnt lgkmcnt(0)')
    e.label('L_k2_ok')
    e('s_barrier')
    e('ds_read_b32 v4, v7', 's_waitcnt lgkmcnt(0)', 'v_readfirstlane_b32 s41, v4', 's_nop 3')
    e('s_cmp_eq_u32 s41, 0', 's_cbranch_scc1 L_k2_end')
    e('s_barrier')
    e('s_mov_b32 s60, 1')
    e('s_lshl_b32 s41, s30, 18', f's_add_u32 s41, s41, {WS_KV}', 's_mov_b32 s42, 0')
    e(f'v_cndmask_b32 v{QF+6}, v{QF+6}, v1, s[68:69]', f'v_cndmask_b32 v{QF+7}, v{QF+7}, v1, s[68:69]')
    e('v_mov_b32 v3, 0xff800000')
    e(*zero_state())
    e.label('L_k2_maxloop')
    for k in range(4): e(f'buffer_load_dwordx2 {vr(KB+2*k,2)}, v{vK8}, s[24:27], s41 offen offset:{512*k}')
    e('s_waitcnt vmcnt(0)')
    e(f'{MF32} {vr(S0,16)}, {vr(KB,4)}, {vr(QF,4)}, 0')
    e(f'{MF32} {vr(S0,16)}, {vr(KB+4,4)}, {vr(QF+4,4)}, {vr(S0,16)}')
    e('s_nop 7', 's_nop 3')
    for k in range(0, 16, 2): e(f'v_max3_f32 v3, v3, v{S0+k}, v{S0+k+1}')
    e('s_add_u32 s41, s41, 4096', 's_add_u32 s42, s42, 1', 's_cmp_lt_u32 s42, 64', 's_cbranch_scc1 L_k2_maxloop')
    e('v_mov_b32 v4, v3', 's_nop 1', 'v_permlane32_swap_b32 v3, v4', 'v_max_f32 v3, v3, v4')
    e('s_barrier')
    e(f'ds_read2st64_b64 {vr(KB,4)}, v{vKLane} offset0:0 offset1:1', f'ds_read2st64_b64 {vr(KB+4,4)}, v{vKLane} offset0:2 offset1:3')
    e(f'ds_read2st64_b64 {vr(KB+8,4)}, v{vKLane} offset0:8 offset1:9', f'ds_read2st64_b64 {vr(KB+12,4)}, v{vKLane} offset0:10 offset1:11')
    e(f'ds_read_b128 {vr(VB,4)}, v{vLane} offset:2048', f'ds_read_b128 {vr(VB+4,4)}, v{vLane} offset:3072')
    e('s_waitcnt lgkmcnt(0)')
    e(f'{MF32} {vr(S0,16)}, {vr(KB,4)}, {vr(QF,4)}, 0')
    e(f'{MF32} {vr(S0,16)}, {vr(KB+4,4)}, {vr(QF+4,4)}, {vr(S0,16)}')
    e('s_nop 7', 's_nop 3')
    e('s_branch L_k2_setmax')
    e.label('L_k2_aux')
    e('s_sub_u32 s28, s28, 8')
    e('s_lshl_b32 s36, s28, 10', 'v_add_u32 v8, s36, v2')
    for t in range(1, 4): e(f'v_add_u32 v{8+t}, {4096*t}, v8')
    e('s_lshl_b32 s41, s30, 18', f's_add_u32 s34, s41, {WS_KV}')
    e('s_lshl_b32 s37, s30, 17', 's_lshl_b32 s38, s31, 13', 's_add_u32 s37, s37, s38')
    e(f's_add_u32 s39, s37, {WS_PSTRIDE + WS_Q}')
    e('s_lshl_b32 s40, s31, 14', 's_add_u32 s40, s40, s41', f's_add_u32 s40, s40, {WS_PSTRIDE + WS_KV}')
    e('s_sub_u32 s42, s40, 4096', 's_cmp_eq_u32 s31, 0', 's_cselect_b32 s42, s40, s42')
    bQ, bKp, bKc, bV0, bV1, bS, bC, bT = 16, 24, 32, 40, 48, 56, 72, 84
    def bsetup():
        e('v_and_b32 v3, 15, v0', 'v_lshrrev_b32 v4, 4, v0', 'v_lshrrev_b32 v5, 1, v4', 'v_and_b32 v6, 1, v4')
        e('v_lshlrev_b32 v12, 10, v5', 'v_lshl_add_u32 v12, v6, 8, v12', 'v_lshl_add_u32 v12, v3, 3, v12')
        e('v_lshlrev_b32 v13, 9, v6', 'v_lshl_add_u32 v13, v3, 4, v13', 'v_lshl_add_u32 v13, v5, 10, v13')
        e('v_bfe_u32 v14, v0, 3, 1', 'v_xor_b32 v14, v14, v6', 'v_lshlrev_b32 v14, 6, v14', 'v_and_b32 v6, 3, v0', 'v_lshl_add_u32 v14, v6, 4, v14', 'v_lshrrev_b32 v6, 2, v3', 'v_lshl_add_u32 v14, v6, 7, v14', 'v_lshl_add_u32 v14, v5, 3, v14')
        e('s_lshl_b32 s43, s28, 11', f's_add_u32 s43, s43, {BO}', 'v_add_u32 v15, s43, v12')
        e('s_lshl_b32 s44, s28, 12', f's_add_u32 s44, s44, {BO + 8192}', 'v_add_u32 v12, s44, v12', 'v_add_u32 v14, s44, v14')
        e('v_mov_b32 v5, 0xf149f2ca', 's_or_b32 s55, s31, s28')
        for r in range(12):
            m = 0
            for l in range(64):
                d = (l & 15) - 4*(l >> 4) - (r % 4) + (0 if 4 <= r < 8 else 16)
                if 0 <= d <= 14 and d % 2 == 0: m |= 1 << l
            sp = 64 + 2*(r % 2)
            e(f's_mov_b32 s{sp}, 0x{m & 0xffffffff:08x}', f's_mov_b32 s{sp+1}, 0x{m >> 32:08x}')
            if r >= 8: e('s_cmp_eq_u32 s55, 0', f's_cselect_b64 s[{sp}:{sp+1}], 0, s[{sp}:{sp+1}]')
            e(f'v_cndmask_b32 v{bC+r}, v5, v1, s[{sp}:{sp+1}]')
        e('s_mov_b32 s70, 0', 's_mov_b32 s71, 0xffff0000', f's_mov_b32 s57, {f32(28 ** -0.5 * 1.4426950408889634)}')
        e('s_lshl_b32 s47, s31, 2', 's_add_u32 s47, s47, s28', 's_lshl_b32 s47, s47, 15', 's_lshl_b32 s48, s30, 11', 's_add_u32 s47, s47, s48', f's_add_u32 s47, s47, {WS_O + 0x200000}')
    SETUP_AFTER = True
    e('s_waitcnt lgkmcnt(0)')
    srd(e, 24, 12, 13, WS_BYTES)
    vq = []
    def ld(v, so, m0off, tag):
        e(f's_add_u32 m0, s36, {m0off}', 's_nop 0', f'buffer_load_dwordx4 v{v}, s[24:27], s{so} offen lds'); vq.append(tag)
    def KV(s, tiles=range(4), tag=None):
        for t in tiles:
            for kh in range(2):
                ld(8+t, 62+kh, (s % NSL)*SL + kh*16384 + t*4096, tag or f'KV{s}')
    def setkv(s): e(f's_add_u32 s62, s34, {s*16384}', f's_add_u32 s63, s34, {s*16384 + 131072}')
    def waitfor(tags):
        nonlocal vq
        idx = [k for k, t in enumerate(vq) if t in tags]
        if idx:
            e(f's_waitcnt vmcnt({len(vq)-1-max(idx)})'); vq = vq[max(idx)+1:]
        e('s_barrier')
    ld(8, 37, QO, 'Q'); ld(9, 37, QO + 4096, 'Q')
    e.label('L_k2_aux2')
    setkv(0); KV(0, range(2), 'T01'); KV(0, range(2, 4), 'T23')
    if SETUP_AFTER: bsetup()
    waitfor({'Q', 'T01', 'T23'})
    setkv(1); KV(1)
    setkv(2); KV(2)
    ld(8, 39, BO, 'B'); ld(9, 39, BO + 4096, 'B'); ld(8, 42, BO + 8192, 'B')
    for t in range(4): ld(8+t, 40, BO + 12288 + 4096*t, 'B')
    def bunit(u):
        q, kp, kc, v0_, v1_, S = bQ+4*u, bKp+4*u, bKc+4*u, bV0+4*u, bV1+4*u, bS+8*u
        T = bT + 8*u; a, b2 = T+4, T+5
        cp = bC + (8 if u == 0 else 0)
        kpo, kco = (128, 4096) if u == 0 else (4096, 4096+128)
        vpo, vco = (2048+1024, 4096+2048) if u == 0 else (4096+2048, 4096+3072)
        r = [f'ds_read_b64 {vr(q,2)}, v15 offset:{128*u}', f'ds_read_b64 {vr(q+2,2)}, v15 offset:{128*u+512}',
             f'ds_read_b64 {vr(kp,2)}, v12 offset:{kpo}', f'ds_read_b64 {vr(kp+2,2)}, v12 offset:{kpo+512}',
             f'ds_read_b64 {vr(kc,2)}, v12 offset:{kco}', f'ds_read_b64 {vr(kc+2,2)}, v12 offset:{kco+512}']
        r2 = [f'ds_read_b64 {vr(v0_,2)}, v14 offset:{vpo}', f'ds_read_b64 {vr(v0_+2,2)}, v14 offset:{vco}', f'ds_read_b64 {vr(v1_,2)}, v14 offset:{vpo+512}', f'ds_read_b64 {vr(v1_+2,2)}, v14 offset:{vco+512}']
        b = [f'v_cndmask_b32 v{q+2}, v{q+2}, v1, s[70:71]', f'v_cndmask_b32 v{q+3}, v{q+3}, v1, s[70:71]', 's_nop 1',
             f'{MF16} {vr(S,4)}, {vr(kp,4)}, {vr(q,4)}, {vr(cp,4)}', f'{MF16} {vr(S+4,4)}, {vr(kc,4)}, {vr(q,4)}, {vr(bC+4,4)}', 's_nop 7',
             f'v_max3_f32 v{a}, v{S}, v{S+1}, v{S+2}', f'v_max3_f32 v{b2}, v{S+3}, v{S+4}, v{S+5}', f'v_max3_f32 v{a}, v{a}, v{S+6}, v{S+7}', f'v_max_f32 v{a}, v{a}, v{b2}',
             f'v_mov_b32 v{b2}, v{a}', 's_nop 1', f'v_permlane32_swap_b32 v{a}, v{b2}', f'v_max_f32 v{a}, v{a}, v{b2}',
             f'v_mov_b32 v{b2}, v{a}', 's_nop 1', f'v_permlane16_swap_b32 v{a}, v{b2}', f'v_max_f32 v{a}, v{a}, v{b2}', f'v_mul_f32 v{a}, s57, v{a}']
        b += [f'v_fma_f32 v{S+k}, v{S+k}, s57, -v{a}' for k in range(8)]
        b += [f'v_exp_f32 v{S+k}, v{S+k}' for k in range(8)]
        b += [f'v_cvt_pk_bf16_f32 v{T+k}, v{S+2*k}, v{S+2*k+1}' for k in range(4)]
        b += ['s_nop 1', f'{MF16} {vr(S+4,4)}, {vr(v1_,4)}, {vr(T,4)}, 0', f'{MF16} {vr(S,4)}, {vr(v0_,4)}, {vr(T,4)}, 0', 's_nop 7']
        b += [f'v_mov_b32 v{a}, v{S+4}', f'v_mov_b32 v{b2}, v{S+4}', 's_nop 1', f'v_permlane32_swap_b32 v{b2}, v{a}',
              f'v_mov_b32 v{b2}, v{a}', 's_nop 1', f'v_permlane16_swap_b32 v{b2}, v{a}', f'v_rcp_f32 v{a}, v{a}', 's_nop 0']
        b += [f'v_mul_f32 v{S+k}, v{a}, v{S+k}' for k in range(8)]
        b += [f'v_cvt_pk_bf16_f32 v{T+k}, v{S+2*k}, v{S+2*k+1}' for k in range(4)]
        b += [f'v_cndmask_b32 v{T+2}, v{T+2}, v1, s[70:71]', f'v_cndmask_b32 v{T+3}, v{T+3}, v1, s[70:71]', 's_nop 1',
              f'v_permlane32_swap_b32 v{T}, v{T+2}', f'v_permlane32_swap_b32 v{T+1}, v{T+3}', f'buffer_store_dwordx4 {vr(T,4)}, v13, s[24:27], s47 offen offset:{256*u}{st}']
        return r, r2, b
    for s in range(7):
        waitfor({f'KV{s+1}'} | ({'B'} if s == 1 else set()))
        if s + 3 < 8: setkv(s+3); KV(s+3)
        if s == 1:
            r0, r20, b0 = bunit(0); r1, r21, b1 = bunit(1)
            e(*r0); e(*r1); e('s_waitcnt lgkmcnt(0)'); e(*r20); e(*r21)
            m = []
            for x, y in zip(b0, b1): m += [x, y] if not x.startswith('s_nop') else [x]
            k1_ = next(i for i, x in enumerate(m) if 'v_fma' in x)
            k2_ = max(i for i, x in enumerate(m) if 'v_mfma' in x) + 1
            e(*m[:k1_]); e('s_waitcnt lgkmcnt(0)')
        if s == 2: e(*m[k1_:k2_])
        if s == 3:
            e(*m[k2_:]); vq += ['st', 'st']
        if s == 5: e('ds_write_b32 v7, v1')
    e('s_waitcnt lgkmcnt(0)')
    e('s_barrier', 's_barrier')
    e('ds_read_b32 v4, v7', 's_waitcnt lgkmcnt(0)', 'v_readfirstlane_b32 s41, v4', 's_nop 3')
    e('s_cmp_eq_u32 s41, 0', 's_cbranch_scc1 L_k2_end')
    e('s_waitcnt vmcnt(0)', 's_barrier')
    e('s_branch L_k2_aux2')
    e.label('L_k2_end')
    e('s_endpgm')
    return e.text(), dict(name='attn_kernel', vgpr=128, sgpr=72, grid=256, block=768, lds=BO+32768)

if __name__ == '__main__':
    from g3 import gen_k3
    ks = [gen_k1(), gen_k2(), gen_k3(st=' sc1')]
    assemble(ks, sys.argv[1] if len(sys.argv) > 1 else 'k.s')
```

```python
from g13 import *
import g13
g13.OFFM = 96.0

OFFM2 = 96.0
def gen_k2(st=' sc1', prio=0, wopf=True):
    e = E()
    SL = 32768; NSL = 4; BO = NSL*SL; QO = 3*SL
    e.label('attn_kernel')
    e('s_cmp_ge_u32 s2, 256', 's_cbranch_scc1 L_k2_end')
    e('s_load_dwordx2 s[12:13], s[0:1], 64')
    if wopf: e('s_load_dwordx2 s[4:5], s[0:1], 16', 's_load_dwordx2 s[6:7], s[0:1], 40')
    e('v_lshrrev_b32 v1, 6, v0', 'v_and_b32 v0, 63, v0')
    e('s_and_b32 s3, s2, 7', 's_lshl_b32 s30, s3, 1', 's_bfe_u32 s3, s2, 0x10003', 's_add_u32 s30, s30, s3')
    e('v_readfirstlane_b32 s28, v1')
    e('s_lshr_b32 s31, s2, 4')
    e('v_lshlrev_b32 v2, 4, v0', 's_mov_b32 s60, 0', 'v_mov_b32 v1, 0')
    X = 0
    e(f'v_mov_b32 v7, {X+20480}')
    e('s_cmp_ge_u32 s28, 8', 's_cbranch_scc1 L_k2_aux')
    e('s_and_b32 s32, s28, 3', 's_lshr_b32 s33, s28, 2')
    QF = 8; S0, S1 = 16, 32; P = 48; O = 56; KB = 72; VB = 88; TT = 104
    vNxt, vLane, vK8, vKLane, vQ = 120, 121, 122, 123, 124
    e('v_and_b32 v3, 31, v0', 'v_lshrrev_b32 v4, 5, v0', f'v_lshlrev_b32 v{vK8}, 3, v3', f'v_lshl_add_u32 v{vK8}, v4, 8, v{vK8}')
    e('v_bfe_u32 v5, v0, 3, 1', 'v_xor_b32 v5, v5, v4', 'v_lshlrev_b32 v5, 6, v5', 'v_and_b32 v6, 3, v0', 'v_lshl_add_u32 v5, v6, 4, v5', 'v_lshrrev_b32 v6, 2, v3', 'v_lshl_add_u32 v5, v6, 7, v5')
    e('s_lshl_b32 s41, s33, 14', f'v_add_u32 v{vLane}, s41, v5', f'v_add_u32 v{vKLane}, s41, v{vK8}', f'v_add_u32 v{vNxt}, 0x10000, v{vLane}')
    e('s_lshl_b32 s41, s32, 11', f's_add_u32 s41, s41, {QO}', f'v_add_u32 v{vQ}, s41, v{vK8}')
    e('s_mov_b32 s68, 0', 's_mov_b32 s69, -1', 's_mov_b32 s59, 0xffff0000')
    def zero_state():
        z = [f'v_mov_b32 v{O+r}, 0' for r in range(16)]
        for r in range(4): z += [f'v_mov_b32 v{P+4+r}, 0', f'v_mov_b32 v{TT+12+r}, 0', f'v_mov_b32 v{VB+12+r}, 0']
        return z
    e(*zero_state())
    e('s_waitcnt lgkmcnt(0)')
    srd(e, 24, 12, 13, WS_BYTES)
    if prio: e(f's_setprio {prio}')
    e.c('STAMP 0')
    e('s_barrier')
    e.c('STAMP 1')
    e(f'ds_read2st64_b64 {vr(QF,4)}, v{vQ} offset0:0 offset1:1', f'ds_read2st64_b64 {vr(TT,4)}, v{vK8} offset0:0 offset1:1')
    e(f'ds_read2st64_b64 {vr(QF+4,4)}, v{vQ} offset0:2 offset1:3', f'ds_read2st64_b64 {vr(TT+4,4)}, v{vK8} offset0:2 offset1:3')
    e('s_waitcnt lgkmcnt(2)')
    e(f'{MF32} {vr(S1,16)}, {vr(TT,4)}, {vr(QF,4)}, 0')
    e(f'ds_read2st64_b64 {vr(KB,4)}, v{vKLane} offset0:0 offset1:1', f'ds_read2st64_b64 {vr(KB+4,4)}, v{vKLane} offset0:2 offset1:3')
    e('s_waitcnt lgkmcnt(2)')
    e(f'v_cndmask_b32 v{QF+6}, v{QF+6}, v1, s[68:69]', f'v_cndmask_b32 v{QF+7}, v{QF+7}, v1, s[68:69]', 's_nop 1')
    e(f'{MF32} {vr(S1,16)}, {vr(TT+4,4)}, {vr(QF+4,4)}, {vr(S1,16)}')
    e('s_waitcnt lgkmcnt(0)')
    e(f'{MF32} {vr(S0,16)}, {vr(KB,4)}, {vr(QF,4)}, 0')
    e(f'{MF32} {vr(S0,16)}, {vr(KB+4,4)}, {vr(QF+4,4)}, {vr(S0,16)}')
    e(f'ds_read2st64_b64 {vr(KB+8,4)}, v{vKLane} offset0:8 offset1:9', f'ds_read2st64_b64 {vr(KB+12,4)}, v{vKLane} offset0:10 offset1:11')
    e(f'ds_read_b128 {vr(VB,4)}, v{vLane} offset:2048', f'ds_read_b128 {vr(VB+4,4)}, v{vLane} offset:3072')
    e('s_nop 4')
    e(f'v_max3_f32 v3, v{S1}, v{S1+1}, v{S1+2}', f'v_max3_f32 v4, v{S1+3}, v{S1+4}, v{S1+5}')
    e(f'v_max3_f32 v3, v3, v{S1+6}, v{S1+7}', f'v_max3_f32 v4, v4, v{S1+8}, v{S1+9}', f'v_max3_f32 v3, v3, v{S1+10}, v{S1+11}', f'v_max3_f32 v4, v4, v{S1+12}, v{S1+13}')
    e(f'v_max3_f32 v3, v3, v{S1+14}, v{S1+15}', 'v_max_f32 v3, v3, v4')
    e('v_mov_b32 v4, v3', 's_nop 1', 'v_permlane32_swap_b32 v3, v4', 'v_max_f32 v3, v3, v4', f'v_add_f32 v3, {f32(OFFM2)}, v3')
    e.label('L_k2_setmax')
    e('v_sub_f32 v6, 0, v3', 'v_and_b32 v4, s59, v6', 'v_sub_f32 v6, v6, v4', 'v_and_b32 v5, s59, v6', 'v_sub_f32 v6, v6, v5')
    e('v_lshrrev_b32 v4, 16, v4', 'v_or_b32 v4, v4, v5', 'v_lshrrev_b32 v6, 16, v6')
    e(f'v_cndmask_b32 v{QF+6}, v{QF+6}, v4, s[68:69]', f'v_cndmask_b32 v{QF+7}, v{QF+7}, v6, s[68:69]')
    for r in range(16): e(f'v_sub_f32 v{S0+r}, v{S0+r}, v3')
    e.c('STAMP 2')
    def tile_addr(g): return ((g // 4) % NSL)*SL + (g % 4)*4096
    for s in range(8):
        for i in range(4):
            g = 4*s + i
            Sc = S0 if i % 2 == 0 else S1
            Sn = S1 if i % 2 == 0 else S0
            Kn = KB + 8*((i+1) % 2); Kl = KB + 8*(i % 2)
            Vc = VB + 8*(i % 2); Vl = VB + 8*((i+1) % 2)
            def ex(r0): return [f'v_exp_f32 v{TT+r}, v{Sc+r}' for r in range(r0, r0+4)]
            def cv(r0): return [f'v_cvt_pk_bf16_f32 v{P+r0//2}, v{TT+r0}, v{TT+r0+1}', f'v_cvt_pk_bf16_f32 v{P+r0//2+1}, v{TT+r0+2}, v{TT+r0+3}']
            e('s_waitcnt lgkmcnt(0)')
            if i == 2 and s < 7: e('s_barrier')
            t = []
            if g + 1 < 32: t += [f'{MF32} {vr(Sn,16)}, {vr(Kn,4)}, {vr(QF,4)}, 0']
            if g + 2 < 32:
                ko = tile_addr(g+2)//512
                t += [f'ds_read2st64_b64 {vr(Kl,4)}, v{vKLane} offset0:{ko} offset1:{ko+1}', f'ds_read2st64_b64 {vr(Kl+4,4)}, v{vKLane} offset0:{ko+2} offset1:{ko+3}']
            t += cv(12) + ex(0)
            t += [f'{MF32} {vr(O,16)}, {vr(Vl+4,4)}, {vr(P+4,4)}, {vr(O,16)}']
            if g + 1 < 32:
                vo = tile_addr(g+1); va = vLane if vo < 65536 else vNxt; vo %= 65536
                t += [f'ds_read_b128 {vr(Vl,4)}, v{va} offset:{vo+2048}', f'ds_read_b128 {vr(Vl+4,4)}, v{va} offset:{vo+3072}']
            t += cv(0) + ex(4)
            if g + 1 < 32: t += [f'{MF32} {vr(Sn,16)}, {vr(Kn+4,4)}, {vr(QF+4,4)}, {vr(Sn,16)}']
            t += cv(4) + ex(8)
            t += [f'{MF32} {vr(O,16)}, {vr(Vc,4)}, {vr(P,4)}, {vr(O,16)}']
            t += cv(8) + ex(12)
            e(*t)
    e.c('STAMP 3')
    e('s_lshl_b32 s41, s32, 12')
    e(f'v_cvt_pk_bf16_f32 v{P+6}, v{TT+12}, v{TT+13}', f'v_cvt_pk_bf16_f32 v{P+7}, v{TT+14}, v{TT+15}')
    e('s_lshl_b32 s42, s33, 11', 's_add_u32 s43, s41, s42')
    e(f'{MF32} {vr(O,16)}, {vr(VB+12,4)}, {vr(P+4,4)}, {vr(O,16)}')
    e('s_xor_b32 s42, s42, 2048', 's_add_u32 s44, s41, s42')
    e('v_add_u32 v3, s43, v2', 'v_add_u32 v4, s44, v2')
    e('s_lshl_b32 s41, s28, 8', f's_add_u32 s41, s41, {X+16384}', 's_xor_b32 s42, s41, 1024')
    e('v_lshlrev_b32 v5, 2, v0', 'v_add_u32 v6, s42, v5', 'v_add_u32 v5, s41, v5')
    e('s_nop 0')
    e('s_cmp_eq_u32 s33, 0', 's_cbranch_scc1 L_k2_e0')
    e(f'ds_write_b128 v3, {vr(O,4)}', f'ds_write_b128 v3, {vr(O+4,4)} offset:1024', f'ds_write_b32 v5, v{O+12}')
    for r in range(8): e(f'v_mov_b32 v{O+r}, v{O+8+r}')
    e('s_branch L_k2_e1')
    e.label('L_k2_e0')
    e(f'ds_write_b128 v3, {vr(O+8,4)}', f'ds_write_b128 v3, {vr(O+12,4)} offset:1024', f'ds_write_b32 v5, v{O+12}')
    e.label('L_k2_e1')
    e('s_waitcnt lgkmcnt(0)', 's_barrier')
    e(f'ds_read_b32 v{S0+8}, v6', f'ds_read_b128 {vr(S0,4)}, v4', f'ds_read_b128 {vr(S0+4,4)}, v4 offset:1024')
    e('s_lshl_b32 s41, s31, 17', 's_lshl_b32 s42, s32, 15', 's_add_u32 s41, s41, s42', 's_lshl_b32 s42, s30, 11', 's_add_u32 s41, s41, s42', 's_lshl_b32 s42, s33, 10', 's_add_u32 s41, s41, s42', f's_add_u32 s41, s41, {WS_O}')
    e('s_cmp_eq_u32 s33, 1', 's_cselect_b64 s[44:45], s[68:69], 0', 's_mov_b32 s42, 0x7e800000')
    e('s_waitcnt lgkmcnt(2)')
    e(f'v_add_f32 v5, v{O+12}, v{S0+8}', 'v_mov_b32 v6, v5')
    e('s_waitcnt lgkmcnt(0)')
    e(f'v_add_f32 v{O}, v{O}, v{S0}')
    e('v_permlane32_swap_b32 v6, v5')
    for r in range(1, 8): e(f'v_add_f32 v{O+r}, v{O+r}, v{S0+r}')
    e('v_rcp_f32 v4, v5', 'v_cmp_ngt_f32 vcc, s42, v5')
    e(f'v_mul_f32 v6, 0, v{O}', f'v_mul_f32 v3, 0, v{O+1}')
    for r in range(2, 8, 2): e(f'v_fma_f32 v6, v{O+r}, 0, v6', f'v_fma_f32 v3, v{O+r+1}, 0, v3')
    for r in range(8): e(f'v_mul_f32 v{O+r}, v4, v{O+r}')
    for k in range(4): e(f'v_cvt_pk_bf16_f32 v{P+k}, v{O+2*k}, v{O+2*k+1}')
    e(f'v_cndmask_b32 v{P+2}, v{P+2}, v1, s[44:45]', f'v_cndmask_b32 v{P+3}, v{P+3}, v1, s[44:45]')
    e('v_cmp_u_f32 s[46:47], v6, v3')
    e(f'buffer_store_dwordx4 {vr(P,4)}, v2, s[24:27], s41 offen{st}')
    e('s_or_b64 vcc, vcc, s[46:47]', 's_cmp_eq_u32 s60, 1', 's_cselect_b64 vcc, 0, vcc')
    e('s_cmp_eq_u64 vcc, 0', 's_cbranch_scc1 L_k2_ok')
    e('v_mov_b32 v6, 1', 'ds_write_b32 v7, v6', 's_waitcnt lgkmcnt(0)')
    e.label('L_k2_ok')
    e('s_barrier')
    e('ds_read_b32 v4, v7', 's_waitcnt lgkmcnt(0)', 'v_readfirstlane_b32 s41, v4', 's_nop 3')
    e('s_cmp_eq_u32 s41, 0', 's_cbranch_scc1 L_k2_end')
    e('s_barrier')
    e('s_mov_b32 s60, 1')
    e('s_lshl_b32 s41, s30, 18', f's_add_u32 s41, s41, {WS_KV}', 's_mov_b32 s42, 0')
    e(f'v_cndmask_b32 v{QF+6}, v{QF+6}, v1, s[68:69]', f'v_cndmask_b32 v{QF+7}, v{QF+7}, v1, s[68:69]')
    e('v_mov_b32 v3, 0xff800000')
    e(*zero_state())
    e.label('L_k2_maxloop')
    for k in range(4): e(f'buffer_load_dwordx2 {vr(KB+2*k,2)}, v{vK8}, s[24:27], s41 offen offset:{512*k}')
    e('s_waitcnt vmcnt(0)')
    e(f'{MF32} {vr(S0,16)}, {vr(KB,4)}, {vr(QF,4)}, 0')
    e(f'{MF32} {vr(S0,16)}, {vr(KB+4,4)}, {vr(QF+4,4)}, {vr(S0,16)}')
    e('s_nop 7', 's_nop 3')
    for k in range(0, 16, 2): e(f'v_max3_f32 v3, v3, v{S0+k}, v{S0+k+1}')
    e('s_add_u32 s41, s41, 4096', 's_add_u32 s42, s42, 1', 's_cmp_lt_u32 s42, 64', 's_cbranch_scc1 L_k2_maxloop')
    e('v_mov_b32 v4, v3', 's_nop 1', 'v_permlane32_swap_b32 v3, v4', 'v_max_f32 v3, v3, v4')
    e('s_barrier')
    e(f'ds_read2st64_b64 {vr(KB,4)}, v{vKLane} offset0:0 offset1:1', f'ds_read2st64_b64 {vr(KB+4,4)}, v{vKLane} offset0:2 offset1:3')
    e(f'ds_read2st64_b64 {vr(KB+8,4)}, v{vKLane} offset0:8 offset1:9', f'ds_read2st64_b64 {vr(KB+12,4)}, v{vKLane} offset0:10 offset1:11')
    e(f'ds_read_b128 {vr(VB,4)}, v{vLane} offset:2048', f'ds_read_b128 {vr(VB+4,4)}, v{vLane} offset:3072')
    e('s_waitcnt lgkmcnt(0)')
    e(f'{MF32} {vr(S0,16)}, {vr(KB,4)}, {vr(QF,4)}, 0')
    e(f'{MF32} {vr(S0,16)}, {vr(KB+4,4)}, {vr(QF+4,4)}, {vr(S0,16)}')
    e('s_nop 7', 's_nop 3')
    e('s_branch L_k2_setmax')
    e.label('L_k2_aux')
    e('s_sub_u32 s28, s28, 8')
    e('s_lshl_b32 s36, s28, 10', 'v_add_u32 v8, s36, v2')
    for t in range(1, 4): e(f'v_add_u32 v{8+t}, {4096*t}, v8')
    e('s_lshl_b32 s41, s30, 18', f's_add_u32 s34, s41, {WS_KV}')
    e('s_lshl_b32 s37, s30, 17', 's_lshl_b32 s38, s31, 13', 's_add_u32 s37, s37, s38')
    e(f's_add_u32 s39, s37, {WS_PSTRIDE + WS_Q}')
    e('s_lshl_b32 s40, s31, 14', 's_add_u32 s40, s40, s41', f's_add_u32 s40, s40, {WS_PSTRIDE + WS_KV}')
    e('s_sub_u32 s42, s40, 4096', 's_cmp_eq_u32 s31, 0', 's_cselect_b32 s42, s40, s42')
    bQ, bKp, bKc, bV0, bV1, bS, bC, bT = 16, 24, 32, 40, 48, 56, 72, 84
    def bsetup():
        e('v_and_b32 v3, 15, v0', 'v_lshrrev_b32 v4, 4, v0', 'v_lshrrev_b32 v5, 1, v4', 'v_and_b32 v6, 1, v4')
        e('v_lshlrev_b32 v12, 10, v5', 'v_lshl_add_u32 v12, v6, 8, v12', 'v_lshl_add_u32 v12, v3, 3, v12')
        e('v_lshlrev_b32 v13, 9, v6', 'v_lshl_add_u32 v13, v3, 4, v13', 'v_lshl_add_u32 v13, v5, 10, v13')
        e('v_bfe_u32 v14, v0, 3, 1', 'v_xor_b32 v14, v14, v6', 'v_lshlrev_b32 v14, 6, v14', 'v_and_b32 v6, 3, v0', 'v_lshl_add_u32 v14, v6, 4, v14', 'v_lshrrev_b32 v6, 2, v3', 'v_lshl_add_u32 v14, v6, 7, v14', 'v_lshl_add_u32 v14, v5, 3, v14')
        e('s_lshl_b32 s43, s28, 11', f's_add_u32 s43, s43, {BO}', 'v_add_u32 v15, s43, v12')
        e('s_lshl_b32 s44, s28, 12', f's_add_u32 s44, s44, {BO + 8192}', 'v_add_u32 v12, s44, v12', 'v_add_u32 v14, s44, v14')
        e('v_mov_b32 v5, 0xf149f2ca', 's_or_b32 s55, s31, s28')
        for r in range(12):
            m = 0
            for l in range(64):
                d = (l & 15) - 4*(l >> 4) - (r % 4) + (0 if 4 <= r < 8 else 16)
                if 0 <= d <= 14 and d % 2 == 0: m |= 1 << l
            sp = 64 + 2*(r % 2)
            e(f's_mov_b32 s{sp}, 0x{m & 0xffffffff:08x}', f's_mov_b32 s{sp+1}, 0x{m >> 32:08x}')
            if r >= 8: e('s_cmp_eq_u32 s55, 0', f's_cselect_b64 s[{sp}:{sp+1}], 0, s[{sp}:{sp+1}]')
            e(f'v_cndmask_b32 v{bC+r}, v5, v1, s[{sp}:{sp+1}]')
        e('s_mov_b32 s70, 0', 's_mov_b32 s71, 0xffff0000', f's_mov_b32 s57, {f32(28 ** -0.5 * 1.4426950408889634)}')
        e('s_lshl_b32 s47, s31, 2', 's_add_u32 s47, s47, s28', 's_lshl_b32 s47, s47, 15', 's_lshl_b32 s48, s30, 11', 's_add_u32 s47, s47, s48', f's_add_u32 s47, s47, {WS_O + 0x200000}')
    SETUP_AFTER = True
    e('s_waitcnt lgkmcnt(0)')
    srd(e, 24, 12, 13, WS_BYTES)
    vq = []
    def ld(v, so, m0off, tag):
        e(f's_add_u32 m0, s36, {m0off}', 's_nop 0', f'buffer_load_dwordx4 v{v}, s[24:27], s{so} offen lds'); vq.append(tag)
    def KV(s, tiles=range(4), tag=None):
        for t in tiles:
            for kh in range(2):
                ld(8+t, 62+kh, (s % NSL)*SL + kh*16384 + t*4096, tag or f'KV{s}')
    def setkv(s): e(f's_add_u32 s62, s34, {s*16384}', f's_add_u32 s63, s34, {s*16384 + 131072}')
    def waitfor(tags):
        nonlocal vq
        idx = [k for k, t in enumerate(vq) if t in tags]
        if idx:
            e(f's_waitcnt vmcnt({len(vq)-1-max(idx)})'); vq = vq[max(idx)+1:]
        e('s_barrier')
    ld(8, 37, QO, 'Q'); ld(9, 37, QO + 4096, 'Q')
    e.label('L_k2_aux2')
    setkv(0); KV(0, range(2), 'T01'); KV(0, range(2, 4), 'T23')
    if SETUP_AFTER: bsetup()
    waitfor({'Q', 'T01', 'T23'})
    setkv(1); KV(1)
    setkv(2); KV(2)
    ld(8, 39, BO, 'B'); ld(9, 39, BO + 4096, 'B'); ld(8, 42, BO + 8192, 'B')
    for t in range(4): ld(8+t, 40, BO + 12288 + 4096*t, 'B')
    def bunit(u):
        q, kp, kc, v0_, v1_, S = bQ+4*u, bKp+4*u, bKc+4*u, bV0+4*u, bV1+4*u, bS+8*u
        T = bT + 8*u; a, b2 = T+4, T+5
        cp = bC + (8 if u == 0 else 0)
        kpo, kco = (128, 4096) if u == 0 else (4096, 4096+128)
        vpo, vco = (2048+1024, 4096+2048) if u == 0 else (4096+2048, 4096+3072)
        r = [f'ds_read_b64 {vr(q,2)}, v15 offset:{128*u}', f'ds_read_b64 {vr(q+2,2)}, v15 offset:{128*u+512}',
             f'ds_read_b64 {vr(kp,2)}, v12 offset:{kpo}', f'ds_read_b64 {vr(kp+2,2)}, v12 offset:{kpo+512}',
             f'ds_read_b64 {vr(kc,2)}, v12 offset:{kco}', f'ds_read_b64 {vr(kc+2,2)}, v12 offset:{kco+512}']
        r2 = [f'ds_read_b64 {vr(v0_,2)}, v14 offset:{vpo}', f'ds_read_b64 {vr(v0_+2,2)}, v14 offset:{vco}', f'ds_read_b64 {vr(v1_,2)}, v14 offset:{vpo+512}', f'ds_read_b64 {vr(v1_+2,2)}, v14 offset:{vco+512}']
        b = [f'v_cndmask_b32 v{q+2}, v{q+2}, v1, s[70:71]', f'v_cndmask_b32 v{q+3}, v{q+3}, v1, s[70:71]', 's_nop 1',
             f'{MF16} {vr(S,4)}, {vr(kp,4)}, {vr(q,4)}, {vr(cp,4)}', f'{MF16} {vr(S+4,4)}, {vr(kc,4)}, {vr(q,4)}, {vr(bC+4,4)}', 's_nop 7',
             f'v_max3_f32 v{a}, v{S}, v{S+1}, v{S+2}', f'v_max3_f32 v{b2}, v{S+3}, v{S+4}, v{S+5}', f'v_max3_f32 v{a}, v{a}, v{S+6}, v{S+7}', f'v_max_f32 v{a}, v{a}, v{b2}',
             f'v_mov_b32 v{b2}, v{a}', 's_nop 1', f'v_permlane32_swap_b32 v{a}, v{b2}', f'v_max_f32 v{a}, v{a}, v{b2}',
             f'v_mov_b32 v{b2}, v{a}', 's_nop 1', f'v_permlane16_swap_b32 v{a}, v{b2}', f'v_max_f32 v{a}, v{a}, v{b2}', f'v_mul_f32 v{a}, s57, v{a}']
        b += [f'v_fma_f32 v{S+k}, v{S+k}, s57, -v{a}' for k in range(8)]
        b += [f'v_exp_f32 v{S+k}, v{S+k}' for k in range(8)]
        b += [f'v_cvt_pk_bf16_f32 v{T+k}, v{S+2*k}, v{S+2*k+1}' for k in range(4)]
        b += ['s_nop 1', f'{MF16} {vr(S+4,4)}, {vr(v1_,4)}, {vr(T,4)}, 0', f'{MF16} {vr(S,4)}, {vr(v0_,4)}, {vr(T,4)}, 0', 's_nop 7']
        b += [f'v_mov_b32 v{a}, v{S+4}', f'v_mov_b32 v{b2}, v{S+4}', 's_nop 1', f'v_permlane32_swap_b32 v{b2}, v{a}',
              f'v_mov_b32 v{b2}, v{a}', 's_nop 1', f'v_permlane16_swap_b32 v{b2}, v{a}', f'v_rcp_f32 v{a}, v{a}', 's_nop 0']
        b += [f'v_mul_f32 v{S+k}, v{a}, v{S+k}' for k in range(8)]
        b += [f'v_cvt_pk_bf16_f32 v{T+k}, v{S+2*k}, v{S+2*k+1}' for k in range(4)]
        b += [f'v_cndmask_b32 v{T+2}, v{T+2}, v1, s[70:71]', f'v_cndmask_b32 v{T+3}, v{T+3}, v1, s[70:71]', 's_nop 1',
              f'v_permlane32_swap_b32 v{T}, v{T+2}', f'v_permlane32_swap_b32 v{T+1}, v{T+3}', f'buffer_store_dwordx4 {vr(T,4)}, v13, s[24:27], s47 offen offset:{256*u}{st}']
        return r, r2, b
    for s in range(7):
        waitfor({f'KV{s+1}'} | ({'B'} if s == 1 else set()))
        if s + 3 < 8: setkv(s+3); KV(s+3)
        if s == 1:
            r0, r20, b0 = bunit(0); r1, r21, b1 = bunit(1)
            e(*r0); e(*r1); e('s_waitcnt lgkmcnt(0)'); e(*r20); e(*r21)
            m = []
            for x, y in zip(b0, b1): m += [x, y] if not x.startswith('s_nop') else [x]
            k1_ = next(i for i, x in enumerate(m) if 'v_fma' in x)
            k2_ = max(i for i, x in enumerate(m) if 'v_mfma' in x) + 1
            e(*m[:k1_]); e('s_waitcnt lgkmcnt(0)')
        if s == 2: e(*m[k1_:k2_])
        if s == 3:
            e(*m[k2_:]); vq += ['st', 'st']
        if s == 4 and wopf:
            e('s_bitcmp0_b32 s2, 2', 's_cselect_b32 s16, s4, s6', 's_cselect_b32 s17, s5, s7', f's_mov_b32 s18, {448*896}', 's_mov_b32 s19, 0x00020000')
            e('s_lshr_b32 s41, s2, 3', 's_lshl_b32 s41, s41, 2', 's_add_u32 s41, s41, s28', 's_mul_i32 s41, s41, 3200')
            e('v_min_u32 v3, 24, v0', 'v_lshlrev_b32 v3, 7, v3', 'buffer_load_dword v4, v3, s[16:19], s41 offen'); vq.append('pf')
        if s == 5: e('ds_write_b32 v7, v1')
    e('s_waitcnt lgkmcnt(0)')
    e('s_barrier', 's_barrier')
    e('ds_read_b32 v4, v7', 's_waitcnt lgkmcnt(0)', 'v_readfirstlane_b32 s41, v4', 's_nop 3')
    e('s_cmp_eq_u32 s41, 0', 's_cbranch_scc1 L_k2_end')
    e('s_waitcnt vmcnt(0)', 's_barrier')
    e('s_branch L_k2_aux2')
    e.label('L_k2_end')
    e('s_endpgm')
    return e.text(), dict(name='attn_kernel', vgpr=128, sgpr=72, grid=256, block=768, lds=BO+32768)

def gen_k3(st=' sc1', PF=6, PF0=6, lsplit=False):
    e = E()
    e.label('proj_kernel')
    e('s_cmp_ge_u32 s2, 224', 's_cbranch_scc1 L_k3_end')
    e('s_load_dwordx2 s[4:5], s[0:1], 16', 's_load_dwordx2 s[6:7], s[0:1], 40', 's_load_dwordx2 s[8:9], s[0:1], 48', 's_load_dwordx2 s[12:13], s[0:1], 64')
    e('v_lshrrev_b32 v1, 6, v0', 'v_and_b32 v0, 63, v0')
    e('s_and_b32 s32, s2, 7', 's_lshr_b32 s33, s2, 3')
    e('v_readfirstlane_b32 s28, v1')
    e('s_lshr_b32 s29, s32, 2')
    e('s_and_b32 s31, s32, 3', 's_lshl_b32 s31, s31, 2', 's_and_b32 s34, s33, 3', 's_add_u32 s31, s31, s34')
    e('s_lshr_b32 s30, s33, 2')
    e('s_cmp_ge_u32 s28, 4', 's_cbranch_scc1 L_k3_loader')
    e('v_lshlrev_b32 v2, 4, v0')
    e('s_lshl_b32 s34, s31, 2', 's_add_u32 s34, s34, s28', 's_lshl_b32 s34, s34, 15', 's_lshl_b32 s35, s29, 21', 's_add_u32 s34, s34, s35', f's_add_u32 s34, s34, {WS_O}')
    e('s_waitcnt lgkmcnt(0)')
    srd(e, 24, 12, 13, WS_BYTES)
    srd(e, 20, 8, 9, 2048*1792)
    OF = 64
    def oload(hd):
        if hd % 2 == 0: e(f's_add_u32 s36, s34, {hd*2048}')
        o = (hd % 2)*2048
        e(f'buffer_load_dwordx4 {vr(OF+8*hd,4)}, v2, s[24:27], s36 offen offset:{o}', f'buffer_load_dwordx4 {vr(OF+8*hd+4,4)}, v2, s[24:27], s36 offen offset:{o+1024}')
    for hd in range(PF0): oload(hd)
    e('v_lshrrev_b32 v21, 5, v0', 'v_bfe_u32 v24, v0, 2, 2', 'v_lshl_add_u32 v25, v21, 2, v24', 'v_lshlrev_b32 v25, 7, v25')
    e('v_bfe_u32 v26, v0, 4, 1', 'v_lshl_add_u32 v25, v26, 5, v25', 'v_and_b32 v26, 3, v0', 'v_lshl_add_u32 v25, v26, 3, v25')
    e('v_lshrrev_b32 v24, 1, v24', 'v_lshl_add_u32 v3, v24, 6, v25', 'v_xor_b32 v4, 64, v3')
    e('v_lshlrev_b32 v26, 10, v21', 'v_sub_u32 v5, v3, v26', 'v_sub_u32 v6, v4, v26')
    RS = 144
    e('s_mul_i32 s37, s28, 4608', 's_add_u32 s37, s37, 57344')
    e('v_and_b32 v20, 31, v0', f'v_mul_u32_u24 v7, {RS}, v20', 'v_lshl_add_u32 v7, v21, 3, v7', 'v_add_u32 v7, s37, v7')
    e('v_lshrrev_b32 v24, 3, v0', 'v_and_b32 v25, 7, v0', f'v_mul_u32_u24 v8, {RS}, v24', 'v_lshl_add_u32 v8, v25, 4, v8', 'v_add_u32 v8, s37, v8')
    e('v_mul_u32_u24 v9, 1792, v24', 'v_lshl_add_u32 v9, v25, 4, v9')
    e('s_lshl_b32 s39, s31, 7', 's_lshl_b32 s40, s28, 5', 's_add_u32 s39, s39, s40', 's_mul_i32 s39, s39, 1792', 's_mul_i32 s40, s29, 896', 's_add_u32 s39, s39, s40', 's_lshl_b32 s40, s30, 7', 's_add_u32 s39, s39, s40')
    ACC = 32; AF = 192
    def reads(hd):
        b = AF + 16*(hd % 2); r = []
        for nt in range(2):
            for t in range(2):
                for ee in range(2):
                    a = (5+nt) if (t == 1 and ee == 1) else (3+nt)
                    r.append(f'ds_read_b64_tr_b16 {vr(b+8*nt+4*t+2*ee,2)}, v{a} offset:{hd*3584 + t*2048 + ee*1024}')
        return r
    for hd in range(PF0, PF): oload(hd)
    e.c('STAMP 0')
    e('s_barrier')
    e.c('STAMP 1')
    e(*reads(0))
    nload = PF
    for hd in range(16):
        b = AF + 16*(hd % 2)
        if hd + 1 < 16 and (hd+1) % 4 == 0: e('s_barrier')
        e(f's_waitcnt vmcnt({2*(nload-1-hd)}) lgkmcnt(0)')
        rd = reads(hd+1) if hd + 1 < 16 else []
        k = 0
        for t in range(2):
            for nt in range(2):
                Cc = '0' if (hd == 0 and t == 0) else vr(ACC+16*nt, 16)
                e(f'{MF32} {vr(ACC+16*nt,16)}, {vr(b+8*nt+4*t,4)}, {vr(OF+8*hd+4*t,4)}, {Cc}')
                e(*rd[2*k:2*k+2]); k += 1
                if k == 4 and nload < 16: oload(nload); nload += 1
    e.c('STAMP 2')
    e('s_nop 7', 's_nop 3')
    for nt in range(2):
        for rg in range(4):
            a = ACC + 16*nt + 4*rg; d = 64 + 8*nt + 2*rg
            e(f'v_cvt_pk_bf16_f32 v{d}, v{a}, v{a+1}', f'v_cvt_pk_bf16_f32 v{d+1}, v{a+2}, v{a+3}')
            e(f'ds_write_b64 v7, {vr(d,2)} offset:{64*nt + 16*rg}')
    e('s_waitcnt lgkmcnt(0)')
    for i in range(4): e(f'ds_read_b128 {vr(80+4*i,4)}, v8 offset:{8*RS*i}')
    for i in range(4):
        e(f's_add_u32 s40, s39, {8*1792*i}', f's_waitcnt lgkmcnt({3-i})', f'buffer_store_dwordx4 {vr(80+4*i,4)}, v9, s[20:23], s40 offen{st}')
    e('s_endpgm')
    e.label('L_k3_loader')
    e('s_sub_u32 s28, s28, 4')
    e('v_lshrrev_b32 v7, 3, v0', 's_lshl_b32 s36, s28, 3', 'v_add_u32 v7, s36, v7', 'v_mul_u32_u24 v7, 896, v7')
    e('v_and_b32 v5, 7, v0', 'v_bfe_u32 v6, v0, 4, 1', 'v_lshlrev_b32 v6, 2, v6', 'v_xor_b32 v5, v5, v6', 'v_lshl_add_u32 v4, v5, 4, v7')
    e('s_lshl_b32 s37, s30, 7', 'v_add_u32 v4, s37, v4', 's_lshl_b32 s48, s28, 10')
    e('s_waitcnt lgkmcnt(0)')
    e('s_cmp_eq_u32 s29, 0', 's_cselect_b32 s14, s4, s6', 's_cselect_b32 s15, s5, s7')
    srd(e, 16, 14, 15, 448*896)
    def wl(k): e(f's_add_u32 m0, s48, {k*4096}', f's_mov_b32 s50, {k*32*896}', 'buffer_load_dwordx4 v4, s[16:19], s50 offen lds')
    kmax = [-(-14*(g+1)//4) - 1 for g in range(4)]
    if lsplit:
        for k in range(kmax[1]+1): wl(k)
        e(f's_waitcnt vmcnt({kmax[1]-kmax[0]})', 's_barrier')
        for k in range(kmax[1]+1, 14): wl(k)
        for g in range(1, 4): e(f's_waitcnt vmcnt({13-kmax[g]})', 's_barrier')
    else:
        for k in range(14): wl(k)
        for g in range(4): e(f's_waitcnt vmcnt({13-kmax[g]})', 's_barrier')
    e.label('L_k3_end')
    e('s_endpgm')
    return e.text(), dict(name='proj_kernel', vgpr=224, sgpr=64, grid=224, block=512, lds=57344+4*4608)


if __name__ == '__main__':
    ks = [gen_k1(), gen_k2(), gen_k3()]
    assemble(ks, sys.argv[1] if len(sys.argv) > 1 else 'k.s')
```

```python
from gen import E, vr, sr, srd, f32, assemble, WS_Q, WS_KV, WS_PSTRIDE, WS_O, WS_BYTES, QSCALE
import sys
MF32 = 'v_mfma_f32_32x32x16_bf16'
MF16 = 'v_mfma_f32_16x16x32_bf16'
OFFM = 32.0

def gen_k1(st=''):
    e = E()
    CH = 40960; XO = 24576; NS = 4
    e.label('qkv_kernel')
    e('s_cmp_ge_u32 s2, 256', 's_cbranch_scc1 L_k1_end')
    e('s_load_dwordx4 s[4:7], s[0:1], 0', 's_load_dwordx4 s[8:11], s[0:1], 24', 's_load_dwordx2 s[12:13], s[0:1], 64')
    e('v_lshrrev_b32 v1, 6, v0', 'v_and_b32 v0, 63, v0')
    e('s_and_b32 s32, s2, 7', 's_lshr_b32 s33, s2, 3')
    e('v_readfirstlane_b32 s28, v1')
    e('s_cmp_ge_u32 s33, 28', 's_cbranch_scc1 L_k1_pads')
    e('s_lshr_b32 s29, s32, 2')
    e('s_and_b32 s31, s32, 3', 's_lshl_b32 s31, s31, 2', 's_and_b32 s34, s33, 3', 's_add_u32 s31, s31, s34')
    e('s_lshr_b32 s30, s33, 2')
    e('s_cmp_ge_u32 s28, 4', 's_cbranch_scc1 L_k1_loader')
    e('s_and_b32 s34, s28, 1', 's_lshr_b32 s35, s28, 1')
    e('v_and_b32 v20, 31, v0', 'v_lshrrev_b32 v21, 5, v0')
    e('v_bfe_u32 v22, v20, 1, 3', 'v_xor_b32 v22, v22, v21')
    e('s_lshl_b32 s36, s34, 13', f's_add_u32 s36, s36, {XO}')
    e('v_lshlrev_b32 v23, 7, v20', 'v_add_u32 v23, s36, v23')
    for t in range(4):
        e(f'v_xor_b32 v24, {2*t}, v22', f'v_lshl_add_u32 v{10+t}, v24, 4, v23')
    e('v_bfe_u32 v24, v0, 2, 2', 'v_lshl_add_u32 v25, v21, 3, v24', 'v_lshlrev_b32 v25, 7, v25')
    e('v_lshrrev_b32 v24, 1, v24', 'v_xor_b32 v24, s35, v24', 'v_lshl_add_u32 v25, v24, 6, v25')
    e('v_bfe_u32 v24, v0, 4, 1', 'v_lshl_add_u32 v25, v24, 5, v25', 'v_and_b32 v24, 3, v0', 'v_lshl_add_u32 v14, v24, 3, v25')
    e('s_lshl_b32 s36, s30, 4', 's_lshl_b32 s37, s35, 3', 's_add_u32 s36, s36, s37')
    for rg in range(4):
        e(f'v_add_u32 v24, {2*rg}, v21', 'v_add_u32 v24, s36, v24')
        e('v_mul_u32_u24 v25, 147, v24', 'v_lshrrev_b32 v25, 10, v25')
        e('v_mul_u32_u24 v26, 7, v25', 'v_sub_u32 v26, v24, v26')
        e('v_lshrrev_b32 v27, 2, v26', 'v_lshlrev_b32 v27, 10, v27')
        e('v_and_b32 v28, 1, v26', 'v_lshl_add_u32 v27, v28, 9, v27')
        e('v_bfe_u32 v28, v26, 1, 1', 'v_lshl_add_u32 v27, v28, 3, v27', 'v_lshl_add_u32 v27, v20, 4, v27')
        e(f'v_lshl_add_u32 v{2+rg}, v25, 17, v27', f'v_lshl_add_u32 v{6+rg}, v25, 18, v27')
    e('s_lshl_b32 s36, s36, 2', 'v_add_u32 v24, s36, v20', 'v_mul_u32_u24 v25, 2341, v24', 'v_lshrrev_b32 v25, 16, v25')
    e('v_mul_u32_u24 v26, 28, v25', 'v_sub_u32 v26, v24, v26', 'v_lshl_add_u32 v26, v21, 5, v26', 'v_lshlrev_b32 v26, 4, v26', 'v_lshl_add_u32 v29, v25, 18, v26')
    e('s_mul_i32 s50, s29, %d' % WS_PSTRIDE)
    e('s_lshl_b32 s51, s31, 2', 's_lshl_b32 s37, s34, 1', 's_add_u32 s51, s51, s37')
    e('s_lshl_b32 s52, s51, 11', 's_add_u32 s52, s52, s50')
    e('s_lshl_b32 s54, s51, 12', 's_add_u32 s54, s54, s50', f's_add_u32 s54, s54, {WS_KV}', 's_add_u32 s53, s54, 4096')
    e(f's_mov_b32 s55, {f32(QSCALE)}', 's_cmp_eq_u32 s29, 0', 's_cselect_b32 s55, s55, 1.0')
    e('s_waitcnt lgkmcnt(0)')
    srd(e, 24, 12, 13, WS_BYTES)
    FR = 32; ACC = 72
    def reads(T):
        c, t = divmod(T, 4)
        b = FR + 20*(T % 2)
        r = [f'ds_read_b128 {vr(b,4)}, v{15+t}', f'ds_read_b128 {vr(b+4,4)}, v{15+t} offset:4096']
        for L in range(3):
            for ee in range(2):
                r.append(f'ds_read_b64_tr_b16 {vr(b+8+4*L+2*ee,2)}, v19 offset:{L*8192 + t*2048 + ee*512}')
        return r
    def sync(c):
        slot = c % NS
        for t in range(4): e(f'v_add_u32 v{15+t}, {slot*CH}, v{10+t}')
        e(f'v_add_u32 v19, {slot*CH}, v14')
        e('s_barrier')
    e.c('STAMP 0')
    sync(0)
    e.c('STAMP 1')
    e(*reads(0))
    for T in range(28):
        b = FR + 20*(T % 2)
        e('s_waitcnt lgkmcnt(0)')
        rd = []
        if T + 1 < 28:
            if (T+1) % 4 == 0: sync((T+1)//4)
            rd = reads(T+1)
        def C(a): return '0' if T == 0 else vr(a, 16)
        k = 0
        for L in range(3):
            for rt in range(2):
                a = ACC + 16*(2*L+rt)
                if L < 2: e(f'{MF32} {vr(a,16)}, {vr(b+8+4*L,4)}, {vr(b+4*rt,4)}, {C(a)}')
                else:     e(f'{MF32} {vr(a,16)}, {vr(b+4*rt,4)}, {vr(b+8+4*L,4)}, {C(a)}')
                e(*rd[2*k:2*k+2]); k += 1
    e.c('STAMP 2')
    for rt in range(2):
        a = ACC + 16*rt
        if rt == 0: e('s_nop 7')
        for r in range(16): e(f'v_mul_f32 v{a+r}, s55, v{a+r}')
        for k in range(8): e(f'v_cvt_pk_bf16_f32 v{32+8*rt+k}, v{a+2*k}, v{a+2*k+1}')
        for rg in range(4): e(f'buffer_store_dwordx2 {vr(32+8*rt+2*rg,2)}, v{2+rg}, s[24:27], s52 offen offset:{2048*rt}{st}')
    for rt in range(2):
        a = ACC + 32 + 16*rt
        for k in range(8): e(f'v_cvt_pk_bf16_f32 v{48+8*rt+k}, v{a+2*k}, v{a+2*k+1}')
        for rg in range(4): e(f'buffer_store_dwordx2 {vr(48+8*rt+2*rg,2)}, v{6+rg}, s[24:27], s{54-rt} offen{st}')
    for rt in range(2):
        a = ACC + 64 + 16*rt
        for k in range(8): e(f'v_cvt_pk_bf16_f32 v{ACC+8*rt+k}, v{a+2*k}, v{a+2*k+1}')
        e(f'buffer_store_dwordx4 {vr(ACC+8*rt,4)}, v29, s[24:27], s{54-rt} offen offset:2048{st}',
          f'buffer_store_dwordx4 {vr(ACC+8*rt+4,4)}, v29, s[24:27], s{54-rt} offen offset:3072{st}')
    e('s_endpgm')
    e.label('L_k1_loader')
    e('s_sub_u32 s28, s28, 4')
    e('s_lshl_b32 s35, s31, 7', 's_lshl_b32 s36, s28, 5', 's_add_u32 s35, s35, s36')
    e('v_lshrrev_b32 v7, 3, v0', 'v_add_u32 v4, s35, v7', 'v_mul_u32_u24 v4, 896, v4')
    e('v_and_b32 v5, 7, v0', 'v_lshrrev_b32 v6, 4, v0', 'v_xor_b32 v8, v5, v6')
    e('v_lshl_add_u32 v2, v8, 4, v4', 'v_xor_b32 v8, 4, v8', 'v_lshl_add_u32 v3, v8, 4, v4')
    e('s_lshl_b32 s36, s28, 4', 'v_add_u32 v7, s36, v7', 'v_mul_u32_u24 v7, 2688, v7', 'v_and_b32 v6, 1, v6', 'v_lshlrev_b32 v6, 2, v6', 'v_xor_b32 v5, v5, v6')
    e('v_lshl_add_u32 v4, v5, 4, v7', 's_lshl_b32 s37, s30, 7', 'v_add_u32 v4, s37, v4')
    e('s_mov_b32 s44, 0', 's_mov_b32 s45, 7168', 's_mov_b32 s46, 14336', 's_mov_b32 s47, 21504')
    e('s_lshl_b32 s48, s28, 12', 's_lshl_b32 s49, s28, 11')
    e('s_waitcnt lgkmcnt(0)')
    e('s_cmp_eq_u32 s29, 0', 's_cselect_b32 s14, s4, s8', 's_cselect_b32 s15, s5, s9', 's_cselect_b32 s40, s6, s10', 's_cselect_b32 s41, s7, s11')
    srd(e, 16, 14, 15, 2048*896)
    srd(e, 20, 40, 41, 448*2688)
    def dma(c):
        slot = c % NS
        e(f's_mov_b32 s50, {c*172032}', f's_mov_b32 s51, {c*172032 + 21504}')
        for q in range(4):
            e(f's_add_u32 m0, s48, {slot*CH + XO + q*1024 - c*128}', 's_nop 0',
              f'buffer_load_dwordx4 v{2+(q&1)}, s[16:19], s{44+q} offen offset:{c*128} lds')
        for L in range(3):
            for i in range(2):
                e(f's_add_u32 m0, s49, {slot*CH + L*8192 + i*1024 - L*896}', 's_nop 0',
                  f'buffer_load_dwordx4 v4, s[20:23], s{50+i} offen offset:{L*896} lds')
    e.c('STAMP 0')
    dma(0); dma(1)
    e.c('STAMP 1')
    issued = 2
    for c in range(7):
        e(f's_waitcnt vmcnt({10*(issued-1-c)})')
        if c in (0,6): e.c('STAMP %d' % (2 if c==0 else 3))
        e('s_barrier')
        n = 2 if c == 0 else 1
        for _ in range(n):
            if issued < 7: dma(issued); issued += 1
    e('s_endpgm')
    e.label('L_k1_pads')
    e('s_sub_u32 s33, s33, 28', 's_lshl_b32 s33, s33, 3', 's_add_u32 s33, s33, s32', 's_lshl_b32 s33, s33, 3', 's_add_u32 s33, s33, s28', 's_lshl_b32 s33, s33, 6')
    e('v_add_u32 v1, s33, v0')
    e('v_mov_b32 v8, 0', 'v_mov_b32 v9, 0', 'v_mov_b32 v10, 0', 'v_mov_b32 v11, 0')
    e('v_mov_b32 v12, 0x3f803f80', 'v_mov_b32 v13, 0x00003f80')
    e('v_and_b32 v2, 31, v1', 'v_lshrrev_b32 v3, 5, v1')
    e('v_lshlrev_b32 v2, 4, v2', 'v_add_u32 v2, 1544, v2')
    e('v_lshl_add_u32 v4, v3, 11, v2', 'v_lshl_add_u32 v5, v3, 12, v2')
    e('v_and_b32 v2, 3, v1', 'v_bfe_u32 v3, v1, 2, 2', 'v_lshrrev_b32 v6, 4, v1')
    e('v_lshlrev_b32 v6, 12, v6', 'v_lshl_add_u32 v6, v3, 9, v6', 'v_lshl_add_u32 v6, v2, 4, v6', 'v_add_u32 v6, %d, v6' % (2048 + 28*16))
    e('v_cmp_eq_u32 vcc, 0, v2', 's_nop 1')
    for k in range(4): e(f'v_cndmask_b32 v{16+k}, v8, v12, vcc')
    e('s_waitcnt lgkmcnt(0)')
    srd(e, 24, 12, 13, WS_BYTES)
    for p in range(2):
        for i in range(2):
            e(f's_mov_b32 s40, {p*WS_PSTRIDE + WS_Q + i*(1<<20)}', f's_mov_b32 s41, {p*WS_PSTRIDE + WS_KV + i*(2<<20)}')
            e(f'buffer_store_dwordx2 v[8:9], v4, s[24:27], s40 offen{st}', f'buffer_store_dwordx2 v[12:13], v5, s[24:27], s41 offen{st}')
        e(f's_mov_b32 s42, {p*WS_PSTRIDE + WS_KV}', f'buffer_store_dwordx4 v[16:19], v6, s[24:27], s42 offen{st}')
    e.label('L_k1_end')
    e('s_endpgm')
    return e.text(), dict(name='qkv_kernel', vgpr=168, sgpr=64, grid=256, block=512, lds=NS*CH)

def gen_k3(st=''):
    e = E()
    e.label('proj_kernel')
    e('s_cmp_ge_u32 s2, 224', 's_cbranch_scc1 L_k3_end')
    e('s_load_dwordx2 s[4:5], s[0:1], 16', 's_load_dwordx2 s[6:7], s[0:1], 40', 's_load_dwordx2 s[8:9], s[0:1], 48', 's_load_dwordx2 s[12:13], s[0:1], 64')
    e('v_lshrrev_b32 v1, 6, v0', 'v_and_b32 v0, 63, v0')
    e('s_and_b32 s32, s2, 7', 's_lshr_b32 s33, s2, 3')
    e('v_readfirstlane_b32 s28, v1')
    e('s_lshr_b32 s29, s32, 2')
    e('s_and_b32 s31, s32, 3', 's_lshl_b32 s31, s31, 2', 's_and_b32 s34, s33, 3', 's_add_u32 s31, s31, s34')
    e('s_lshr_b32 s30, s33, 2')
    e('s_cmp_ge_u32 s28, 4', 's_cbranch_scc1 L_k3_loader')
    e('v_lshlrev_b32 v2, 4, v0')
    e('s_lshl_b32 s34, s31, 2', 's_add_u32 s34, s34, s28', 's_lshl_b32 s34, s34, 15', 's_lshl_b32 s35, s29, 21', 's_add_u32 s34, s34, s35', f's_add_u32 s34, s34, {WS_O}')
    e('s_waitcnt lgkmcnt(0)')
    srd(e, 24, 12, 13, WS_BYTES)
    srd(e, 20, 8, 9, 2048*1792)
    OF = 64
    PF = 6
    def oload(hd):
        if hd % 2 == 0: e(f's_add_u32 s36, s34, {hd*2048}')
        o = (hd % 2)*2048
        e(f'buffer_load_dwordx4 {vr(OF+8*hd,4)}, v2, s[24:27], s36 offen offset:{o}', f'buffer_load_dwordx4 {vr(OF+8*hd+4,4)}, v2, s[24:27], s36 offen offset:{o+1024}')
    for hd in range(PF): oload(hd)
    e('v_lshrrev_b32 v21, 5, v0', 'v_bfe_u32 v24, v0, 2, 2', 'v_lshl_add_u32 v25, v21, 2, v24', 'v_lshlrev_b32 v25, 7, v25')
    e('v_bfe_u32 v26, v0, 4, 1', 'v_lshl_add_u32 v25, v26, 5, v25', 'v_and_b32 v26, 3, v0', 'v_lshl_add_u32 v25, v26, 3, v25')
    e('v_lshrrev_b32 v24, 1, v24', 'v_lshl_add_u32 v3, v24, 6, v25', 'v_xor_b32 v4, 64, v3')
    e('v_lshlrev_b32 v26, 10, v21', 'v_sub_u32 v5, v3, v26', 'v_sub_u32 v6, v4, v26')
    RS = 144
    e('s_mul_i32 s37, s28, 4608', 's_add_u32 s37, s37, 57344')
    e('v_and_b32 v20, 31, v0', f'v_mul_u32_u24 v7, {RS}, v20', 'v_lshl_add_u32 v7, v21, 3, v7', 'v_add_u32 v7, s37, v7')
    e('v_lshrrev_b32 v24, 3, v0', 'v_and_b32 v25, 7, v0', f'v_mul_u32_u24 v8, {RS}, v24', 'v_lshl_add_u32 v8, v25, 4, v8', 'v_add_u32 v8, s37, v8')
    e('v_mul_u32_u24 v9, 1792, v24', 'v_lshl_add_u32 v9, v25, 4, v9')
    e('s_lshl_b32 s39, s31, 7', 's_lshl_b32 s40, s28, 5', 's_add_u32 s39, s39, s40', 's_mul_i32 s39, s39, 1792', 's_mul_i32 s40, s29, 896', 's_add_u32 s39, s39, s40', 's_lshl_b32 s40, s30, 7', 's_add_u32 s39, s39, s40')
    ACC = 32; AF = 192
    def reads(hd):
        b = AF + 16*(hd % 2); r = []
        for nt in range(2):
            for t in range(2):
                for ee in range(2):
                    a = (5+nt) if (t == 1 and ee == 1) else (3+nt)
                    r.append(f'ds_read_b64_tr_b16 {vr(b+8*nt+4*t+2*ee,2)}, v{a} offset:{hd*3584 + t*2048 + ee*1024}')
        return r
    e.c('STAMP 0')
    e('s_barrier')
    e.c('STAMP 1')
    e(*reads(0))
    nload = PF
    for hd in range(16):
        b = AF + 16*(hd % 2)
        if hd + 1 < 16 and (hd+1) % 4 == 0: e('s_barrier')
        e(f's_waitcnt vmcnt({2*(nload-1-hd)}) lgkmcnt(0)')
        rd = reads(hd+1) if hd + 1 < 16 else []
        k = 0
        for t in range(2):
            for nt in range(2):
                Cc = '0' if (hd == 0 and t == 0) else vr(ACC+16*nt, 16)
                e(f'{MF32} {vr(ACC+16*nt,16)}, {vr(b+8*nt+4*t,4)}, {vr(OF+8*hd+4*t,4)}, {Cc}')
                e(*rd[2*k:2*k+2]); k += 1
                if k == 4 and nload < 16: oload(nload); nload += 1
    e.c('STAMP 2')
    e('s_nop 7', 's_nop 3')
    for nt in range(2):
        for rg in range(4):
            a = ACC + 16*nt + 4*rg; d = 64 + 8*nt + 2*rg
            e(f'v_cvt_pk_bf16_f32 v{d}, v{a}, v{a+1}', f'v_cvt_pk_bf16_f32 v{d+1}, v{a+2}, v{a+3}')
            e(f'ds_write_b64 v7, {vr(d,2)} offset:{64*nt + 16*rg}')
    e('s_waitcnt lgkmcnt(0)')
    for i in range(4): e(f'ds_read_b128 {vr(80+4*i,4)}, v8 offset:{8*RS*i}')
    for i in range(4):
        e(f's_add_u32 s40, s39, {8*1792*i}', f's_waitcnt lgkmcnt({3-i})', f'buffer_store_dwordx4 {vr(80+4*i,4)}, v9, s[20:23], s40 offen{st}')
    e('s_endpgm')
    e.label('L_k3_loader')
    e('s_sub_u32 s28, s28, 4')
    e('v_lshrrev_b32 v7, 3, v0', 's_lshl_b32 s36, s28, 3', 'v_add_u32 v7, s36, v7', 'v_mul_u32_u24 v7, 896, v7')
    e('v_and_b32 v5, 7, v0', 'v_bfe_u32 v6, v0, 4, 1', 'v_lshlrev_b32 v6, 2, v6', 'v_xor_b32 v5, v5, v6', 'v_lshl_add_u32 v4, v5, 4, v7')
    e('s_lshl_b32 s37, s30, 7', 'v_add_u32 v4, s37, v4', 's_lshl_b32 s48, s28, 10')
    e('s_waitcnt lgkmcnt(0)')
    e('s_cmp_eq_u32 s29, 0', 's_cselect_b32 s14, s4, s6', 's_cselect_b32 s15, s5, s7')
    srd(e, 16, 14, 15, 448*896)
    for k in range(14):
        e(f's_add_u32 m0, s48, {k*4096}', f's_mov_b32 s50, {k*32*896}', 'buffer_load_dwordx4 v4, s[16:19], s50 offen lds')
    for g in range(4):
        kmax = -(-14*(g+1)//4) - 1
        e(f's_waitcnt vmcnt({13-kmax})', 's_barrier')
    e.label('L_k3_end')
    e('s_endpgm')
    return e.text(), dict(name='proj_kernel', vgpr=224, sgpr=64, grid=224, block=512, lds=57344+4*4608)

if __name__ == '__main__':
    assert all((g*147)>>10 == g//7 for g in range(128))
    assert all((n*2341)>>16 == n//28 for n in range(448))
    from gen2 import gen_k2
    ks = [gen_k1(), gen_k2(), gen_k3()]
    assemble(ks, sys.argv[1] if len(sys.argv) > 1 else 'k.s')
```

```python
from gen import E, vr, sr, srd, f32, assemble, WS_Q, WS_KV, WS_PSTRIDE, WS_O, WS_BYTES, QSCALE
import sys
MF32 = 'v_mfma_f32_32x32x16_bf16'
MF16 = 'v_mfma_f32_16x16x32_bf16'
OFFM = 32.0

def interleave(a, b):
    out = []; i = j = 0
    while i < len(a) or j < len(b):
        if j >= len(b) or (i < len(a) and i*len(b) <= j*len(a)):
            out.append(a[i]); i += 1
        else:
            out.append(b[j]); j += 1
    return out

def gen_k1(st='', prefetch=True):
    e = E()
    CH = 40960; XO = 24576; NS = 4
    e.label('qkv_kernel')
    e('s_cmp_ge_u32 s2, 256', 's_cbranch_scc1 L_k1_end')
    e('s_load_dwordx4 s[4:7], s[0:1], 0', 's_load_dwordx4 s[8:11], s[0:1], 24', 's_load_dwordx2 s[12:13], s[0:1], 64')
    e('v_lshrrev_b32 v1, 6, v0', 'v_and_b32 v0, 63, v0')
    e('s_and_b32 s32, s2, 7', 's_lshr_b32 s33, s2, 3')
    e('v_readfirstlane_b32 s28, v1')
    e('s_cmp_ge_u32 s33, 28', 's_cbranch_scc1 L_k1_pads')
    e('s_lshr_b32 s29, s32, 2')
    e('s_and_b32 s31, s32, 3', 's_lshl_b32 s31, s31, 2', 's_and_b32 s34, s33, 3', 's_add_u32 s31, s31, s34')
    e('s_lshr_b32 s30, s33, 2')
    e('s_cmp_ge_u32 s28, 4', 's_cbranch_scc1 L_k1_loader')
    e('s_and_b32 s34, s28, 1', 's_lshr_b32 s35, s28, 1')
    e('v_and_b32 v20, 31, v0', 'v_lshrrev_b32 v21, 5, v0')
    if prefetch:
        e('s_mul_i32 s38, s31, 7', 's_add_u32 s38, s38, s30')
        e('s_lshl_b32 s39, s38, 7', 's_lshl_b32 s40, s34, 6', 's_add_u32 s39, s39, s40')
        e('s_mul_i32 s40, s38, 84', 's_mul_i32 s41, s34, 42', 's_add_u32 s40, s40, s41')
        e('s_cmp_eq_u32 s35, 0', 's_cselect_b32 s39, s39, s40')
        e('v_min_u32 v30, 41, v0', 'v_mov_b32 v31, v0', 's_cselect_b64 vcc, -1, 0', 'v_cndmask_b32 v30, v30, v31, vcc')
        e('v_add_u32 v30, s39, v30', 'v_lshlrev_b32 v30, 7, v30')
    e('v_bfe_u32 v22, v20, 1, 3', 'v_xor_b32 v22, v22, v21')
    e('s_lshl_b32 s36, s34, 13', f's_add_u32 s36, s36, {XO}')
    e('v_lshlrev_b32 v23, 7, v20', 'v_add_u32 v23, s36, v23')
    for t in range(4):
        e(f'v_xor_b32 v24, {2*t}, v22', f'v_lshl_add_u32 v{10+t}, v24, 4, v23')
    e('v_bfe_u32 v24, v0, 2, 2', 'v_lshl_add_u32 v25, v21, 3, v24', 'v_lshlrev_b32 v25, 7, v25')
    e('v_lshrrev_b32 v24, 1, v24', 'v_xor_b32 v24, s35, v24', 'v_lshl_add_u32 v25, v24, 6, v25')
    e('v_bfe_u32 v24, v0, 4, 1', 'v_lshl_add_u32 v25, v24, 5, v25', 'v_and_b32 v24, 3, v0', 'v_lshl_add_u32 v14, v24, 3, v25')
    e('s_waitcnt lgkmcnt(0)')
    if prefetch:
        e('s_cmp_eq_u32 s29, 0', 's_cselect_b32 s14, s4, s8', 's_cselect_b32 s15, s5, s9', 's_cselect_b32 s40, s6, s10', 's_cselect_b32 s41, s7, s11')
        e('s_cmp_eq_u32 s35, 0', 's_cselect_b32 s16, s14, s40', 's_cselect_b32 s17, s15, s41', f's_mov_b32 s18, {448*2688}', f's_cselect_b32 s18, {2048*896}, s18', 's_mov_b32 s19, 0x00020000')
        e('buffer_load_dword v31, v30, s[16:19], 0 offen')
    srd(e, 24, 12, 13, WS_BYTES)
    e('s_lshl_b32 s36, s30, 4', 's_lshl_b32 s37, s35, 3', 's_add_u32 s36, s36, s37')
    for rg in range(4):
        e(f'v_add_u32 v24, {2*rg}, v21', 'v_add_u32 v24, s36, v24')
        e('v_mul_u32_u24 v25, 147, v24', 'v_lshrrev_b32 v25, 10, v25')
        e('v_mul_u32_u24 v26, 7, v25', 'v_sub_u32 v26, v24, v26')
        e('v_lshlrev_b32 v27, 8, v26', 'v_lshl_add_u32 v27, v20, 3, v27')
        e(f'v_lshl_add_u32 v{2+rg}, v25, 17, v27', f'v_lshl_add_u32 v{6+rg}, v25, 18, v27')
    e('s_lshl_b32 s36, s36, 2', 'v_add_u32 v24, s36, v20', 'v_mul_u32_u24 v25, 2341, v24', 'v_lshrrev_b32 v25, 16, v25')
    e('v_mul_u32_u24 v26, 28, v25', 'v_sub_u32 v26, v24, v26', 'v_lshl_add_u32 v26, v21, 5, v26', 'v_lshlrev_b32 v26, 4, v26', 'v_lshl_add_u32 v29, v25, 18, v26')
    e('s_mul_i32 s50, s29, %d' % WS_PSTRIDE)
    e('s_lshl_b32 s51, s31, 2', 's_lshl_b32 s37, s34, 1', 's_add_u32 s51, s51, s37')
    e('s_lshl_b32 s52, s51, 11', 's_add_u32 s52, s52, s50')
    e('s_lshl_b32 s54, s51, 12', 's_add_u32 s54, s54, s50', f's_add_u32 s54, s54, {WS_KV}', 's_add_u32 s53, s54, 4096')
    e(f's_mov_b32 s55, {f32(QSCALE)}', 's_cmp_eq_u32 s29, 0', 's_cselect_b32 s55, s55, 1.0')
    FR = 32; ACC = 72
    def reads(T):
        c, t = divmod(T, 4)
        b = FR + 20*(T % 2)
        r = [f'ds_read_b128 {vr(b,4)}, v{15+t}', f'ds_read_b128 {vr(b+4,4)}, v{15+t} offset:4096']
        for L in range(3):
            for ee in range(2):
                r.append(f'ds_read_b64_tr_b16 {vr(b+8+4*L+2*ee,2)}, v19 offset:{L*8192 + t*2048 + ee*512}')
        return r
    def sync(c):
        slot = c % NS
        for t in range(4): e(f'v_add_u32 v{15+t}, {slot*CH}, v{10+t}')
        e(f'v_add_u32 v19, {slot*CH}, v14')
        e('s_barrier')
    e.c('STAMP 0')
    sync(0)
    e.c('STAMP 1')
    e(*reads(0))
    for T in range(28):
        b = FR + 20*(T % 2)
        e('s_waitcnt lgkmcnt(0)')
        rd = []
        if T + 1 < 28:
            if (T+1) % 4 == 0: sync((T+1)//4)
            rd = reads(T+1)
        def C(a): return '0' if T == 0 else vr(a, 16)
        k = 0
        for L in range(3):
            for rt in range(2):
                a = ACC + 16*(2*L+rt)
                if L < 2: e(f'{MF32} {vr(a,16)}, {vr(b+8+4*L,4)}, {vr(b+4*rt,4)}, {C(a)}')
                else:     e(f'{MF32} {vr(a,16)}, {vr(b+4*rt,4)}, {vr(b+8+4*L,4)}, {C(a)}')
                e(*rd[2*k:2*k+2]); k += 1
    e.c('STAMP 2')
    for rt in range(2):
        a = ACC + 16*rt
        if rt == 0: e('s_nop 7')
        for r in range(16): e(f'v_mul_f32 v{a+r}, s55, v{a+r}')
        for k in range(8): e(f'v_cvt_pk_bf16_f32 v{32+8*rt+k}, v{a+2*k}, v{a+2*k+1}')
        for rg in range(4): e(f'buffer_store_dwordx2 {vr(32+8*rt+2*rg,2)}, v{2+rg}, s[24:27], s52 offen offset:{2048*rt}{st}')
    for rt in range(2):
        a = ACC + 32 + 16*rt
        for k in range(8): e(f'v_cvt_pk_bf16_f32 v{48+8*rt+k}, v{a+2*k}, v{a+2*k+1}')
        for rg in range(4): e(f'buffer_store_dwordx2 {vr(48+8*rt+2*rg,2)}, v{6+rg}, s[24:27], s{54-rt} offen{st}')
    for rt in range(2):
        a = ACC + 64 + 16*rt
        for k in range(8): e(f'v_cvt_pk_bf16_f32 v{ACC+8*rt+k}, v{a+2*k}, v{a+2*k+1}')
        e(f'buffer_store_dwordx4 {vr(ACC+8*rt,4)}, v29, s[24:27], s{54-rt} offen offset:2048{st}',
          f'buffer_store_dwordx4 {vr(ACC+8*rt+4,4)}, v29, s[24:27], s{54-rt} offen offset:3072{st}')
    e.c('STAMP 3')
    e('s_endpgm')
    e.label('L_k1_loader')
    e('s_sub_u32 s28, s28, 4')
    e('s_lshl_b32 s35, s31, 7', 's_lshl_b32 s36, s28, 5', 's_add_u32 s35, s35, s36')
    e('v_lshrrev_b32 v7, 3, v0', 'v_add_u32 v4, s35, v7', 'v_mul_u32_u24 v4, 896, v4')
    e('v_and_b32 v5, 7, v0', 'v_lshrrev_b32 v6, 4, v0', 'v_xor_b32 v8, v5, v6')
    e('v_lshl_add_u32 v2, v8, 4, v4', 'v_xor_b32 v8, 4, v8', 'v_lshl_add_u32 v3, v8, 4, v4')
    e('s_lshl_b32 s36, s28, 4', 'v_add_u32 v7, s36, v7', 'v_mul_u32_u24 v7, 2688, v7', 'v_and_b32 v6, 1, v6', 'v_lshlrev_b32 v6, 2, v6', 'v_xor_b32 v5, v5, v6')
    e('v_lshl_add_u32 v4, v5, 4, v7', 's_lshl_b32 s37, s30, 7', 'v_add_u32 v4, s37, v4')
    e('s_mov_b32 s44, 0', 's_mov_b32 s45, 7168', 's_mov_b32 s46, 14336', 's_mov_b32 s47, 21504')
    e('s_lshl_b32 s48, s28, 12', 's_lshl_b32 s49, s28, 11')
    e('s_waitcnt lgkmcnt(0)')
    e('s_cmp_eq_u32 s29, 0', 's_cselect_b32 s14, s4, s8', 's_cselect_b32 s15, s5, s9', 's_cselect_b32 s40, s6, s10', 's_cselect_b32 s41, s7, s11')
    srd(e, 16, 14, 15, 2048*896)
    srd(e, 20, 40, 41, 448*2688)
    def dma(c):
        slot = c % NS
        e(f's_mov_b32 s50, {c*172032}', f's_mov_b32 s51, {c*172032 + 21504}')
        for q in range(4):
            e(f's_add_u32 m0, s48, {slot*CH + XO + q*1024 - c*128}', 's_nop 0',
              f'buffer_load_dwordx4 v{2+(q&1)}, s[16:19], s{44+q} offen offset:{c*128} lds')
        for L in range(3):
            for i in range(2):
                e(f's_add_u32 m0, s49, {slot*CH + L*8192 + i*1024 - L*896}', 's_nop 0',
                  f'buffer_load_dwordx4 v4, s[20:23], s{50+i} offen offset:{L*896} lds')
    e.c('STAMP 0')
    dma(0); dma(1)
    e.c('STAMP 1')
    issued = 2
    for c in range(7):
        e(f's_waitcnt vmcnt({10*(issued-1-c)})')
        if c in (0, 6): e.c('STAMP %d' % (2 if c == 0 else 3))
        e('s_barrier')
        n = 2 if c == 0 else 1
        for _ in range(n):
            if issued < 7: dma(issued); issued += 1
    e('s_endpgm')
    e.label('L_k1_pads')
    e('s_sub_u32 s33, s33, 28', 's_lshl_b32 s33, s33, 3', 's_add_u32 s33, s33, s32', 's_lshl_b32 s33, s33, 3', 's_add_u32 s33, s33, s28', 's_lshl_b32 s33, s33, 6')
    e('v_add_u32 v1, s33, v0')
    e('v_mov_b32 v8, 0', 'v_mov_b32 v12, 0x3f803f80', 'v_mov_b32 v13, 0x00003f80', 'v_mov_b32 v14, 0x3f803f80', 'v_mov_b32 v15, 0x00003f80')
    e('v_and_b32 v2, 15, v1', 'v_lshrrev_b32 v6, 4, v1', 'v_lshlrev_b32 v6, 12, v6', 'v_lshl_add_u32 v5, v2, 4, v6', 'v_add_u32 v5, 1792, v5')
    e('v_and_b32 v2, 3, v1', 'v_bfe_u32 v3, v1, 2, 2')
    e('v_lshl_add_u32 v6, v3, 9, v6', 'v_lshl_add_u32 v6, v2, 4, v6', 'v_add_u32 v6, %d, v6' % (2048 + 28*16))
    e('v_cmp_eq_u32 vcc, 0, v2', 's_nop 1')
    for k in range(4): e(f'v_cndmask_b32 v{16+k}, v8, v12, vcc')
    e('s_waitcnt lgkmcnt(0)')
    srd(e, 24, 12, 13, WS_BYTES)
    for p in range(2):
        e(f's_mov_b32 s42, {p*WS_PSTRIDE + WS_KV}', f'buffer_store_dwordx4 v[12:15], v5, s[24:27], s42 offen{st}', f'buffer_store_dwordx4 v[16:19], v6, s[24:27], s42 offen{st}')
    e.label('L_k1_end')
    e('s_endpgm')
    return e.text(), dict(name='qkv_kernel', vgpr=168, sgpr=64, grid=256, block=512, lds=NS*CH)

def gen_k2(st='', wopf=True):
    e = E()
    SL = 32768; NSL = 4; BO = NSL*SL
    e.label('attn_kernel')
    e('s_cmp_ge_u32 s2, 256', 's_cbranch_scc1 L_k2_end')
    e('s_load_dwordx2 s[12:13], s[0:1], 64')
    if wopf: e('s_load_dwordx2 s[4:5], s[0:1], 16', 's_load_dwordx2 s[6:7], s[0:1], 40')
    e('v_lshrrev_b32 v1, 6, v0', 'v_and_b32 v0, 63, v0')
    e('s_and_b32 s3, s2, 7', 's_lshl_b32 s30, s3, 1', 's_bfe_u32 s3, s2, 0x10003', 's_add_u32 s30, s30, s3')
    e('v_readfirstlane_b32 s28, v1')
    e('s_lshr_b32 s31, s2, 4')
    e('v_lshlrev_b32 v2, 4, v0')
    e('s_and_b32 s32, s28, 3', 's_lshr_b32 s33, s28, 2')
    e('s_lshl_b32 s34, s30, 18', 's_lshl_b32 s35, s33, 17', 's_add_u32 s34, s34, s35', 's_lshl_b32 s35, s32, 12', 's_add_u32 s34, s34, s35', f's_add_u32 s34, s34, {WS_KV}')
    e('s_lshl_b32 s36, s28, 12')
    e('s_lshl_b32 s37, s30, 17', 's_lshl_b32 s38, s31, 13', 's_add_u32 s37, s37, s38')
    e(f's_add_u32 s39, s37, {WS_PSTRIDE + WS_Q}')
    e('s_lshl_b32 s38, s32, 11', 's_add_u32 s37, s37, s38')
    e('s_lshl_b32 s40, s31, 2', 's_add_u32 s40, s40, s28', 's_sub_u32 s40, s40, 3', 's_max_i32 s40, s40, 0', 's_min_u32 s40, s40, 63')
    e('s_lshl_b32 s40, s40, 12', 's_lshl_b32 s41, s30, 18', 's_add_u32 s40, s40, s41', f's_add_u32 s40, s40, {WS_PSTRIDE + WS_KV}')
    e('s_add_u32 s39, s39, s36', 's_cmp_lt_u32 s28, 2', 's_cselect_b32 s40, s39, s40')
    QF = 8; S0, S1 = 16, 32; P = 48; O = 56; KB = 72; VB = 88
    vCur, vNxt, vLane, vK8, vKCur, vKNxt, vKLane = 104, 105, 106, 107, 108, 109, 110
    e('v_and_b32 v3, 31, v0', 'v_lshrrev_b32 v4, 5, v0', f'v_lshlrev_b32 v{vK8}, 3, v3', f'v_lshl_add_u32 v{vK8}, v4, 8, v{vK8}')
    e('s_lshl_b32 s41, s33, 14', f'v_add_u32 v{vLane}, s41, v2', f'v_add_u32 v{vKLane}, s41, v{vK8}')
    bQ, bKp, bKc, bV0, bV1, bS, bC, bT = 112, 116, 120, 124, 128, 132, 140, 148
    e('v_and_b32 v3, 15, v0', 'v_lshrrev_b32 v4, 4, v0', 'v_lshrrev_b32 v5, 1, v4', 'v_and_b32 v6, 1, v4')
    e('v_lshlrev_b32 v7, 10, v5', 'v_lshl_add_u32 v7, v6, 8, v7', 'v_lshl_add_u32 v7, v3, 3, v7')
    e(f'v_lshlrev_b32 v{bT+8}, 9, v6', f'v_lshl_add_u32 v{bT+8}, v3, 4, v{bT+8}', f'v_lshl_add_u32 v{bT+8}, v5, 3, v{bT+8}')
    e('s_lshr_b32 s43, s28, 1', 's_and_b32 s44, s28, 1', 's_add_u32 s45, s28, 1', 's_and_b32 s46, s45, 1', 's_lshr_b32 s45, s45, 1')
    e('s_lshl_b32 s47, s43, 11', 's_lshl_b32 s48, s44, 7', 's_add_u32 s47, s47, s48', f's_add_u32 s47, s47, {BO}')
    e('s_lshl_b32 s49, s43, 12', f's_add_u32 s49, s49, {BO + 8192 + 4096}')
    e('s_lshl_b32 s50, s45, 12', f's_add_u32 s50, s50, {BO + 8192}')
    e('s_add_u32 s51, s49, s48', 's_lshl_b32 s52, s46, 7', 's_add_u32 s52, s52, s50')
    e('s_lshl_b32 s53, s44, 10', 's_add_u32 s53, s53, s49', 's_lshl_b32 s54, s46, 10', 's_add_u32 s54, s54, s50')
    e(f'v_add_u32 v{bT}, s47, v7', f'v_add_u32 v{bT+1}, s51, v7', f'v_add_u32 v{bT+2}, s52, v7', f'v_add_u32 v{bT+3}, s53, v{bT+8}', f'v_add_u32 v{bT+4}, s54, v{bT+8}')
    e('v_lshlrev_b32 v5, 2, v4', 'v_sub_u32 v5, v3, v5')
    e('s_or_b32 s55, s31, s28', 's_cmp_eq_u32 s55, 0', 's_cselect_b32 s56, 48, 16', 'v_add_u32 v6, s56, v5')
    e('v_mov_b32 v7, 0xf149f2ca', 'v_mov_b32 v1, 0')
    for r in range(8):
        src = 6 if r < 4 else 5
        e(f'v_subrev_u32 v3, {r%4}, v{src}', 'v_and_b32 v3, 0xfffffff1, v3', 'v_cmp_eq_u32 vcc, 0, v3', 's_nop 1', f'v_cndmask_b32 v{bC+r}, v7, v1, vcc')
    e('v_cmp_eq_u32 s[70:71], 3, v4')
    e(f's_mov_b32 s57, {f32(28 ** -0.5)}', f's_mov_b32 s58, {f32(1.4426950408889634)}', 's_mov_b32 s59, 0xffff0000')
    e('s_lshl_b32 s47, s31, 2', 's_add_u32 s47, s47, s43', 's_lshl_b32 s47, s47, 15', 's_lshl_b32 s48, s30, 11', 's_add_u32 s47, s47, s48', 's_lshl_b32 s48, s44, 8', 's_add_u32 s47, s47, s48', f's_add_u32 s47, s47, {WS_O + 0x200000}')
    e('s_mov_b32 s60, 0')
    e('s_waitcnt lgkmcnt(0)')
    e.c('STAMP 0')
    srd(e, 24, 12, 13, WS_BYTES)
    def dma(soff, m0_expr):
        e(m0_expr, 's_nop 0')
        for i in range(4): e(f'buffer_load_dwordx4 v2, s[24:27], s{soff} offen offset:{1024*i} lds')
    def qload():
        e(f'buffer_load_dwordx2 {vr(QF,2)}, v{vK8}, s[24:27], s37 offen', f'buffer_load_dwordx2 {vr(QF+2,2)}, v{vK8}, s[24:27], s37 offen offset:512',
          f'buffer_load_dwordx2 {vr(QF+4,2)}, v{vK8}, s[24:27], s37 offen offset:1024', f'buffer_load_dwordx2 {vr(QF+6,2)}, v{vK8}, s[24:27], s37 offen offset:1536')
    dma(34, 's_mov_b32 m0, s36')
    qload()
    dma(40, f's_add_u32 m0, s36, {BO}')
    e('s_add_u32 s41, s34, 16384'); dma(41, f's_add_u32 m0, s36, {SL}')
    e('s_add_u32 s41, s34, 32768'); dma(41, f's_add_u32 m0, s36, {2*SL}')
    if wopf:
        e('s_cmp_lt_u32 s2, 98', 's_cselect_b32 s41, s28, 1', 's_cmp_lg_u32 s41, 0', 's_cbranch_scc1 L_k2_nopf')
        e('s_cmp_lt_u32 s2, 49', 's_cselect_b32 s16, s4, s6', 's_cselect_b32 s17, s5, s7', f's_mov_b32 s18, {448*896}', 's_mov_b32 s19, 0x00020000')
        e('s_sub_u32 s41, s2, 49', 's_cselect_b32 s41, s2, s41')
        e('s_lshl_b32 s41, s41, 13', 'v_lshlrev_b32 v1, 7, v0', 'buffer_load_dword v111, v1, s[16:19], s41 offen')
        e('s_waitcnt vmcnt(9)', 's_branch L_k2_pfd')
        e.label('L_k2_nopf')
        e('s_waitcnt vmcnt(8)')
        e.label('L_k2_pfd')
    else:
        e('s_waitcnt vmcnt(8)')
    e('v_cmp_lt_u32 vcc, 31, v0', 'v_mov_b32 v1, 0')
    e('s_barrier')
    e.c('STAMP 1')
    A = []
    A += [f'ds_read2st64_b64 {vr(KB,4)}, v{vK8} offset0:0 offset1:1', f'ds_read2st64_b64 {vr(KB+4,4)}, v{vK8} offset0:2 offset1:3']
    A += [f'v_cndmask_b32 v{QF+6}, v{QF+6}, v1, vcc', f'v_cndmask_b32 v{QF+7}, v{QF+7}, v1, vcc']
    Bc = [f'ds_read2st64_b64 {vr(bQ,4)}, v{bT} offset0:0 offset1:1', f'ds_read2st64_b64 {vr(bKp,4)}, v{bT+2} offset0:0 offset1:1', f'ds_read2st64_b64 {vr(bKc,4)}, v{bT+1} offset0:0 offset1:1',
          f'ds_read_b64 {vr(bV0,2)}, v{bT+4} offset:2048', f'ds_read_b64 {vr(bV0+2,2)}, v{bT+3} offset:2048', f'ds_read_b64 {vr(bV1,2)}, v{bT+4} offset:2304', f'ds_read_b64 {vr(bV1+2,2)}, v{bT+3} offset:2304']
    e(*A); e(*Bc)
    e('s_waitcnt lgkmcnt(4)')
    e(f'v_cndmask_b32 v{bQ+2}, v{bQ+2}, v1, s[70:71]', f'v_cndmask_b32 v{bQ+3}, v{bQ+3}, v1, s[70:71]')
    e(f'{MF32} {vr(S0,16)}, {vr(KB,4)}, {vr(QF,4)}, 0')
    e(f'{MF32} {vr(S0,16)}, {vr(KB+4,4)}, {vr(QF+4,4)}, {vr(S0,16)}')
    e(f'{MF16} {vr(bS,4)}, {vr(bKp,4)}, {vr(bQ,4)}, {vr(bC,4)}')
    e(f'{MF16} {vr(bS+4,4)}, {vr(bKc,4)}, {vr(bQ,4)}, {vr(bC+4,4)}')
    for r in range(16): e(f'v_mov_b32 v{O+r}, 0')
    A = [f'v_max3_f32 v3, v{S0}, v{S0+1}, v{S0+2}']
    A += [f'v_max3_f32 v3, v3, v{S0+k}, v{S0+k+1}' for k in range(3, 15, 2)]
    A += [f'v_max_f32 v3, v3, v{S0+15}', 'v_mov_b32 v4, v3', 's_nop 1', 'v_permlane32_swap_b32 v3, v4', 'v_max_f32 v3, v3, v4', f'v_add_f32 v3, {f32(OFFM)}, v3']
    Bc = []
    T = bT + 10
    Bc += [f'v_cvt_pk_bf16_f32 v{T+k}, v{bS+2*k}, v{bS+2*k+1}' for k in range(4)]
    for k in range(4): Bc += [f'v_lshlrev_b32 v{bS+2*k}, 16, v{T+k}', f'v_and_b32 v{bS+2*k+1}, s59, v{T+k}']
    Bc += [f'v_mul_f32 v{bS+r}, s57, v{bS+r}' for r in range(8)]
    Bc += [f'v_cvt_pk_bf16_f32 v{T+k}, v{bS+2*k}, v{bS+2*k+1}' for k in range(4)]
    for k in range(4): Bc += [f'v_lshlrev_b32 v{bS+2*k}, 16, v{T+k}', f'v_and_b32 v{bS+2*k+1}, s59, v{T+k}']
    e(*interleave(A, Bc))
    a, b2 = T+4, T+5
    B2 = [f'v_max3_f32 v{a}, v{bS}, v{bS+1}, v{bS+2}', f'v_max3_f32 v{b2}, v{bS+3}, v{bS+4}, v{bS+5}', f'v_max3_f32 v{a}, v{a}, v{bS+6}, v{bS+7}', f'v_max_f32 v{a}, v{a}, v{b2}']
    B2 += [f'v_mov_b32 v{b2}, v{a}', 's_nop 1', f'v_permlane32_swap_b32 v{a}, v{b2}', f'v_max_f32 v{a}, v{a}, v{b2}']
    B2 += [f'v_mov_b32 v{b2}, v{a}', 's_nop 1', f'v_permlane16_swap_b32 v{a}, v{b2}', f'v_max_f32 v{a}, v{a}, v{b2}']
    B2 += [f'v_sub_f32 v{bS+r}, v{bS+r}, v{a}' for r in range(8)]
    B2 += [f'v_mul_f32 v{bS+r}, s58, v{bS+r}' for r in range(8)]
    B2 += [f'v_exp_f32 v{bS+r}, v{bS+r}' for r in range(8)]
    B2 += ['s_nop 0', f'v_add_f32 v{a}, v{bS}, v{bS+1}', f'v_add_f32 v{b2}, v{bS+2}, v{bS+3}', f'v_add_f32 v{T}, v{bS+4}, v{bS+5}', f'v_add_f32 v{T+1}, v{bS+6}, v{bS+7}',
           f'v_add_f32 v{a}, v{a}, v{b2}', f'v_add_f32 v{T}, v{T}, v{T+1}', f'v_add_f32 v{a}, v{a}, v{T}']
    B2 += [f'v_mov_b32 v{b2}, v{a}', 's_nop 1', f'v_permlane32_swap_b32 v{a}, v{b2}', f'v_add_f32 v{a}, v{a}, v{b2}']
    B2 += [f'v_mov_b32 v{b2}, v{a}', 's_nop 1', f'v_permlane16_swap_b32 v{a}, v{b2}', f'v_add_f32 v{a}, v{a}, v{b2}']
    B2 += [f'v_rcp_f32 v{a}, v{a}', 's_nop 0']
    B2 += [f'v_mul_f32 v{bS+r}, v{a}, v{bS+r}' for r in range(8)]
    B2 += [f'v_cvt_pk_bf16_f32 v{T+k}, v{bS+2*k}, v{bS+2*k+1}' for k in range(4)]
    B2 += ['s_waitcnt lgkmcnt(0)', 's_nop 0', f'{MF16} {vr(bS,4)}, {vr(bV0,4)}, {vr(T,4)}, 0', f'{MF16} {vr(bS+4,4)}, {vr(bV1,4)}, {vr(T,4)}, 0']
    B3 = [f'v_cvt_pk_bf16_f32 v{T+k}, v{bS+2*k}, v{bS+2*k+1}' for k in range(4)]
    B3 += [f'v_cndmask_b32 v{T+2}, v{T+2}, v1, s[70:71]', f'v_cndmask_b32 v{T+3}, v{T+3}, v1, s[70:71]']
    B3 += [f'buffer_store_dwordx2 {vr(T,2)}, v{bT+8}, s[24:27], s47 offen{st}', f'buffer_store_dwordx2 {vr(T+2,2)}, v{bT+8}, s[24:27], s47 offen offset:1024{st}']
    e(*B2)
    e('s_nop 7')
    e(*B3)
    e.label('L_k2_setmax')
    e('v_sub_f32 v3, 0, v3', 'v_and_b32 v4, s59, v3', 'v_sub_f32 v3, v3, v4', 'v_and_b32 v5, s59, v3', 'v_sub_f32 v3, v3, v5')
    e(f'ds_read2st64_b64 {vr(KB,4)}, v{vKLane} offset0:0 offset1:1', f'ds_read2st64_b64 {vr(KB+4,4)}, v{vKLane} offset0:2 offset1:3')
    e('v_lshrrev_b32 v4, 16, v4', 'v_or_b32 v4, v4, v5', 'v_lshrrev_b32 v3, 16, v3', 'v_cmp_lt_u32 vcc, 31, v0')
    e(f'ds_read2st64_b64 {vr(KB+8,4)}, v{vKLane} offset0:8 offset1:9', f'ds_read2st64_b64 {vr(KB+12,4)}, v{vKLane} offset0:10 offset1:11')
    e(f'v_cndmask_b32 v{QF+6}, v{QF+6}, v4, vcc', f'v_cndmask_b32 v{QF+7}, v{QF+7}, v3, vcc')
    e(f'ds_read_b128 {vr(VB,4)}, v{vLane} offset:2048', f'ds_read_b128 {vr(VB+4,4)}, v{vLane} offset:3072')
    e('s_waitcnt lgkmcnt(4)')
    e(f'{MF32} {vr(S0,16)}, {vr(KB,4)}, {vr(QF,4)}, 0')
    e(f'{MF32} {vr(S0,16)}, {vr(KB+4,4)}, {vr(QF+4,4)}, {vr(S0,16)}')
    e('s_mov_b32 s61, 0', 's_mov_b32 s62, 0', f's_mov_b32 s63, {SL}', f's_add_u32 s64, s36, {3*SL}', 's_add_u32 s65, s34, 49152')
    e('s_nop 3')
    e.c('STAMP 2')
    e('.p2align 6')
    e.label('L_k2_loop')
    e('s_waitcnt vmcnt(4)', 's_barrier')
    e(f'v_add_u32 v{vCur}, s62, v{vLane}', f'v_add_u32 v{vNxt}, s63, v{vLane}', f'v_add_u32 v{vKCur}, s62, v{vKLane}', f'v_add_u32 v{vKNxt}, s63, v{vKLane}')
    e('s_mov_b32 m0, s64')
    for i in range(4):
        Sc = S0 if i % 2 == 0 else S1
        Sn = S1 if i % 2 == 0 else S0
        Kn = KB + 8*((i+1) % 2); Kl = KB + 8*(i % 2)
        Vc = VB + 8*(i % 2); Vl = VB + 8*((i+1) % 2)
        ka, ko = (vKCur, (i+2)*8) if i+2 < 4 else (vKNxt, (i+2-4)*8)
        va, vo = (vCur, (i+1)*4096) if i+1 < 4 else (vNxt, 0)
        e('s_waitcnt lgkmcnt(0)')
        e(f'{MF32} {vr(Sn,16)}, {vr(Kn,4)}, {vr(QF,4)}, 0')
        e(f'ds_read2st64_b64 {vr(Kl,4)}, v{ka} offset0:{ko} offset1:{ko+1}', f'ds_read2st64_b64 {vr(Kl+4,4)}, v{ka} offset0:{ko+2} offset1:{ko+3}')
        for r in range(4): e(f'v_exp_f32 v{Sc+r}, v{Sc+r}')
        e(f'{MF32} {vr(Sn,16)}, {vr(Kn+4,4)}, {vr(QF+4,4)}, {vr(Sn,16)}')
        e(f'ds_read_b128 {vr(Vl,4)}, v{va} offset:{vo+2048}', f'ds_read_b128 {vr(Vl+4,4)}, v{va} offset:{vo+3072}')
        for r in range(4, 8): e(f'v_exp_f32 v{Sc+r}, v{Sc+r}')
        e(f'v_cvt_pk_bf16_f32 v{P}, v{Sc}, v{Sc+1}', f'v_cvt_pk_bf16_f32 v{P+1}, v{Sc+2}, v{Sc+3}')
        e(f'v_cvt_pk_bf16_f32 v{P+2}, v{Sc+4}, v{Sc+5}', f'v_cvt_pk_bf16_f32 v{P+3}, v{Sc+6}, v{Sc+7}')
        for r in range(8, 12): e(f'v_exp_f32 v{Sc+r}, v{Sc+r}')
        e(f'{MF32} {vr(O,16)}, {vr(Vc,4)}, {vr(P,4)}, {vr(O,16)}')
        e(f'buffer_load_dwordx4 v2, s[24:27], s65 offen offset:{1024*i} lds')
        for r in range(12, 16): e(f'v_exp_f32 v{Sc+r}, v{Sc+r}')
        e(f'v_cvt_pk_bf16_f32 v{P+4}, v{Sc+8}, v{Sc+9}', f'v_cvt_pk_bf16_f32 v{P+5}, v{Sc+10}, v{Sc+11}')
        e(f'v_cvt_pk_bf16_f32 v{P+6}, v{Sc+12}, v{Sc+13}', f'v_cvt_pk_bf16_f32 v{P+7}, v{Sc+14}, v{Sc+15}')
        if i == 3:
            e('s_add_u32 s64, s62, s36', 's_mov_b32 s62, s63', f's_add_u32 s63, s63, {SL}', f's_and_b32 s63, s63, {NSL*SL-1}')
            e('s_add_u32 s65, s65, 16384', 's_add_u32 s61, s61, 1', 's_cmp_ge_u32 s61, 5', 's_cselect_b32 s65, s66, s65', 's_cmp_lt_u32 s61, 8')
        else:
            if i == 0: e('s_mov_b32 s66, 0x7ff00000', 's_nop 0')
            else: e('s_nop 1')
        e(f'{MF32} {vr(O,16)}, {vr(Vc+4,4)}, {vr(P+4,4)}, {vr(O,16)}')
    e('s_cbranch_scc1 L_k2_loop')
    e.c('STAMP 3')
    X = BO
    e('s_lshl_b32 s41, s32, 12', f's_add_u32 s41, s41, {X}', 's_lshl_b32 s42, s33, 11', 's_add_u32 s43, s41, s42', 's_xor_b32 s42, s42, 2048', 's_add_u32 s44, s41, s42')
    e('v_add_u32 v3, s43, v2', 'v_add_u32 v4, s44, v2')
    e('s_lshl_b32 s41, s28, 8', f's_add_u32 s41, s41, {X+16384}', 's_xor_b32 s42, s41, 1024')
    e('v_lshlrev_b32 v5, 2, v0', 'v_add_u32 v6, s42, v5', 'v_add_u32 v5, s41, v5')
    e(f'v_mov_b32 v7, {X+20480}', 'v_mov_b32 v1, 0')
    e('s_cmp_eq_u32 s33, 0', 's_cbranch_scc1 L_k2_e0')
    e(f'ds_write_b128 v3, {vr(O,4)}', f'ds_write_b128 v3, {vr(O+4,4)} offset:1024', f'ds_write_b32 v5, v{O+12}')
    for r in range(8): e(f'v_mov_b32 v{O+r}, v{O+8+r}')
    e('s_branch L_k2_e1')
    e.label('L_k2_e0')
    e(f'ds_write_b128 v3, {vr(O+8,4)}', f'ds_write_b128 v3, {vr(O+12,4)} offset:1024', f'ds_write_b32 v5, v{O+12}', 'ds_write_b32 v7, v1')
    e.label('L_k2_e1')
    e('s_waitcnt lgkmcnt(0)', 's_barrier')
    e(f'ds_read_b128 {vr(S0,4)}, v4', f'ds_read_b128 {vr(S0+4,4)}, v4 offset:1024', f'ds_read_b32 v{S0+8}, v6')
    e('s_lshl_b32 s41, s31, 17', 's_lshl_b32 s42, s32, 15', 's_add_u32 s41, s41, s42', 's_lshl_b32 s42, s30, 11', 's_add_u32 s41, s41, s42', 's_lshl_b32 s42, s33, 10', 's_add_u32 s41, s41, s42', f's_add_u32 s41, s41, {WS_O}')
    e('s_cmp_eq_u32 s33, 1', 's_cselect_b32 s42, 31, 64', 'v_cmp_lt_u32 s[44:45], s42, v0')
    e('s_waitcnt lgkmcnt(0)')
    e(f'v_add_f32 v5, v{O+12}, v{S0+8}')
    for r in range(8): e(f'v_add_f32 v{O+r}, v{O+r}, v{S0+r}')
    e('v_mov_b32 v6, v5', 's_mov_b32 s42, 0x7e800000', 's_nop 0', 'v_permlane32_swap_b32 v6, v5')
    e(f'v_mul_f32 v6, 0, v{O}', f'v_mul_f32 v3, 0, v{O+1}')
    for r in range(2, 8, 2): e(f'v_fma_f32 v6, v{O+r}, 0, v6', f'v_fma_f32 v3, v{O+r+1}, 0, v3')
    e('v_rcp_f32 v4, v5', 'v_cmp_ngt_f32 vcc, s42, v5', 'v_cmp_u_f32 s[46:47], v6, v3')
    for r in range(8): e(f'v_mul_f32 v{O+r}, v4, v{O+r}')
    for k in range(4): e(f'v_cvt_pk_bf16_f32 v{P+k}, v{O+2*k}, v{O+2*k+1}')
    e(f'v_cndmask_b32 v{P+2}, v{P+2}, v1, s[44:45]', f'v_cndmask_b32 v{P+3}, v{P+3}, v1, s[44:45]')
    e(f'buffer_store_dwordx4 {vr(P,4)}, v2, s[24:27], s41 offen{st}')
    e('s_or_b64 vcc, vcc, s[46:47]', 's_cmp_eq_u32 s60, 1', 's_cselect_b64 vcc, 0, vcc')
    e('s_cmp_eq_u64 vcc, 0', 's_cbranch_scc1 L_k2_ok')
    e('v_mov_b32 v6, 1', 'ds_write_b32 v7, v6', 's_waitcnt lgkmcnt(0)')
    e.label('L_k2_ok')
    e('s_barrier')
    e('ds_read_b32 v4, v7', 's_waitcnt lgkmcnt(0)', 'v_readfirstlane_b32 s41, v4', 's_nop 3')
    e('s_cmp_eq_u32 s41, 0', 's_cbranch_scc1 L_k2_end')
    e('s_waitcnt vmcnt(0)', 's_barrier')
    e('s_mov_b32 s60, 1')
    dma(34, 's_mov_b32 m0, s36')
    e('s_add_u32 s41, s34, 16384'); dma(41, f's_add_u32 m0, s36, {SL}')
    e('s_add_u32 s41, s34, 32768'); dma(41, f's_add_u32 m0, s36, {2*SL}')
    e('v_cmp_lt_u32 vcc, 31, v0', 's_lshl_b32 s41, s30, 18', f's_add_u32 s41, s41, {WS_KV}', 's_mov_b32 s42, 0')
    e(f'v_cndmask_b32 v{QF+6}, v{QF+6}, v1, vcc', f'v_cndmask_b32 v{QF+7}, v{QF+7}, v1, vcc')
    e('v_mov_b32 v3, 0xff800000')
    for r in range(16): e(f'v_mov_b32 v{O+r}, 0')
    e.label('L_k2_maxloop')
    for k in range(4): e(f'buffer_load_dwordx2 {vr(KB+2*k,2)}, v{vK8}, s[24:27], s41 offen offset:{512*k}')
    e('s_waitcnt vmcnt(0)')
    e(f'{MF32} {vr(S0,16)}, {vr(KB,4)}, {vr(QF,4)}, 0')
    e(f'{MF32} {vr(S0,16)}, {vr(KB+4,4)}, {vr(QF+4,4)}, {vr(S0,16)}')
    e('s_nop 7', 's_nop 3')
    for k in range(0, 16, 2): e(f'v_max3_f32 v3, v3, v{S0+k}, v{S0+k+1}')
    e('s_add_u32 s41, s41, 4096', 's_add_u32 s42, s42, 1', 's_cmp_lt_u32 s42, 64', 's_cbranch_scc1 L_k2_maxloop')
    e('v_mov_b32 v4, v3', 's_nop 1', 'v_permlane32_swap_b32 v3, v4', 'v_max_f32 v3, v3, v4')
    e('s_barrier')
    e('s_branch L_k2_setmax')
    e.label('L_k2_end')
    e('s_endpgm')
    return e.text(), dict(name='attn_kernel', vgpr=168, sgpr=72, grid=256, block=512, lds=BO+32768)

if __name__ == '__main__':
    from g3 import gen_k3
    ks = [gen_k1(), gen_k2(), gen_k3()]
    assemble(ks, sys.argv[1] if len(sys.argv) > 1 else 'k.s')
```

```python
from gen import E, vr, sr, srd, f32, assemble, WS_Q, WS_KV, WS_PSTRIDE, WS_O, WS_BYTES, QSCALE
from g4 import interleave
import sys
MF32 = 'v_mfma_f32_32x32x16_bf16'
MF16 = 'v_mfma_f32_16x16x32_bf16'
OFFM = 32.0

def gen_k1(st=' sc1', rot=True):
    e = E()
    WQR = 114688; WREG = {1: 0, 2: 57344}
    e.label('qkv_kernel')
    e('s_cmp_ge_u32 s2, 256', 's_cbranch_scc1 L_k1_end')
    e('s_load_dwordx4 s[4:7], s[0:1], 0', 's_load_dwordx4 s[8:11], s[0:1], 24', 's_load_dwordx2 s[12:13], s[0:1], 64')
    e('v_lshrrev_b32 v1, 6, v0', 'v_and_b32 v0, 63, v0')
    e('s_and_b32 s32, s2, 7', 's_lshr_b32 s33, s2, 3')
    e('v_readfirstlane_b32 s28, v1')
    e('s_cmp_ge_u32 s33, 28', 's_cbranch_scc1 L_k1_pads')
    e('s_lshr_b32 s29, s32, 2')
    e('s_and_b32 s31, s32, 3', 's_lshl_b32 s31, s31, 2', 's_and_b32 s34, s33, 3', 's_add_u32 s31, s31, s34')
    e('s_lshr_b32 s30, s33, 2')
    e('s_cmp_ge_u32 s28, 4', 's_cbranch_scc1 L_k1_loader')
    e('v_and_b32 v20, 31, v0', 'v_lshrrev_b32 v21, 5, v0')
    e('v_bfe_u32 v22, v20, 1, 3', 'v_xor_b32 v22, v22, v21')
    e('s_lshl_b32 s36, s28, 12')
    e('v_lshlrev_b32 v23, 7, v20', 'v_add_u32 v23, s36, v23')
    for t in range(4):
        e(f'v_xor_b32 v24, {2*t}, v22', f'v_lshl_add_u32 v{10+t}, v24, 4, v23')
    e('v_bfe_u32 v24, v0, 2, 2', 'v_lshl_add_u32 v25, v21, 3, v24', 'v_lshlrev_b32 v25, 7, v25')
    e('v_lshrrev_b32 v24, 1, v24', 'v_lshl_add_u32 v25, v24, 6, v25')
    e('v_bfe_u32 v24, v0, 4, 1', 'v_lshl_add_u32 v25, v24, 5, v25', 'v_and_b32 v24, 3, v0', 'v_lshl_add_u32 v14, v24, 3, v25')
    e('v_xor_b32 v15, 64, v14', 'v_add_u32 v16, 57344, v14', 'v_add_u32 v17, 57344, v15', f'v_add_u32 v18, {WQR}, v14', f'v_add_u32 v19, {WQR}, v15')
    for t in range(4): e(f'v_add_u32 v{28+t}, 0x10000, v{10+t}')
    e('s_lshl_b32 s36, s30, 4')
    for ch in range(2):
        for rg in range(4):
            e(f'v_add_u32 v24, {8*ch+2*rg}, v21', 'v_add_u32 v24, s36, v24')
            e('v_mul_u32_u24 v25, 147, v24', 'v_lshrrev_b32 v25, 10, v25')
            e('v_mul_u32_u24 v26, 7, v25', 'v_sub_u32 v26, v24, v26')
            e('v_lshlrev_b32 v27, 8, v26', 'v_lshl_add_u32 v27, v20, 3, v27')
            e(f'v_lshl_add_u32 v{184+4*ch+rg}, v25, 17, v27', f'v_lshl_add_u32 v{192+4*ch+rg}, v25, 18, v27')
    e('s_lshl_b32 s36, s30, 6')
    for ch in range(2):
        e(f'v_add_u32 v24, {32*ch}, v20', 'v_add_u32 v24, s36, v24', 'v_mul_u32_u24 v25, 2341, v24', 'v_lshrrev_b32 v25, 16, v25')
        e('v_mul_u32_u24 v26, 28, v25', 'v_sub_u32 v26, v24, v26', 'v_lshl_add_u32 v26, v21, 5, v26', 'v_lshlrev_b32 v26, 4, v26', f'v_lshl_add_u32 v{200+ch}, v25, 18, v26')
    e('s_mul_i32 s50, s29, %d' % WS_PSTRIDE)
    e('s_lshl_b32 s51, s31, 2', 's_add_u32 s51, s51, s28')
    e('s_lshl_b32 s52, s51, 11', 's_add_u32 s52, s52, s50')
    e('s_lshl_b32 s54, s51, 12', 's_add_u32 s54, s54, s50', f's_add_u32 s54, s54, {WS_KV}')
    e(f's_mov_b32 s55, {f32(QSCALE)}', 's_cmp_eq_u32 s29, 0', 's_cselect_b32 s55, s55, 1.0')
    e('s_waitcnt lgkmcnt(0)')
    srd(e, 24, 12, 13, WS_BYTES)
    XF = 32; WF = 144; ACC = [208, 224, 168+8]
    ACCS = [[208, 224], [240-64-8, 0]]
    A0 = [204, 220]; A1 = [168, 236]
    accs = {0: (204, 220), 1: (168, 236), 2: (204, 220)}
    PK = 2
    def reads(ps, T):
        b = WF + 8*((28*ps+T) % 3); r = []
        base = {0: 18, 1: 14, 2: 16}[ps]
        j, t = divmod(T, 4)
        off = ((j % 6)*4 + t)*2048 if ps == 0 else T*2048
        for ch in range(2):
            for ee in range(2):
                r.append(f'ds_read_b64_tr_b16 {vr(b+4*ch+2*ee,2)}, v{base+ch} offset:{off + ee*512}')
        if ps == 0:
            r.append(f'ds_read_b128 {vr(XF+4*T,4)}, v{(10 if j < 4 else 28)+t} offset:{(j%4)*16384}')
        return r
    def epi(ps):
        o = []
        for ch in range(2):
            a = accs[ps][ch]
            if ps == 0: o += [f'v_mul_f32 v{a+r}, s55, v{a+r}' for r in range(16)]
            o += [f'v_cvt_pk_bf16_f32 v{a+k}, v{a+2*k}, v{a+2*k+1}' for k in range(8)]
            if ps == 0:
                o += [f'buffer_store_dwordx2 {vr(a+2*rg,2)}, v{184+4*ch+rg}, s[24:27], s52 offen{st}' for rg in range(4)]
            elif ps == 1:
                o += [f'buffer_store_dwordx2 {vr(a+2*rg,2)}, v{192+4*ch+rg}, s[24:27], s54 offen{st}' for rg in range(4)]
            else:
                o += [f'buffer_store_dwordx4 {vr(a,4)}, v{200+ch}, s[24:27], s54 offen offset:2048{st}', f'buffer_store_dwordx4 {vr(a+4,4)}, v{200+ch}, s[24:27], s54 offen offset:3072{st}']
        return o
    steps = [(ps, T) for ps in range(3) for T in range(28)]
    def need_barrier(ps, T):
        if ps == 0: return T % 4 == 0
        return T in (0, 16)
    e.c('STAMP 0')
    e('s_barrier')
    e.c('STAMP 1')
    e(*reads(0, 0)); e(*reads(0, 1))
    pend = []
    for n, (ps, T) in enumerate(steps):
        nx = steps[n+2] if n + 2 < len(steps) else None
        n1 = steps[n+1] if n + 1 < len(steps) else None
        e(f's_waitcnt lgkmcnt({len(reads(*n1)) if n1 else 0})')
        rd = []
        if nx:
            if need_barrier(*nx): e('s_barrier')
            rd = reads(*nx)
        if T == 0 and ps > 0:
            pend = epi(ps-1)
            if ps == 1: e.c('STAMP 2')
        b = WF + 8*(n % 3)
        for ch in range(2):
            a = accs[ps][ch]
            Cc = '0' if T == 0 else vr(a, 16)
            if ps < 2: e(f'{MF32} {vr(a,16)}, {vr(b+4*ch,4)}, {vr(XF+4*T,4)}, {Cc}')
            else:      e(f'{MF32} {vr(a,16)}, {vr(XF+4*T,4)}, {vr(b+4*ch,4)}, {Cc}')
            e(*(rd[:3] if ch == 0 else rd[3:]))
            if T >= 2 and pend:
                e(*pend[:3]); pend = pend[3:]
    assert not pend
    e.c('STAMP 3')
    e('s_nop 7', 's_nop 3')
    e(*epi(2))
    e('s_endpgm')
    e.label('L_k1_loader')
    e('s_sub_u32 s28, s28, 4')
    e('s_lshl_b32 s35, s31, 7', 's_lshl_b32 s36, s28, 5', 's_add_u32 s35, s35, s36')
    e('v_lshrrev_b32 v7, 3, v0', 'v_add_u32 v4, s35, v7', 'v_mul_u32_u24 v4, 896, v4')
    e('v_and_b32 v5, 7, v0', 'v_lshrrev_b32 v6, 4, v0', 'v_xor_b32 v8, v5, v6')
    e('v_lshl_add_u32 v2, v8, 4, v4', 'v_xor_b32 v8, 4, v8', 'v_lshl_add_u32 v3, v8, 4, v4')
    e('v_add_u32 v3, 7168, v3', 'v_add_u32 v9, 14336, v2', 'v_add_u32 v10, 14336, v3')
    e('s_lshl_b32 s36, s28, 4', 'v_add_u32 v7, s36, v7', 'v_mul_u32_u24 v7, 2688, v7', 'v_and_b32 v6, 1, v6', 'v_lshlrev_b32 v6, 2, v6', 'v_xor_b32 v5, v5, v6')
    e('v_lshl_add_u32 v4, v5, 4, v7', 's_lshl_b32 s37, s30, 7', 'v_add_u32 v4, s37, v4', 'v_add_u32 v5, 21504, v4')
    e('s_lshl_b32 s48, s28, 12', 's_lshl_b32 s49, s28, 11')
    if rot:
        e('s_add_u32 s38, s31, s30', 's_sub_u32 s39, s38, 14', 's_cselect_b32 s38, s38, s39', 's_sub_u32 s39, s38, 7', 's_cselect_b32 s38, s38, s39')
        e('s_sub_u32 s39, s38, 7', 's_cselect_b32 s38, s38, s39')
    else:
        e('s_mov_b32 s38, 0')
    for j in range(7):
        e(f's_lshl_b32 s{60+j}, s38, 7', f's_mul_i32 s{50+j}, s38, 172032', 's_add_u32 s38, s38, 1', 's_cmp_eq_u32 s38, 7', 's_cselect_b32 s38, 0, s38')
    e('s_waitcnt lgkmcnt(0)')
    e('s_cmp_eq_u32 s29, 0', 's_cselect_b32 s14, s4, s8', 's_cselect_b32 s15, s5, s9', 's_cselect_b32 s40, s6, s10', 's_cselect_b32 s41, s7, s11')
    srd(e, 16, 14, 15, 2048*896)
    srd(e, 20, 40, 41, 448*2688)
    q_ = []
    def X(j):
        for q, v in enumerate((2, 3, 9, 10)):
            e(f's_add_u32 m0, s48, {j*16384 + q*1024}', 's_nop 0', f'buffer_load_dwordx4 v{v}, s[16:19], s{60+j} offen lds'); q_.append(('X', j))
    def W(L, j):
        base = WQR + (j % 6)*8192 if L == 0 else WREG[L] + j*8192
        if L: e(f's_add_u32 s58, s{50+j}, {L*896}')
        so = 58 if L else 50+j
        for i in range(2):
            e(f's_add_u32 m0, s49, {base + i*1024}', 's_nop 0', f'buffer_load_dwordx4 v{4+i}, s[20:23], s{so} offen lds'); q_.append(('W', L, j))
    def waitfor(tags):
        last = max(i for i, t in enumerate(q_) if t in tags)
        e(f's_waitcnt vmcnt({len(q_)-1-last})', 's_barrier')
    e.c('STAMP 0')
    for j in range(3): X(j); W(0, j)
    e.c('STAMP 1')
    after = {0: lambda: (X(3), W(0,3)), 1: lambda: (X(4), W(0,4)), 2: lambda: (X(5), W(0,5)), 3: lambda: (X(6), W(0,6)),
             4: lambda: [W(1,j) for j in range(4)], 5: lambda: [W(1,j) for j in range(4,7)], 6: lambda: [W(2,j) for j in range(3)]}
    for k in range(7):
        waitfor({('X', k), ('W', 0, k)})
        if k == 0: e.c('STAMP 2')
        after[k]()
    e.c('STAMP 3')
    waitfor({('W', 1, j) for j in range(4)})
    W(2, 3); W(2, 4)
    waitfor({('W', 1, j) for j in range(7)})
    W(2, 5); W(2, 6)
    waitfor({('W', 2, j) for j in range(4)})
    waitfor({('W', 2, j) for j in range(7)})
    e('s_endpgm')
    e.label('L_k1_pads')
    e('s_sub_u32 s33, s33, 28', 's_lshl_b32 s33, s33, 3', 's_add_u32 s33, s33, s32', 's_lshl_b32 s33, s33, 3', 's_add_u32 s33, s33, s28', 's_lshl_b32 s33, s33, 6')
    e('v_add_u32 v1, s33, v0')
    e('v_mov_b32 v8, 0', 'v_mov_b32 v12, 0x3f803f80', 'v_mov_b32 v13, 0x00003f80', 'v_mov_b32 v14, 0x3f803f80', 'v_mov_b32 v15, 0x00003f80')
    e('v_and_b32 v2, 15, v1', 'v_lshrrev_b32 v6, 4, v1', 'v_lshlrev_b32 v6, 12, v6', 'v_lshl_add_u32 v5, v2, 4, v6', 'v_add_u32 v5, 1792, v5')
    e('v_and_b32 v2, 3, v1', 'v_bfe_u32 v3, v1, 2, 2')
    e('v_lshl_add_u32 v6, v3, 9, v6', 'v_lshl_add_u32 v6, v2, 4, v6', 'v_add_u32 v6, %d, v6' % (2048 + 28*16))
    e('v_cmp_eq_u32 vcc, 0, v2', 's_nop 1')
    for k in range(4): e(f'v_cndmask_b32 v{16+k}, v8, v12, vcc')
    e('s_waitcnt lgkmcnt(0)')
    srd(e, 24, 12, 13, WS_BYTES)
    for p in range(2):
        e(f's_mov_b32 s42, {p*WS_PSTRIDE + WS_KV}', f'buffer_store_dwordx4 v[12:15], v5, s[24:27], s42 offen{st}', f'buffer_store_dwordx4 v[16:19], v6, s[24:27], s42 offen{st}')
    e.label('L_k1_end')
    e('s_endpgm')
    return e.text(), dict(name='qkv_kernel', vgpr=252, sgpr=80, grid=256, block=512, lds=163840)

def gen_k2(st=' sc1', wopf=True):
    e = E()
    SL = 32768; NSL = 4; BO = NSL*SL
    e.label('attn_kernel')
    e('s_cmp_ge_u32 s2, 256', 's_cbranch_scc1 L_k2_end')
    e('s_load_dwordx2 s[12:13], s[0:1], 64')
    if wopf: e('s_load_dwordx2 s[4:5], s[0:1], 16', 's_load_dwordx2 s[6:7], s[0:1], 40')
    e('v_lshrrev_b32 v1, 6, v0', 'v_and_b32 v0, 63, v0')
    e('s_and_b32 s3, s2, 7', 's_lshl_b32 s30, s3, 1', 's_bfe_u32 s3, s2, 0x10003', 's_add_u32 s30, s30, s3')
    e('v_readfirstlane_b32 s28, v1')
    e('s_lshr_b32 s31, s2, 4')
    e('v_lshlrev_b32 v2, 4, v0')
    e('s_and_b32 s32, s28, 3', 's_lshr_b32 s33, s28, 2')
    e('s_lshl_b32 s34, s30, 18', 's_lshl_b32 s35, s33, 17', 's_add_u32 s34, s34, s35', 's_lshl_b32 s35, s32, 12', 's_add_u32 s34, s34, s35', f's_add_u32 s34, s34, {WS_KV}')
    e('s_lshl_b32 s36, s28, 12')
    e('s_lshl_b32 s37, s30, 17', 's_lshl_b32 s38, s31, 13', 's_add_u32 s37, s37, s38')
    e(f's_add_u32 s39, s37, {WS_PSTRIDE + WS_Q}')
    e('s_lshl_b32 s38, s32, 11', 's_add_u32 s37, s37, s38')
    QF = 8; S0, S1 = 16, 32; P = 48; O = 56; KB = 72; VB = 88; TT = 104
    vCur, vNxt, vLane, vK8, vKCur, vKNxt, vKLane = 120, 121, 122, 123, 124, 125, 126
    e('v_and_b32 v3, 31, v0', 'v_lshrrev_b32 v4, 5, v0', f'v_lshlrev_b32 v{vK8}, 3, v3', f'v_lshl_add_u32 v{vK8}, v4, 8, v{vK8}')
    e('s_waitcnt lgkmcnt(0)')
    e.c('STAMP 0')
    srd(e, 24, 12, 13, WS_BYTES)
    def dma(soff, m0_expr, rng=range(4)):
        e(m0_expr, 's_nop 0')
        for i in rng: e(f'buffer_load_dwordx4 v2, s[24:27], s{soff} offen offset:{1024*i} lds')
    dma(34, 's_mov_b32 m0, s36')
    e(f'buffer_load_dwordx2 {vr(QF,2)}, v{vK8}, s[24:27], s37 offen', f'buffer_load_dwordx2 {vr(QF+2,2)}, v{vK8}, s[24:27], s37 offen offset:512',
      f'buffer_load_dwordx2 {vr(QF+4,2)}, v{vK8}, s[24:27], s37 offen offset:1024', f'buffer_load_dwordx2 {vr(QF+6,2)}, v{vK8}, s[24:27], s37 offen offset:1536')
    e('s_lshl_b32 s40, s31, 2', 's_add_u32 s40, s40, s28', 's_sub_u32 s40, s40, 3', 's_max_i32 s40, s40, 0', 's_min_u32 s40, s40, 63')
    e('s_lshl_b32 s40, s40, 12', 's_lshl_b32 s41, s30, 18', 's_add_u32 s40, s40, s41', f's_add_u32 s40, s40, {WS_PSTRIDE + WS_KV}')
    e('s_add_u32 s39, s39, s36', 's_cmp_lt_u32 s28, 2', 's_cselect_b32 s40, s39, s40')
    e('s_lshl_b32 s41, s33, 14', f'v_add_u32 v{vLane}, s41, v2', f'v_add_u32 v{vKLane}, s41, v{vK8}')
    bQ, bKp, bKc, bV0, bV1, bS, bC, bT = 128, 132, 136, 140, 144, 148, 156, 164
    e('v_and_b32 v3, 15, v0', 'v_lshrrev_b32 v4, 4, v0', 'v_lshrrev_b32 v5, 1, v4', 'v_and_b32 v6, 1, v4')
    e('v_lshlrev_b32 v7, 10, v5', 'v_lshl_add_u32 v7, v6, 8, v7', 'v_lshl_add_u32 v7, v3, 3, v7')
    e(f'v_lshlrev_b32 v{bT+8}, 9, v6', f'v_lshl_add_u32 v{bT+8}, v3, 4, v{bT+8}', f'v_lshl_add_u32 v{bT+8}, v5, 3, v{bT+8}')
    e('s_lshr_b32 s43, s28, 1', 's_and_b32 s44, s28, 1', 's_add_u32 s45, s28, 1', 's_and_b32 s46, s45, 1', 's_lshr_b32 s45, s45, 1')
    e('s_lshl_b32 s47, s43, 11', 's_lshl_b32 s48, s44, 7', 's_add_u32 s47, s47, s48', f's_add_u32 s47, s47, {BO}')
    e('s_lshl_b32 s49, s43, 12', f's_add_u32 s49, s49, {BO + 8192 + 4096}')
    e('s_lshl_b32 s50, s45, 12', f's_add_u32 s50, s50, {BO + 8192}')
    e('s_add_u32 s51, s49, s48', 's_lshl_b32 s52, s46, 7', 's_add_u32 s52, s52, s50')
    e('s_lshl_b32 s53, s44, 10', 's_add_u32 s53, s53, s49', 's_lshl_b32 s54, s46, 10', 's_add_u32 s54, s54, s50')
    e(f'v_add_u32 v{bT}, s47, v7', f'v_add_u32 v{bT+1}, s51, v7', f'v_add_u32 v{bT+2}, s52, v7', f'v_add_u32 v{bT+3}, s53, v{bT+8}', f'v_add_u32 v{bT+4}, s54, v{bT+8}')
    e('v_lshlrev_b32 v5, 2, v4', 'v_sub_u32 v5, v3, v5')
    e('s_or_b32 s55, s31, s28', 's_cmp_eq_u32 s55, 0', 's_cselect_b32 s56, 48, 16', 'v_add_u32 v6, s56, v5')
    e('v_mov_b32 v7, 0xf149f2ca', 'v_mov_b32 v1, 0')
    for r in range(8):
        src = 6 if r < 4 else 5
        e(f'v_subrev_u32 v3, {r%4}, v{src}', 'v_and_b32 v3, 0xfffffff1, v3', 'v_cmp_eq_u32 vcc, 0, v3', 's_nop 1', f'v_cndmask_b32 v{bC+r}, v7, v1, vcc')
    e('v_cmp_eq_u32 s[70:71], 3, v4')
    e(f's_mov_b32 s57, {f32(28 ** -0.5)}', f's_mov_b32 s58, {f32(1.4426950408889634)}', 's_mov_b32 s59, 0xffff0000', 's_mov_b32 s66, 0x7ff00000')
    e('s_lshl_b32 s47, s31, 2', 's_add_u32 s47, s47, s43', 's_lshl_b32 s47, s47, 15', 's_lshl_b32 s48, s30, 11', 's_add_u32 s47, s47, s48', 's_lshl_b32 s48, s44, 8', 's_add_u32 s47, s47, s48', f's_add_u32 s47, s47, {WS_O + 0x200000}')
    e('s_mov_b32 s60, 0')
    def zero_state():
        for r in range(16): e(f'v_mov_b32 v{O+r}, 0')
        for r in range(4): e(f'v_mov_b32 v{P+4+r}, 0', f'v_mov_b32 v{TT+12+r}, 0', f'v_mov_b32 v{VB+12+r}, 0')
    zero_state()
    e('v_cmp_lt_u32 vcc, 31, v0')
    e('s_waitcnt vmcnt(0)', 's_barrier')
    e.c('STAMP 1')
    e(f'ds_read2st64_b64 {vr(KB,4)}, v{vK8} offset0:0 offset1:1', f'ds_read2st64_b64 {vr(KB+4,4)}, v{vK8} offset0:2 offset1:3')
    e(f'v_cndmask_b32 v{QF+6}, v{QF+6}, v1, vcc', f'v_cndmask_b32 v{QF+7}, v{QF+7}, v1, vcc')
    e('s_add_u32 s41, s34, 16384'); dma(41, f's_add_u32 m0, s36, {SL}')
    e('s_waitcnt lgkmcnt(0)')
    e(f'{MF32} {vr(S0,16)}, {vr(KB,4)}, {vr(QF,4)}, 0')
    e(f'{MF32} {vr(S0,16)}, {vr(KB+4,4)}, {vr(QF+4,4)}, {vr(S0,16)}')
    dma(40, f's_add_u32 m0, s36, {BO}')
    e('s_add_u32 s41, s34, 32768'); dma(41, f's_add_u32 m0, s36, {2*SL}', range(2))
    e('s_nop 1')
    e(f'v_max3_f32 v3, v{S0}, v{S0+1}, v{S0+2}', f'v_max3_f32 v4, v{S0+3}, v{S0+4}, v{S0+5}')
    e(f'v_max3_f32 v3, v3, v{S0+6}, v{S0+7}', f'v_max3_f32 v4, v4, v{S0+8}, v{S0+9}', f'v_max3_f32 v3, v3, v{S0+10}, v{S0+11}', f'v_max3_f32 v4, v4, v{S0+12}, v{S0+13}')
    e(f'v_max3_f32 v3, v3, v{S0+14}, v{S0+15}', 'v_max_f32 v3, v3, v4')
    e('v_mov_b32 v4, v3', 's_nop 1', 'v_permlane32_swap_b32 v3, v4', 'v_max_f32 v3, v3, v4', f'v_add_f32 v3, {f32(OFFM)}, v3')
    e.label('L_k2_setmax')
    e(f'ds_read2st64_b64 {vr(KB,4)}, v{vKLane} offset0:0 offset1:1', f'ds_read2st64_b64 {vr(KB+4,4)}, v{vKLane} offset0:2 offset1:3')
    e('v_sub_f32 v3, 0, v3', 'v_and_b32 v4, s59, v3', 'v_sub_f32 v3, v3, v4', 'v_and_b32 v5, s59, v3', 'v_sub_f32 v3, v3, v5')
    e(f'ds_read2st64_b64 {vr(KB+8,4)}, v{vKLane} offset0:8 offset1:9', f'ds_read2st64_b64 {vr(KB+12,4)}, v{vKLane} offset0:10 offset1:11')
    e('v_lshrrev_b32 v4, 16, v4', 'v_or_b32 v4, v4, v5', 'v_lshrrev_b32 v3, 16, v3', 'v_cmp_lt_u32 vcc, 31, v0')
    e(f'ds_read_b128 {vr(VB,4)}, v{vLane} offset:2048', f'ds_read_b128 {vr(VB+4,4)}, v{vLane} offset:3072')
    e(f'v_cndmask_b32 v{QF+6}, v{QF+6}, v4, vcc', f'v_cndmask_b32 v{QF+7}, v{QF+7}, v3, vcc')
    e('s_mov_b32 s61, 0', 's_mov_b32 s62, 0', f's_mov_b32 s63, {SL}', 's_add_u32 s65, s34, 32768')
    e('s_waitcnt lgkmcnt(4)')
    e(f'{MF32} {vr(S0,16)}, {vr(KB,4)}, {vr(QF,4)}, 0')
    e(f'{MF32} {vr(S0,16)}, {vr(KB+4,4)}, {vr(QF+4,4)}, {vr(S0,16)}')
    e(f'v_mov_b32 v{vCur}, v{vLane}', f'v_mov_b32 v{vKCur}, v{vKLane}', f'v_add_u32 v{vNxt}, {SL}, v{vLane}', f'v_add_u32 v{vKNxt}, {SL}, v{vKLane}')
    e('s_nop 4')
    e.c('STAMP 2')
    T = bT + 10; a, b2 = T+4, T+5
    Bp = [[], [], [], []]
    Bp[0] = [f'ds_read2st64_b64 {vr(bQ,4)}, v{bT} offset0:0 offset1:1', f'ds_read2st64_b64 {vr(bKp,4)}, v{bT+2} offset0:0 offset1:1', f'ds_read2st64_b64 {vr(bKc,4)}, v{bT+1} offset0:0 offset1:1',
             f'ds_read_b64 {vr(bV0,2)}, v{bT+4} offset:2048', f'ds_read_b64 {vr(bV0+2,2)}, v{bT+3} offset:2048', f'ds_read_b64 {vr(bV1,2)}, v{bT+4} offset:2304', f'ds_read_b64 {vr(bV1+2,2)}, v{bT+3} offset:2304']
    b = [f'v_cndmask_b32 v{bQ+2}, v{bQ+2}, v1, s[70:71]', f'v_cndmask_b32 v{bQ+3}, v{bQ+3}, v1, s[70:71]', 's_nop 1',
         f'{MF16} {vr(bS,4)}, {vr(bKp,4)}, {vr(bQ,4)}, {vr(bC,4)}', f'{MF16} {vr(bS+4,4)}, {vr(bKc,4)}, {vr(bQ,4)}, {vr(bC+4,4)}', 's_nop 7']
    b += [f'v_cvt_pk_bf16_f32 v{T+k}, v{bS+2*k}, v{bS+2*k+1}' for k in range(4)]
    for k in range(4): b += [f'v_lshlrev_b32 v{bS+2*k}, 16, v{T+k}', f'v_and_b32 v{bS+2*k+1}, s59, v{T+k}']
    b += [f'v_mul_f32 v{bS+r}, s57, v{bS+r}' for r in range(8)]
    b += [f'v_cvt_pk_bf16_f32 v{T+k}, v{bS+2*k}, v{bS+2*k+1}' for k in range(4)]
    for k in range(4): b += [f'v_lshlrev_b32 v{bS+2*k}, 16, v{T+k}', f'v_and_b32 v{bS+2*k+1}, s59, v{T+k}']
    Bp[1] = b
    b = [f'v_max3_f32 v{a}, v{bS}, v{bS+1}, v{bS+2}', f'v_max3_f32 v{b2}, v{bS+3}, v{bS+4}, v{bS+5}', f'v_max3_f32 v{a}, v{a}, v{bS+6}, v{bS+7}', f'v_max_f32 v{a}, v{a}, v{b2}']
    b += [f'v_mov_b32 v{b2}, v{a}', 's_nop 1', f'v_permlane32_swap_b32 v{a}, v{b2}', f'v_max_f32 v{a}, v{a}, v{b2}']
    b += [f'v_mov_b32 v{b2}, v{a}', 's_nop 1', f'v_permlane16_swap_b32 v{a}, v{b2}', f'v_max_f32 v{a}, v{a}, v{b2}']
    b += [f'v_sub_f32 v{bS+r}, v{bS+r}, v{a}' for r in range(8)]
    b += [f'v_mul_f32 v{bS+r}, s58, v{bS+r}' for r in range(8)]
    b += [f'v_exp_f32 v{bS+r}, v{bS+r}' for r in range(8)]
    b += ['s_nop 0', f'v_add_f32 v{a}, v{bS}, v{bS+1}', f'v_add_f32 v{b2}, v{bS+2}, v{bS+3}', f'v_add_f32 v{T}, v{bS+4}, v{bS+5}', f'v_add_f32 v{T+1}, v{bS+6}, v{bS+7}',
          f'v_add_f32 v{a}, v{a}, v{b2}', f'v_add_f32 v{T}, v{T}, v{T+1}', f'v_add_f32 v{a}, v{a}, v{T}']
    Bp[2] = b
    b = [f'v_mov_b32 v{b2}, v{a}', 's_nop 1', f'v_permlane32_swap_b32 v{a}, v{b2}', f'v_add_f32 v{a}, v{a}, v{b2}']
    b += [f'v_mov_b32 v{b2}, v{a}', 's_nop 1', f'v_permlane16_swap_b32 v{a}, v{b2}', f'v_add_f32 v{a}, v{a}, v{b2}']
    b += [f'v_rcp_f32 v{a}, v{a}', 's_nop 0']
    b += [f'v_mul_f32 v{bS+r}, v{a}, v{bS+r}' for r in range(8)]
    b += [f'v_cvt_pk_bf16_f32 v{T+k}, v{bS+2*k}, v{bS+2*k+1}' for k in range(4)]
    b += ['s_nop 1', f'{MF16} {vr(bS,4)}, {vr(bV0,4)}, {vr(T,4)}, 0', f'{MF16} {vr(bS+4,4)}, {vr(bV1,4)}, {vr(T,4)}, 0', 's_nop 7']
    b += [f'v_cvt_pk_bf16_f32 v{T+k}, v{bS+2*k}, v{bS+2*k+1}' for k in range(4)]
    b += [f'v_cndmask_b32 v{T+2}, v{T+2}, v1, s[70:71]', f'v_cndmask_b32 v{T+3}, v{T+3}, v1, s[70:71]']
    b += [f'buffer_store_dwordx2 {vr(T,2)}, v{bT+8}, s[24:27], s47 offen{st}', f'buffer_store_dwordx2 {vr(T+2,2)}, v{bT+8}, s[24:27], s47 offen offset:1024{st}']
    Bp[3] = b
    def body(withB):
        for i in range(4):
            Sc = S0 if i % 2 == 0 else S1
            Sn = S1 if i % 2 == 0 else S0
            Kn = KB + 8*((i+1) % 2); Kl = KB + 8*(i % 2)
            Vc = VB + 8*(i % 2); Vl = VB + 8*((i+1) % 2)
            ka, ko = (vKCur, (i+2)*8) if i+2 < 4 else (vKNxt, (i+2-4)*8)
            va, vo = (vCur, (i+1)*4096) if i+1 < 4 else (vNxt, 0)
            def ex(r0): return [f'v_exp_f32 v{TT+r}, v{Sc+r}' for r in range(r0, r0+4)]
            def cv(r0): return [f'v_cvt_pk_bf16_f32 v{P+r0//2}, v{TT+r0}, v{TT+r0+1}', f'v_cvt_pk_bf16_f32 v{P+r0//2+1}, v{TT+r0+2}, v{TT+r0+3}']
            if i == 2:
                e('s_waitcnt vmcnt(4) lgkmcnt(0)', 's_barrier')
                e('s_add_u32 s65, s65, 16384', 's_cmp_ge_u32 s61, 5', 's_cselect_b32 s65, s66, s65', f's_add_u32 s64, s62, {3*SL}', f's_and_b32 s64, s64, {NSL*SL-1}', 's_add_u32 m0, s64, s36')
            else:
                e('s_waitcnt lgkmcnt(0)')
            t = []
            t += [f'{MF32} {vr(Sn,16)}, {vr(Kn,4)}, {vr(QF,4)}, 0']
            t += [f'ds_read2st64_b64 {vr(Kl,4)}, v{ka} offset0:{ko} offset1:{ko+1}', f'ds_read2st64_b64 {vr(Kl+4,4)}, v{ka} offset0:{ko+2} offset1:{ko+3}']
            t += cv(12) + ex(0)
            t += [f'{MF32} {vr(O,16)}, {vr(Vl+4,4)}, {vr(P+4,4)}, {vr(O,16)}']
            t += [f'ds_read_b128 {vr(Vl,4)}, v{va} offset:{vo+2048}', f'ds_read_b128 {vr(Vl+4,4)}, v{va} offset:{vo+3072}']
            t += cv(0) + ex(4)
            t += [f'{MF32} {vr(Sn,16)}, {vr(Kn+4,4)}, {vr(QF+4,4)}, {vr(Sn,16)}']
            t += [f'buffer_load_dwordx4 v2, s[24:27], s65 offen offset:{1024*((i+2)%4)} lds']
            t += cv(4) + ex(8)
            t += [f'{MF32} {vr(O,16)}, {vr(Vc,4)}, {vr(P,4)}, {vr(O,16)}']
            if i == 3:
                t += ['s_mov_b32 s62, s63', f's_add_u32 s63, s63, {SL}', f's_and_b32 s63, s63, {NSL*SL-1}', 's_add_u32 s61, s61, 1']
                t += [f'v_mov_b32 v{vCur}, v{vNxt}', f'v_mov_b32 v{vKCur}, v{vKNxt}', f'v_add_u32 v{vNxt}, s63, v{vLane}', f'v_add_u32 v{vKNxt}, s63, v{vKLane}']
            t += cv(8) + ex(12)
            if withB: t = interleave(t, Bp[i])
            e(*t)
    e('.p2align 6')
    e.label('L_k2_loop')
    body(False)
    e('s_lshl_b32 s41, s60, 3', 's_add_u32 s41, s41, s61', 's_cmp_eq_u32 s41, 1', 's_cbranch_scc1 L_k2_bodyB')
    e('s_cmp_lt_u32 s61, 8', 's_cbranch_scc1 L_k2_loop')
    e.c('STAMP 3')
    e(f'v_cvt_pk_bf16_f32 v{P+6}, v{TT+12}, v{TT+13}', f'v_cvt_pk_bf16_f32 v{P+7}, v{TT+14}, v{TT+15}')
    X = BO
    e('s_lshl_b32 s41, s32, 12', f's_add_u32 s41, s41, {X}')
    e(f'{MF32} {vr(O,16)}, {vr(VB+12,4)}, {vr(P+4,4)}, {vr(O,16)}')
    e('s_lshl_b32 s42, s33, 11', 's_add_u32 s43, s41, s42', 's_xor_b32 s42, s42, 2048', 's_add_u32 s44, s41, s42')
    e('v_add_u32 v3, s43, v2', 'v_add_u32 v4, s44, v2')
    e('s_lshl_b32 s41, s28, 8', f's_add_u32 s41, s41, {X+16384}', 's_xor_b32 s42, s41, 1024')
    e('v_lshlrev_b32 v5, 2, v0', 'v_add_u32 v6, s42, v5', 'v_add_u32 v5, s41, v5')
    e(f'v_mov_b32 v7, {X+20480}')
    e('s_cmp_eq_u32 s33, 0', 's_cbranch_scc1 L_k2_e0')
    e(f'ds_write_b128 v3, {vr(O,4)}', f'ds_write_b128 v3, {vr(O+4,4)} offset:1024', f'ds_write_b32 v5, v{O+12}')
    for r in range(8): e(f'v_mov_b32 v{O+r}, v{O+8+r}')
    e('s_branch L_k2_e1')
    e.label('L_k2_e0')
    e(f'ds_write_b128 v3, {vr(O+8,4)}', f'ds_write_b128 v3, {vr(O+12,4)} offset:1024', f'ds_write_b32 v5, v{O+12}', 'ds_write_b32 v7, v1')
    e.label('L_k2_e1')
    e('s_waitcnt lgkmcnt(0)', 's_barrier')
    e(f'ds_read_b128 {vr(S0,4)}, v4', f'ds_read_b128 {vr(S0+4,4)}, v4 offset:1024', f'ds_read_b32 v{S0+8}, v6')
    e('s_lshl_b32 s41, s31, 17', 's_lshl_b32 s42, s32, 15', 's_add_u32 s41, s41, s42', 's_lshl_b32 s42, s30, 11', 's_add_u32 s41, s41, s42', 's_lshl_b32 s42, s33, 10', 's_add_u32 s41, s41, s42', f's_add_u32 s41, s41, {WS_O}')
    e('s_cmp_eq_u32 s33, 1', 's_cselect_b32 s42, 31, 64', 'v_cmp_lt_u32 s[44:45], s42, v0')
    e('s_waitcnt lgkmcnt(0)')
    e(f'v_add_f32 v5, v{O+12}, v{S0+8}')
    for r in range(8): e(f'v_add_f32 v{O+r}, v{O+r}, v{S0+r}')
    e('v_mov_b32 v6, v5', 's_mov_b32 s42, 0x7e800000', 's_nop 0', 'v_permlane32_swap_b32 v6, v5')
    e(f'v_mul_f32 v6, 0, v{O}', f'v_mul_f32 v3, 0, v{O+1}')
    for r in range(2, 8, 2): e(f'v_fma_f32 v6, v{O+r}, 0, v6', f'v_fma_f32 v3, v{O+r+1}, 0, v3')
    e('v_rcp_f32 v4, v5', 'v_cmp_ngt_f32 vcc, s42, v5', 'v_cmp_u_f32 s[46:47], v6, v3')
    for r in range(8): e(f'v_mul_f32 v{O+r}, v4, v{O+r}')
    for k in range(4): e(f'v_cvt_pk_bf16_f32 v{P+k}, v{O+2*k}, v{O+2*k+1}')
    e(f'v_cndmask_b32 v{P+2}, v{P+2}, v1, s[44:45]', f'v_cndmask_b32 v{P+3}, v{P+3}, v1, s[44:45]')
    e(f'buffer_store_dwordx4 {vr(P,4)}, v2, s[24:27], s41 offen{st}')
    e('s_or_b64 vcc, vcc, s[46:47]', 's_cmp_eq_u32 s60, 1', 's_cselect_b64 vcc, 0, vcc')
    e('s_cmp_eq_u64 vcc, 0', 's_cbranch_scc1 L_k2_ok')
    e('v_mov_b32 v6, 1', 'ds_write_b32 v7, v6', 's_waitcnt lgkmcnt(0)')
    e.label('L_k2_ok')
    e('s_barrier')
    e('ds_read_b32 v4, v7', 's_waitcnt lgkmcnt(0)', 'v_readfirstlane_b32 s41, v4', 's_nop 3')
    e('s_cmp_eq_u32 s41, 0', 's_cbranch_scc1 L_k2_end')
    e('s_waitcnt vmcnt(0)', 's_barrier')
    e('s_mov_b32 s60, 1')
    dma(34, 's_mov_b32 m0, s36')
    e('s_add_u32 s41, s34, 16384'); dma(41, f's_add_u32 m0, s36, {SL}')
    e('s_add_u32 s41, s34, 32768'); dma(41, f's_add_u32 m0, s36, {2*SL}', range(2))
    e('v_cmp_lt_u32 vcc, 31, v0', 's_lshl_b32 s41, s30, 18', f's_add_u32 s41, s41, {WS_KV}', 's_mov_b32 s42, 0')
    e(f'v_cndmask_b32 v{QF+6}, v{QF+6}, v1, vcc', f'v_cndmask_b32 v{QF+7}, v{QF+7}, v1, vcc')
    e('v_mov_b32 v3, 0xff800000')
    zero_state()
    e.label('L_k2_maxloop')
    for k in range(4): e(f'buffer_load_dwordx2 {vr(KB+2*k,2)}, v{vK8}, s[24:27], s41 offen offset:{512*k}')
    e('s_waitcnt vmcnt(0)')
    e(f'{MF32} {vr(S0,16)}, {vr(KB,4)}, {vr(QF,4)}, 0')
    e(f'{MF32} {vr(S0,16)}, {vr(KB+4,4)}, {vr(QF+4,4)}, {vr(S0,16)}')
    e('s_nop 7', 's_nop 3')
    for k in range(0, 16, 2): e(f'v_max3_f32 v3, v3, v{S0+k}, v{S0+k+1}')
    e('s_add_u32 s41, s41, 4096', 's_add_u32 s42, s42, 1', 's_cmp_lt_u32 s42, 64', 's_cbranch_scc1 L_k2_maxloop')
    e('v_mov_b32 v4, v3', 's_nop 1', 'v_permlane32_swap_b32 v3, v4', 'v_max_f32 v3, v3, v4')
    e('s_barrier')
    e('s_branch L_k2_setmax')
    e.label('L_k2_bodyB')
    if wopf:
        e('s_cmp_lt_u32 s2, 98', 's_cselect_b32 s41, s28, 1', 's_cmp_lg_u32 s41, 0', 's_cbranch_scc1 L_k2_nopf')
        e('s_cmp_lt_u32 s2, 49', 's_cselect_b32 s16, s4, s6', 's_cselect_b32 s17, s5, s7', f's_mov_b32 s18, {448*896}', 's_mov_b32 s19, 0x00020000')
        e('s_sub_u32 s41, s2, 49', 's_cselect_b32 s41, s2, s41')
        e('s_lshl_b32 s41, s41, 13', 'v_lshlrev_b32 v3, 7, v0', 'buffer_load_dword v127, v3, s[16:19], s41 offen')
        e.label('L_k2_nopf')
    body(True)
    e('s_branch L_k2_loop')
    e.label('L_k2_end')
    e('s_endpgm')
    return e.text(), dict(name='attn_kernel', vgpr=184, sgpr=72, grid=256, block=512, lds=BO+32768)

if __name__ == '__main__':
    from g3 import gen_k3
    ks = [gen_k1(), gen_k2(), gen_k3()]
    assemble(ks, sys.argv[1] if len(sys.argv) > 1 else 'k.s')
```

```python
from g5 import *

def gen_k2(st=' sc1', wopf=False, mimic=False):
    e = E()
    SL = 32768; NSL = 4; BO = NSL*SL
    QO = 3*SL
    e.label('attn_kernel')
    e('s_cmp_ge_u32 s2, 256', 's_cbranch_scc1 L_k2_end')
    e('s_load_dwordx2 s[12:13], s[0:1], 64')
    if wopf: e('s_load_dwordx2 s[4:5], s[0:1], 16', 's_load_dwordx2 s[6:7], s[0:1], 40')
    e('v_lshrrev_b32 v1, 6, v0', 'v_and_b32 v0, 63, v0')
    e('s_and_b32 s3, s2, 7', 's_lshl_b32 s30, s3, 1', 's_bfe_u32 s3, s2, 0x10003', 's_add_u32 s30, s30, s3')
    e('v_readfirstlane_b32 s28, v1')
    e('s_lshr_b32 s31, s2, 4')
    e('v_lshlrev_b32 v2, 4, v0')
    e('s_and_b32 s32, s28, 3', 's_lshr_b32 s33, s28, 2')
    e('s_lshl_b32 s41, s30, 18', 's_lshl_b32 s35, s33, 17', 's_add_u32 s34, s41, s35', 's_lshl_b32 s35, s32, 12', 's_add_u32 s34, s34, s35', f's_add_u32 s34, s34, {WS_KV}')
    e('s_lshl_b32 s36, s28, 12')
    e('s_lshl_b32 s37, s30, 17', 's_lshl_b32 s38, s31, 13', 's_add_u32 s37, s37, s38')
    e(f's_add_u32 s39, s37, {WS_PSTRIDE + WS_Q}')
    e('s_lshl_b32 s38, s28, 10', 's_add_u32 s37, s37, s38')
    e('s_lshl_b32 s40, s31, 2', 's_add_u32 s40, s40, s28', 's_sub_u32 s40, s40, 3', 's_max_i32 s40, s40, 0', 's_min_u32 s40, s40, 63')
    e('s_lshl_b32 s40, s40, 12', 's_add_u32 s40, s40, s41', f's_add_u32 s40, s40, {WS_PSTRIDE + WS_KV}')
    e('s_add_u32 s39, s39, s36', 's_cmp_lt_u32 s28, 2', 's_cselect_b32 s40, s39, s40')
    QF = 8; S0, S1 = 16, 32; P = 48; O = 56; KB = 72; VB = 88; TT = 104
    vNxt, vLane, vK8, vKLane = 120, 121, 122, 123
    bQ, bKp, bKc, bV0, bV1, bS, bC, bT = 128, 132, 136, 140, 144, 148, 156, 164
    e('v_and_b32 v3, 31, v0', 'v_lshrrev_b32 v4, 5, v0', f'v_lshlrev_b32 v{vK8}, 3, v3', f'v_lshl_add_u32 v{vK8}, v4, 8, v{vK8}')
    e('s_lshl_b32 s41, s33, 14', f'v_add_u32 v{vLane}, s41, v2', f'v_add_u32 v{vKLane}, s41, v{vK8}', f'v_add_u32 v{vNxt}, 0x10000, v{vLane}')
    e('v_and_b32 v3, 15, v0', 'v_lshrrev_b32 v4, 4, v0', 'v_lshrrev_b32 v5, 1, v4', 'v_and_b32 v6, 1, v4')
    e('v_lshlrev_b32 v7, 10, v5', 'v_lshl_add_u32 v7, v6, 8, v7', 'v_lshl_add_u32 v7, v3, 3, v7')
    e(f'v_lshlrev_b32 v{bT+5}, 9, v6', f'v_lshl_add_u32 v{bT+5}, v3, 4, v{bT+5}', f'v_lshl_add_u32 v{bT+5}, v5, 3, v{bT+5}')
    e('s_lshr_b32 s43, s28, 1', 's_and_b32 s44, s28, 1', 's_add_u32 s45, s28, 1', 's_and_b32 s46, s45, 1', 's_lshr_b32 s45, s45, 1')
    e('s_lshl_b32 s47, s43, 11', 's_lshl_b32 s48, s44, 7', 's_add_u32 s47, s47, s48', f's_add_u32 s47, s47, {BO}')
    e('s_lshl_b32 s49, s43, 12', f's_add_u32 s49, s49, {BO + 8192 + 4096}')
    e('s_lshl_b32 s50, s45, 12', f's_add_u32 s50, s50, {BO + 8192}')
    e('s_add_u32 s51, s49, s48', 's_lshl_b32 s52, s46, 7', 's_add_u32 s52, s52, s50')
    e('s_lshl_b32 s53, s44, 10', 's_add_u32 s53, s53, s49', 's_lshl_b32 s54, s46, 10', 's_add_u32 s54, s54, s50')
    e('s_waitcnt lgkmcnt(0)')
    e.c('STAMP 0')
    srd(e, 24, 12, 13, WS_BYTES)
    def dma(soff, m0_expr, rng=range(4)):
        return [m0_expr, 's_nop 0'] + [f'buffer_load_dwordx4 v2, s[24:27], s{soff} offen offset:{1024*i} lds' for i in rng]
    e(*dma(37, f's_add_u32 m0, s38, {QO}', range(1)))
    e(*dma(34, 's_mov_b32 m0, s36'))
    e('s_add_u32 s61, s34, 16384')
    e(*dma(61, f's_add_u32 m0, s36, {SL}'))
    e(f'v_add_u32 v{bT}, s47, v7', f'v_add_u32 v{bT+1}, s51, v7', f'v_add_u32 v{bT+2}, s52, v7', f'v_add_u32 v{bT+3}, s53, v{bT+5}', f'v_add_u32 v{bT+4}, s54, v{bT+5}')
    e('v_mov_b32 v7, 0xf149f2ca', 'v_mov_b32 v1, 0')
    e('s_or_b32 s55, s31, s28')
    for r in range(8):
        m = 0
        for l in range(64):
            d = (l & 15) - 4*(l >> 4) - (r % 4) + (16 if r < 4 else 0)
            if 0 <= d <= 14 and d % 2 == 0: m |= 1 << l
        e(f's_mov_b32 s{42 if r%2 else 62}, 0x{m & 0xffffffff:08x}', f's_mov_b32 s{43 if r%2 else 63}, 0x{m >> 32:08x}') if False else None
        sp = 62 + 2*(r % 2)
        e(f's_mov_b32 s{sp}, 0x{m & 0xffffffff:08x}', f's_mov_b32 s{sp+1}, 0x{m >> 32:08x}')
        if r < 4: e('s_cmp_eq_u32 s55, 0', f's_cselect_b64 s[{sp}:{sp+1}], 0, s[{sp}:{sp+1}]')
        e(f'v_cndmask_b32 v{bC+r}, v7, v1, s[{sp}:{sp+1}]')
    e('s_mov_b32 s70, 0', 's_mov_b32 s71, 0xffff0000', 's_mov_b32 s68, 0', 's_mov_b32 s69, -1')
    e(f's_mov_b32 s57, {f32(28 ** -0.5 * 1.4426950408889634)}', 's_mov_b32 s59, 0xffff0000')
    e('s_lshl_b32 s47, s31, 2', 's_add_u32 s47, s47, s43', 's_lshl_b32 s47, s47, 15', 's_lshl_b32 s48, s30, 11', 's_add_u32 s47, s47, s48', 's_lshl_b32 s48, s44, 8', 's_add_u32 s47, s47, s48', f's_add_u32 s47, s47, {WS_O + 0x200000}')
    e('s_mov_b32 s60, 0', 's_add_u32 s65, s34, 32768')
    e('s_lshl_b32 s41, s32, 11', f's_add_u32 s41, s41, {QO}', f'v_add_u32 v{bT+6}, s41, v{vK8}')
    def zero_state():
        z = [f'v_mov_b32 v{O+r}, 0' for r in range(16)]
        for r in range(4): z += [f'v_mov_b32 v{P+4+r}, 0', f'v_mov_b32 v{TT+12+r}, 0', f'v_mov_b32 v{VB+12+r}, 0']
        return z
    e(*zero_state())
    T = bT + 8; a, b2 = T+4, T+5
    Bp = [[], [], [], []]
    Bp[0] = [f'ds_read2st64_b64 {vr(bQ,4)}, v{bT} offset0:0 offset1:1', f'ds_read2st64_b64 {vr(bKp,4)}, v{bT+2} offset0:0 offset1:1', f'ds_read2st64_b64 {vr(bKc,4)}, v{bT+1} offset0:0 offset1:1',
      f'ds_read_b64 {vr(bV0,2)}, v{bT+4} offset:2048', f'ds_read_b64 {vr(bV0+2,2)}, v{bT+3} offset:2048', f'ds_read_b64 {vr(bV1,2)}, v{bT+4} offset:2304', f'ds_read_b64 {vr(bV1+2,2)}, v{bT+3} offset:2304']
    b = [(0, f'v_cndmask_b32 v{bQ+2}, v{bQ+2}, v1, s[70:71]'), (0, f'v_cndmask_b32 v{bQ+3}, v{bQ+3}, v1, s[70:71]')]
    b += [(2, f'{MF16} {vr(bS,4)}, {vr(bKp,4)}, {vr(bQ,4)}, {vr(bC,4)}'), (2, f'{MF16} {vr(bS+4,4)}, {vr(bKc,4)}, {vr(bQ,4)}, {vr(bC+4,4)}')]
    b += [(8, f'v_max3_f32 v{a}, v{bS}, v{bS+1}, v{bS+2}'), (0, f'v_max3_f32 v{b2}, v{bS+3}, v{bS+4}, v{bS+5}'), (0, f'v_max3_f32 v{a}, v{a}, v{bS+6}, v{bS+7}'), (0, f'v_max_f32 v{a}, v{a}, v{b2}')]
    b += [(0, f'v_mov_b32 v{b2}, v{a}'), (2, f'v_permlane32_swap_b32 v{a}, v{b2}'), (0, f'v_max_f32 v{a}, v{a}, v{b2}')]
    b += [(0, f'v_mov_b32 v{b2}, v{a}'), (2, f'v_permlane16_swap_b32 v{a}, v{b2}'), (0, f'v_max_f32 v{a}, v{a}, v{b2}')]
    b += [(0, f'v_mul_f32 v{a}, s57, v{a}')]
    Bp[1] = b
    b = [(0, f'v_fma_f32 v{bS+r}, v{bS+r}, s57, -v{a}') for r in range(8)]
    b += [(0, f'v_exp_f32 v{bS+r}, v{bS+r}') for r in range(8)]
    b += [(0, f'v_cvt_pk_bf16_f32 v{T+k}, v{bS+2*k}, v{bS+2*k+1}') for k in range(4)]
    b += [(2, f'{MF16} {vr(bS+4,4)}, {vr(bV1,4)}, {vr(T,4)}, 0'), (2, f'{MF16} {vr(bS,4)}, {vr(bV0,4)}, {vr(T,4)}, 0')]
    Bp[2] = b
    b = [(8, f'v_mov_b32 v{a}, v{bS+4}'), (0, f'v_mov_b32 v{b2}, v{bS+4}'), (2, f'v_permlane32_swap_b32 v{b2}, v{a}')]
    b += [(0, f'v_mov_b32 v{b2}, v{a}'), (2, f'v_permlane16_swap_b32 v{b2}, v{a}'), (0, f'v_rcp_f32 v{a}, v{a}')]
    b += [(1 if r == 0 else 0, f'v_mul_f32 v{bS+r}, v{a}, v{bS+r}') for r in range(8)]
    b += [(0, f'v_cvt_pk_bf16_f32 v{T+k}, v{bS+2*k}, v{bS+2*k+1}') for k in range(4)]
    b += [(0, f'v_cndmask_b32 v{T+2}, v{T+2}, v1, s[70:71]'), (0, f'v_cndmask_b32 v{T+3}, v{T+3}, v1, s[70:71]')]
    b += [(0, f'buffer_store_dwordx2 {vr(T,2)}, v{bT+5}, s[24:27], s47 offen{st}'), (0, f'buffer_store_dwordx2 {vr(T+2,2)}, v{bT+5}, s[24:27], s47 offen offset:1024{st}')]
    Bp[3] = b
    Bp[0] = [(0, x) for x in Bp[0]]
    def weave(host, guest):
        out = []; hi = 0; n = len(guest)
        need = sum(g for g, _ in guest)
        spare = len(host) - need
        assert spare >= 0, (len(host), need)
        acc = 0.0
        for k, (g, ins) in enumerate(guest):
            acc += spare / n
            take = g + int(acc); acc -= int(acc)
            out += host[hi:hi+take]; hi += take
            out.append(ins)
        return out + host[hi:]
    e('s_waitcnt vmcnt(4)', 's_barrier')
    e.c('STAMP 1')
    e(f'ds_read2st64_b64 {vr(QF,4)}, v{bT+6} offset0:0 offset1:1', f'ds_read2st64_b64 {vr(QF+4,4)}, v{bT+6} offset0:2 offset1:3')
    e(f'ds_read2st64_b64 {vr(KB,4)}, v{vK8} offset0:0 offset1:1', f'ds_read2st64_b64 {vr(KB+4,4)}, v{vK8} offset0:2 offset1:3')
    e(*dma(65, f's_add_u32 m0, s36, {2*SL}', range(2)))
    e('s_waitcnt lgkmcnt(1)')
    e(f'v_cndmask_b32 v{QF+6}, v{QF+6}, v1, s[68:69]', f'v_cndmask_b32 v{QF+7}, v{QF+7}, v1, s[68:69]')
    e(f'{MF32} {vr(S0,16)}, {vr(KB,4)}, {vr(QF,4)}, 0')
    e('s_waitcnt lgkmcnt(0)')
    e(f'{MF32} {vr(S0,16)}, {vr(KB+4,4)}, {vr(QF+4,4)}, {vr(S0,16)}')
    e('s_nop 7', 's_nop 3')
    e(f'v_max3_f32 v3, v{S0}, v{S0+1}, v{S0+2}', f'v_max3_f32 v4, v{S0+3}, v{S0+4}, v{S0+5}')
    e(f'v_max3_f32 v3, v3, v{S0+6}, v{S0+7}', f'v_max3_f32 v4, v4, v{S0+8}, v{S0+9}', f'v_max3_f32 v3, v3, v{S0+10}, v{S0+11}', f'v_max3_f32 v4, v4, v{S0+12}, v{S0+13}')
    e(f'v_max3_f32 v3, v3, v{S0+14}, v{S0+15}', 'v_max_f32 v3, v3, v4')
    e('v_mov_b32 v4, v3', 's_nop 1', 'v_permlane32_swap_b32 v3, v4', 'v_max_f32 v3, v3, v4', f'v_add_f32 v3, {f32(OFFM)}, v3')
    e.label('L_k2_setmax')
    e(f'ds_read2st64_b64 {vr(KB,4)}, v{vKLane} offset0:0 offset1:1', f'ds_read2st64_b64 {vr(KB+4,4)}, v{vKLane} offset0:2 offset1:3')
    e('v_sub_f32 v3, 0, v3', 'v_and_b32 v4, s59, v3', 'v_sub_f32 v3, v3, v4', 'v_and_b32 v5, s59, v3', 'v_sub_f32 v3, v3, v5')
    e(f'ds_read2st64_b64 {vr(KB+8,4)}, v{vKLane} offset0:8 offset1:9', f'ds_read2st64_b64 {vr(KB+12,4)}, v{vKLane} offset0:10 offset1:11')
    e('v_lshrrev_b32 v4, 16, v4', 'v_or_b32 v4, v4, v5', 'v_lshrrev_b32 v3, 16, v3')
    e(f'ds_read_b128 {vr(VB,4)}, v{vLane} offset:2048', f'ds_read_b128 {vr(VB+4,4)}, v{vLane} offset:3072')
    e(f'v_cndmask_b32 v{QF+6}, v{QF+6}, v4, s[68:69]', f'v_cndmask_b32 v{QF+7}, v{QF+7}, v3, s[68:69]')
    e('s_waitcnt lgkmcnt(4)')
    e(f'{MF32} {vr(S0,16)}, {vr(KB,4)}, {vr(QF,4)}, 0')
    e(f'{MF32} {vr(S0,16)}, {vr(KB+4,4)}, {vr(QF+4,4)}, {vr(S0,16)}')
    e('s_nop 7')
    e.c('STAMP 2')
    vq = ['KV1']*4 + ['KV2']*2
    BST = 3
    def tile_addr(g): return ((g // 4) % NSL)*SL + (g % 4)*4096
    for s in range(8):
        for i in range(4):
            g = 4*s + i
            Sc = S0 if i % 2 == 0 else S1
            Sn = S1 if i % 2 == 0 else S0
            Kn = KB + 8*((i+1) % 2); Kl = KB + 8*(i % 2)
            Vc = VB + 8*(i % 2); Vl = VB + 8*((i+1) % 2)
            def ex(r0): return [f'v_exp_f32 v{TT+r}, v{Sc+r}' for r in range(r0, r0+4)]
            def cv(r0): return [f'v_cvt_pk_bf16_f32 v{P+r0//2}, v{TT+r0}, v{TT+r0+1}', f'v_cvt_pk_bf16_f32 v{P+r0//2+1}, v{TT+r0+2}, v{TT+r0+3}']
            if i == 2 and s < 7:
                need = {f'KV{s+1}'} | ({'B'} if s == BST-1 else set())
                last = max(k for k, t in enumerate(vq) if t in need)
                e(f's_waitcnt vmcnt({len(vq)-1-last}) lgkmcnt(0)', 's_barrier')
                vq = vq[last+1:]
                if s + 3 < 8: e('s_add_u32 s65, s65, 16384', f's_add_u32 m0, s36, {((s+3) % NSL)*SL}')
            else:
                e('s_waitcnt lgkmcnt(0)')
            t = []
            if g + 1 < 32: t += [f'{MF32} {vr(Sn,16)}, {vr(Kn,4)}, {vr(QF,4)}, 0']
            if g + 2 < 32:
                ko = tile_addr(g+2)//512
                t += [f'ds_read2st64_b64 {vr(Kl,4)}, v{vKLane} offset0:{ko} offset1:{ko+1}', f'ds_read2st64_b64 {vr(Kl+4,4)}, v{vKLane} offset0:{ko+2} offset1:{ko+3}']
            t += cv(12) + ex(0)
            t += [f'{MF32} {vr(O,16)}, {vr(Vl+4,4)}, {vr(P+4,4)}, {vr(O,16)}']
            if g + 1 < 32:
                vo = tile_addr(g+1); va = vLane if vo < 65536 else vNxt; vo %= 65536
                t += [f'ds_read_b128 {vr(Vl,4)}, v{va} offset:{vo+2048}', f'ds_read_b128 {vr(Vl+4,4)}, v{va} offset:{vo+3072}']
            t += cv(0) + ex(4)
            if g + 1 < 32: t += [f'{MF32} {vr(Sn,16)}, {vr(Kn+4,4)}, {vr(QF+4,4)}, {vr(Sn,16)}']
            grp = s + 2 if i < 2 else s + 3
            if grp < 8:
                t += [f'buffer_load_dwordx4 v2, s[24:27], s65 offen offset:{1024*((i+2)%4)} lds']; vq.append(f'KV{grp}')
            t += cv(4) + ex(8)
            t += [f'{MF32} {vr(O,16)}, {vr(Vc,4)}, {vr(P,4)}, {vr(O,16)}']
            if s == 0 and i == 1:
                t += dma(40, f's_add_u32 m0, s36, {BO}'); vq += ['B']*4
            t += cv(8) + ex(12)
            if s == BST:
                t = weave(t, Bp[i])
                if i == 3: vq += ['st']*2
            e(*t)
            if wopf and s == 4 and i == 0:
                e('s_cmp_lt_u32 s2, 98', 's_cselect_b32 s41, s28, 1', 's_cmp_lg_u32 s41, 0', 's_cbranch_scc1 L_k2_nopf')
                e('s_cmp_lt_u32 s2, 49', 's_cselect_b32 s16, s4, s6', 's_cselect_b32 s17, s5, s7', f's_mov_b32 s18, {448*896}', 's_mov_b32 s19, 0x00020000')
                e('s_sub_u32 s41, s2, 49', 's_cselect_b32 s41, s2, s41')
                e('s_lshl_b32 s41, s41, 13', 'v_lshlrev_b32 v3, 7, v0', 'buffer_load_dword v127, v3, s[16:19], s41 offen')
                e.label('L_k2_nopf')
    e.c('STAMP 3')
    X = 0
    e('s_lshl_b32 s41, s32, 12')
    e(f'v_cvt_pk_bf16_f32 v{P+6}, v{TT+12}, v{TT+13}', f'v_cvt_pk_bf16_f32 v{P+7}, v{TT+14}, v{TT+15}')
    e('s_lshl_b32 s42, s33, 11', 's_add_u32 s43, s41, s42')
    e(f'{MF32} {vr(O,16)}, {vr(VB+12,4)}, {vr(P+4,4)}, {vr(O,16)}')
    e('s_xor_b32 s42, s42, 2048', 's_add_u32 s44, s41, s42')
    e('v_add_u32 v3, s43, v2', 'v_add_u32 v4, s44, v2')
    e('s_lshl_b32 s41, s28, 8', f's_add_u32 s41, s41, {X+16384}', 's_xor_b32 s42, s41, 1024')
    e('v_lshlrev_b32 v5, 2, v0', 'v_add_u32 v6, s42, v5', 'v_add_u32 v5, s41, v5')
    e(f'v_mov_b32 v7, {X+20480}')
    e('s_cmp_eq_u32 s33, 0', 's_cbranch_scc1 L_k2_e0')
    e(f'ds_write_b128 v3, {vr(O,4)}', f'ds_write_b128 v3, {vr(O+4,4)} offset:1024', f'ds_write_b32 v5, v{O+12}')
    for r in range(8): e(f'v_mov_b32 v{O+r}, v{O+8+r}')
    e('s_branch L_k2_e1')
    e.label('L_k2_e0')
    e(f'ds_write_b128 v3, {vr(O+8,4)}', f'ds_write_b128 v3, {vr(O+12,4)} offset:1024', f'ds_write_b32 v5, v{O+12}', 'ds_write_b32 v7, v1')
    e.label('L_k2_e1')
    e('s_waitcnt lgkmcnt(0)', 's_barrier')
    e(f'ds_read_b32 v{S0+8}, v6', f'ds_read_b128 {vr(S0,4)}, v4', f'ds_read_b128 {vr(S0+4,4)}, v4 offset:1024')
    e('s_lshl_b32 s41, s31, 17', 's_lshl_b32 s42, s32, 15', 's_add_u32 s41, s41, s42', 's_lshl_b32 s42, s30, 11', 's_add_u32 s41, s41, s42', 's_lshl_b32 s42, s33, 10', 's_add_u32 s41, s41, s42', f's_add_u32 s41, s41, {WS_O}')
    e('s_cmp_eq_u32 s33, 1', 's_cselect_b64 s[44:45], s[68:69], 0', 's_mov_b32 s42, 0x7e800000')
    e('s_waitcnt lgkmcnt(2)')
    e(f'v_add_f32 v5, v{O+12}, v{S0+8}', 'v_mov_b32 v6, v5')
    e('s_waitcnt lgkmcnt(0)')
    e(f'v_add_f32 v{O}, v{O}, v{S0}')
    e('v_permlane32_swap_b32 v6, v5')
    for r in range(1, 8): e(f'v_add_f32 v{O+r}, v{O+r}, v{S0+r}')
    e('v_rcp_f32 v4, v5', 'v_cmp_ngt_f32 vcc, s42, v5')
    e(f'v_mul_f32 v6, 0, v{O}', f'v_mul_f32 v3, 0, v{O+1}')
    for r in range(2, 8, 2): e(f'v_fma_f32 v6, v{O+r}, 0, v6', f'v_fma_f32 v3, v{O+r+1}, 0, v3')
    for r in range(8): e(f'v_mul_f32 v{O+r}, v4, v{O+r}')
    for k in range(4): e(f'v_cvt_pk_bf16_f32 v{P+k}, v{O+2*k}, v{O+2*k+1}')
    e(f'v_cndmask_b32 v{P+2}, v{P+2}, v1, s[44:45]', f'v_cndmask_b32 v{P+3}, v{P+3}, v1, s[44:45]')
    e('v_cmp_u_f32 s[46:47], v6, v3')
    e(f'buffer_store_dwordx4 {vr(P,4)}, v2, s[24:27], s41 offen{st}')
    e('s_or_b64 vcc, vcc, s[46:47]', 's_cmp_eq_u32 s60, 1', 's_cselect_b64 vcc, 0, vcc')
    e('s_cmp_eq_u64 vcc, 0', 's_cbranch_scc1 L_k2_ok')
    e('v_mov_b32 v6, 1', 'ds_write_b32 v7, v6', 's_waitcnt lgkmcnt(0)')
    e.label('L_k2_ok')
    e('s_barrier')
    e('ds_read_b32 v4, v7', 's_waitcnt lgkmcnt(0)', 'v_readfirstlane_b32 s41, v4', 's_nop 3')
    e('s_cmp_eq_u32 s41, 0', 's_cbranch_scc1 L_k2_end')
    e('s_waitcnt vmcnt(0)', 's_barrier')
    e('s_mov_b32 s60, 1', 's_add_u32 s65, s34, 32768')
    e(*dma(34, 's_mov_b32 m0, s36'))
    e(*dma(61, f's_add_u32 m0, s36, {SL}'))
    e(*dma(65, f's_add_u32 m0, s36, {2*SL}', range(2)))
    e('s_lshl_b32 s41, s30, 18', f's_add_u32 s41, s41, {WS_KV}', 's_mov_b32 s42, 0')
    e(f'v_cndmask_b32 v{QF+6}, v{QF+6}, v1, s[68:69]', f'v_cndmask_b32 v{QF+7}, v{QF+7}, v1, s[68:69]')
    e('v_mov_b32 v3, 0xff800000')
    e(*zero_state())
    e.label('L_k2_maxloop')
    for k in range(4): e(f'buffer_load_dwordx2 {vr(KB+2*k,2)}, v{vK8}, s[24:27], s41 offen offset:{512*k}')
    e('s_waitcnt vmcnt(0)')
    e(f'{MF32} {vr(S0,16)}, {vr(KB,4)}, {vr(QF,4)}, 0')
    e(f'{MF32} {vr(S0,16)}, {vr(KB+4,4)}, {vr(QF+4,4)}, {vr(S0,16)}')
    e('s_nop 7', 's_nop 3')
    for k in range(0, 16, 2): e(f'v_max3_f32 v3, v3, v{S0+k}, v{S0+k+1}')
    e('s_add_u32 s41, s41, 4096', 's_add_u32 s42, s42, 1', 's_cmp_lt_u32 s42, 64', 's_cbranch_scc1 L_k2_maxloop')
    e('v_mov_b32 v4, v3', 's_nop 1', 'v_permlane32_swap_b32 v3, v4', 'v_max_f32 v3, v3, v4')
    e('s_barrier')
    e('s_branch L_k2_setmax')
    e.label('L_k2_end')
    e('s_endpgm')
    return e.text(), dict(name='attn_kernel', vgpr=184, sgpr=72, grid=256, block=512, lds=BO+32768)

if __name__ == '__main__':
    from g3 import gen_k3
    ks = [gen_k1(), gen_k2(), gen_k3(st=' sc1')]
    assemble(ks, sys.argv[1] if len(sys.argv) > 1 else 'k.s')
```

```python
from g16 import *
WS_CNT = 0x1000000
WSB2 = WS_CNT + 2048

def gen_k1f(st=' sc1', rot=True, ahead=2):
    e = E()
    CH = 32768; NS = 5; WVR = 2*CH
    e.label('qkv_kernel')
    e('s_cmp_ge_u32 s2, 256', 's_cbranch_scc1 L_k1_end')
    e('s_load_dwordx4 s[4:7], s[0:1], 0', 's_load_dwordx4 s[8:11], s[0:1], 24', 's_load_dwordx2 s[12:13], s[0:1], 64')
    e('v_lshrrev_b32 v1, 6, v0', 'v_and_b32 v0, 63, v0')
    e('s_and_b32 s32, s2, 7', 's_lshr_b32 s33, s2, 3')
    e('v_readfirstlane_b32 s28, v1')
    e('s_cmp_ge_u32 s33, 28', 's_cbranch_scc1 L_k1_pads')
    e('s_lshr_b32 s29, s32, 2')
    e('s_and_b32 s31, s32, 3', 's_lshl_b32 s31, s31, 2', 's_and_b32 s34, s33, 3', 's_add_u32 s31, s31, s34')
    e('s_lshr_b32 s30, s33, 2')
    e('s_cmp_ge_u32 s28, 4', 's_cbranch_scc1 L_k1_loader')
    e('v_and_b32 v20, 31, v0', 'v_lshrrev_b32 v21, 5, v0')
    e('v_bfe_u32 v22, v20, 1, 3', 'v_xor_b32 v22, v22, v21')
    e('s_lshl_b32 s36, s28, 12')
    e('v_lshlrev_b32 v23, 7, v20', 'v_add_u32 v23, s36, v23')
    for t in range(4):
        e(f'v_xor_b32 v24, {2*t}, v22', f'v_lshl_add_u32 v{10+t}, v24, 4, v23')
    e('v_bfe_u32 v24, v0, 2, 2', 'v_lshl_add_u32 v25, v21, 3, v24', 'v_lshlrev_b32 v25, 7, v25')
    e('v_lshrrev_b32 v24, 1, v24', 'v_lshl_add_u32 v25, v24, 6, v25')
    e('v_bfe_u32 v24, v0, 4, 1', 'v_lshl_add_u32 v25, v24, 5, v25', 'v_and_b32 v24, 3, v0', 'v_lshl_add_u32 v14, v24, 3, v25')
    e('v_xor_b32 v15, 64, v14', 'v_add_u32 v16, 0x10000, v14', 'v_add_u32 v17, 0x10000, v15', 'v_add_u32 v18, 0x20000, v14', 'v_add_u32 v19, 0x20000, v15')
    for t in range(4): e(f'v_add_u32 v{2+t}, 0x10000, v{10+t}', f'v_add_u32 v{6+t}, 0x20000, v{10+t}')
    e('s_lshl_b32 s36, s30, 4')
    e('v_and_b32 v30, 1, v0', 'v_lshl_add_u32 v31, v30, 1, v21', 'v_and_b32 v30, 30, v20')
    for ch in range(2):
        for k in range(2):
            e(f'v_add_u32 v24, {8*ch+4*k}, v31', 'v_add_u32 v24, s36, v24')
            e('v_mul_u32_u24 v25, 147, v24', 'v_lshrrev_b32 v25, 10, v25')
            e('v_mul_u32_u24 v26, 7, v25', 'v_sub_u32 v26, v24, v26')
            e('v_lshlrev_b32 v27, 8, v26', 'v_lshl_add_u32 v27, v30, 3, v27')
            e(f'v_lshl_add_u32 v{192+2*ch+k}, v25, 17, v27', f'v_lshl_add_u32 v{196+2*ch+k}, v25, 18, v27')
    e('s_mov_b32 s56, 0x55555555', 's_mov_b32 s57, 0x55555555', 's_mov_b32 s58, 0xaaaaaaaa', 's_mov_b32 s59, 0xaaaaaaaa')
    e('s_lshl_b32 s36, s30, 6')
    for ch in range(2):
        e(f'v_add_u32 v24, {32*ch}, v20', 'v_add_u32 v24, s36, v24', 'v_mul_u32_u24 v25, 2341, v24', 'v_lshrrev_b32 v25, 16, v25')
        e('v_mul_u32_u24 v26, 28, v25', 'v_sub_u32 v26, v24, v26')
        e('v_bfe_u32 v27, v26, 3, 1', 'v_xor_b32 v27, v27, v21', 'v_lshlrev_b32 v27, 6, v27', 'v_and_b32 v24, 3, v26', 'v_lshl_add_u32 v27, v24, 4, v27')
        e('v_lshrrev_b32 v26, 2, v26', 'v_lshl_add_u32 v27, v26, 7, v27', f'v_lshl_add_u32 v{200+ch}, v25, 18, v27')
    e('s_mul_i32 s50, s29, %d' % WS_PSTRIDE)
    e('s_lshl_b32 s51, s31, 2', 's_add_u32 s51, s51, s28')
    e('s_lshl_b32 s52, s51, 11', 's_add_u32 s52, s52, s50')
    e('s_lshl_b32 s54, s51, 12', 's_add_u32 s54, s54, s50', f's_add_u32 s54, s54, {WS_KV}')
    e(f's_mov_b32 s55, {f32(QSCALE)}', 's_cmp_eq_u32 s29, 0', 's_cselect_b32 s55, s55, 1.0')
    e('s_waitcnt lgkmcnt(0)')
    srd(e, 24, 12, 13, WS_BYTES)
    XF = 32; WF = 144
    accs = {0: (204, 220), 1: (236, 176-8+8), 2: (204, 220)}
    accs = {0: (204, 220), 1: (236, 176), 2: (204, 220)}
    def ldsref(base3, off):
        return base3[off >> 16], off & 0xffff
    def readsA(T):
        b = WF + 16*(T % 2); r = []
        j, t = divmod(T, 4)
        so = (j % NS)*CH
        v, o = ldsref((10+t, 2+t, 6+t), so)
        r.append(f'ds_read_b128 {vr(XF+4*T,4)}, v{v} offset:{o}')
        for L in range(2):
            for ch in range(2):
                for ee in range(2):
                    v, o = ldsref((14+ch, 16+ch, 18+ch), so + 16384 + L*8192 + t*2048 + ee*512)
                    r.append(f'ds_read_b64_tr_b16 {vr(b+8*L+4*ch+2*ee,2)}, v{v} offset:{o}')
        return r
    def readsB(n):
        ch, T = divmod(n, 28)
        b = WF + 4*(n % 4)
        return [f'ds_read_b64_tr_b16 {vr(b+2*ee,2)}, v{16+ch} offset:{WVR - 0x10000 + T*2048 + ee*512}' for ee in range(2)]
    def epi(ps, chs=(0, 1)):
        o = []
        for ch in chs:
            a = accs[ps][ch]
            if ps == 0: o += [f'v_mul_f32 v{a+r}, s55, v{a+r}' for r in range(16)]
            o += [f'v_cvt_pk_bf16_f32 v{a+k}, v{a+2*k}, v{a+2*k+1}' for k in range(8)]
            if ps < 2:
                dp = 'quad_perm:[1,0,3,2] row_mask:0xf bank_mask:0xf'
                o += ['s_mov_b64 vcc, s[56:57]', 's_nop 0']
                for k in range(2):
                    A = a+4*k; B = A+2; D = a+8+4*k
                    o += [f'v_cndmask_b32_dpp v{D}, v{B}, v{A}, vcc {dp}', f'v_cndmask_b32_dpp v{D+1}, v{B+1}, v{A+1}, vcc {dp}']
                o += ['s_mov_b64 vcc, s[58:59]', 's_nop 0']
                for k in range(2):
                    A = a+4*k; B = A+2; D = a+8+4*k
                    o += [f'v_cndmask_b32_dpp v{D+2}, v{A}, v{B}, vcc {dp}', f'v_cndmask_b32_dpp v{D+3}, v{A+1}, v{B+1}, vcc {dp}']
                ab, so = (192, 52) if ps == 0 else (196, 54)
                o += [f'buffer_store_dwordx4 {vr(a+8+4*k,4)}, v{ab+2*ch+k}, s[24:27], s{so} offen{st}' for k in range(2)]
            else:
                o += [f'buffer_store_dwordx4 {vr(a,4)}, v{200+ch}, s[24:27], s54 offen offset:2048{st}', f'buffer_store_dwordx4 {vr(a+4,4)}, v{200+ch}, s[24:27], s54 offen offset:3072{st}']
        return o
    vacc = (160, 204)
    def epiV(ch):
        a = vacc[ch]
        o = [f'v_cvt_pk_bf16_f32 v{a+k}, v{a+2*k}, v{a+2*k+1}' for k in range(8)]
        return o + [f'buffer_store_dwordx4 {vr(a,4)}, v{200+ch}, s[24:27], s54 offen offset:2048{st}', f'buffer_store_dwordx4 {vr(a+4,4)}, v{200+ch}, s[24:27], s54 offen offset:3072{st}']
    e.c('STAMP 0')
    e('s_barrier')
    e.c('STAMP 1')
    e(*readsA(0))
    for T in range(28):
        b = WF + 16*(T % 2)
        e('s_waitcnt lgkmcnt(0)')
        if T + 1 < 28:
            if (T+1) % 4 == 0: e('s_barrier')
            rd = readsA(T+1)
        else:
            e('s_barrier')
            rd = []
        k = 0
        for L in range(2):
            for ch in range(2):
                a = accs[L][ch]
                Cc = '0' if T == 0 else vr(a, 16)
                e(f'{MF32} {vr(a,16)}, {vr(b+8*L+4*ch,4)}, {vr(XF+4*T,4)}, {Cc}')
                e(*rd[3*k:3*k+3]); k += 1
    e.c('STAMP 2')
    VA = (160, 252-16)
    pend = epi(0) + epi(1)
    e(*readsB(0)); e(*readsB(1)); e(*readsB(2))
    vacc = (160, 204)
    for n in range(56):
        ch, T = divmod(n, 28)
        if n + 3 < 56:
            if n + 3 == 16: e('s_barrier')
        e(f's_waitcnt lgkmcnt({2*min(2, 55-n)})')
        a = vacc[ch]
        Cc = '0' if T == 0 else vr(a, 16)
        e(f'{MF32} {vr(a,16)}, {vr(XF+4*T,4)}, {vr(WF+4*(n%4),4)}, {Cc}')
        if n + 3 < 56: e(*readsB(n+3))
        if n == 30: pend += epiV(0)
        if n >= 3 and pend:
            e(*pend[:4]); pend = pend[4:]
    assert not pend
    e.c('STAMP 3')
    e('s_nop 7', 's_nop 3')
    e(*epiV(1))
    e('s_endpgm')
    e.label('L_k1_loader')
    e('s_sub_u32 s28, s28, 4')
    e('s_lshl_b32 s35, s31, 7', 's_lshl_b32 s36, s28, 5', 's_add_u32 s35, s35, s36')
    e('v_lshrrev_b32 v7, 3, v0', 'v_add_u32 v4, s35, v7', 'v_mul_u32_u24 v4, 896, v4')
    e('v_and_b32 v5, 7, v0', 'v_lshrrev_b32 v6, 4, v0', 'v_xor_b32 v8, v5, v6')
    e('v_lshl_add_u32 v2, v8, 4, v4', 'v_xor_b32 v8, 4, v8', 'v_lshl_add_u32 v3, v8, 4, v4')
    e('v_add_u32 v3, 7168, v3', 'v_add_u32 v9, 14336, v2', 'v_add_u32 v10, 14336, v3')
    e('s_lshl_b32 s36, s28, 4', 'v_add_u32 v7, s36, v7', 'v_mul_u32_u24 v7, 2688, v7', 'v_and_b32 v6, 1, v6', 'v_lshlrev_b32 v6, 2, v6', 'v_xor_b32 v5, v5, v6')
    e('v_lshl_add_u32 v4, v5, 4, v7', 's_lshl_b32 s37, s30, 7', 'v_add_u32 v4, s37, v4', 'v_add_u32 v5, 21504, v4')
    e('s_lshl_b32 s48, s28, 12', 's_lshl_b32 s49, s28, 11')
    if rot:
        e('s_add_u32 s38, s31, s30', 's_sub_u32 s39, s38, 14', 's_cselect_b32 s38, s38, s39', 's_sub_u32 s39, s38, 7', 's_cselect_b32 s38, s38, s39')
        e('s_sub_u32 s39, s38, 7', 's_cselect_b32 s38, s38, s39')
    else:
        e('s_mov_b32 s38, 0')
    for j in range(7):
        e(f's_lshl_b32 s{60+j}, s38, 7', f's_mul_i32 s{50+j}, s38, 172032', 's_add_u32 s38, s38, 1', 's_cmp_eq_u32 s38, 7', 's_cselect_b32 s38, 0, s38')
    e('s_waitcnt lgkmcnt(0)')
    e('s_cmp_eq_u32 s29, 0', 's_cselect_b32 s14, s4, s8', 's_cselect_b32 s15, s5, s9', 's_cselect_b32 s40, s6, s10', 's_cselect_b32 s41, s7, s11')
    srd(e, 16, 14, 15, 2048*896)
    srd(e, 20, 40, 41, 448*2688)
    q_ = []
    def X(j):
        for q, v in enumerate((2, 3, 9, 10)):
            e(f's_add_u32 m0, s48, {(j % NS)*CH + q*1024}', 's_nop 0', f'buffer_load_dwordx4 v{v}, s[16:19], s{60+j} offen lds'); q_.append(('C', j))
    def W(L, j):
        base = (j % NS)*CH + 16384 + L*8192 if L < 2 else WVR + j*8192
        for i in range(2):
            e(f's_add_u32 m0, s49, {base + i*1024 - L*896}', 's_nop 0', f'buffer_load_dwordx4 v{4+i}, s[20:23], s{50+j} offen offset:{L*896} lds'); q_.append(('C', j) if L < 2 else ('V', j))
    def Cc(j): X(j); W(0, j); W(1, j)
    def waitfor(tags):
        last = max(i for i, t in enumerate(q_) if t in tags)
        e(f's_waitcnt vmcnt({len(q_)-1-last})', 's_barrier')
    e.c('STAMP 0')
    for j in range(ahead): Cc(j)
    e.c('STAMP 1')
    nxt = ahead
    for k in range(7):
        waitfor({('C', k)})
        if k == 0: e.c('STAMP 2')
        if nxt < 7 and (nxt < NS or nxt - NS <= k - 1): Cc(nxt); nxt += 1
        if k == 0 and nxt < 7 and ahead < 3: Cc(nxt); nxt += 1
        if k == 4: [W(2, j) for j in range(4)]
        if k == 5: [W(2, j) for j in range(4, 7)]
    assert nxt == 7
    e.c('STAMP 3')
    waitfor({('V', j) for j in range(4)})
    waitfor({('V', j) for j in range(7)})
    e('s_endpgm')
    e.label('L_k1_pads')
    e('s_sub_u32 s33, s33, 28', 's_lshl_b32 s33, s33, 3', 's_add_u32 s33, s33, s32', 's_lshl_b32 s33, s33, 3', 's_add_u32 s33, s33, s28', 's_lshl_b32 s33, s33, 6')
    e('v_add_u32 v1, s33, v0')
    e('v_mov_b32 v8, 0', 'v_mov_b32 v12, 0x3f803f80', 'v_mov_b32 v13, 0x00003f80', 'v_mov_b32 v14, 0x3f803f80', 'v_mov_b32 v15, 0x00003f80')
    e('v_and_b32 v2, 15, v1', 'v_lshrrev_b32 v6, 4, v1', 'v_lshlrev_b32 v6, 12, v6', 'v_lshl_add_u32 v5, v2, 4, v6', 'v_add_u32 v5, 1792, v5')
    e('v_and_b32 v2, 3, v1', 'v_bfe_u32 v3, v1, 3, 1', 'v_and_b32 v4, 7, v1')
    e('v_lshl_add_u32 v6, v3, 10, v6', 'v_lshl_add_u32 v6, v4, 4, v6', 'v_add_u32 v6, %d, v6' % (2048 + 896))
    e('v_cmp_eq_u32 vcc, 0, v2', 's_nop 1')
    for k in range(4): e(f'v_cndmask_b32 v{16+k}, v8, v12, vcc')
    e('s_waitcnt lgkmcnt(0)')
    srd(e, 24, 12, 13, WS_BYTES)
    for p in range(2):
        e(f's_mov_b32 s42, {p*WS_PSTRIDE + WS_KV}', f'buffer_store_dwordx4 v[12:15], v5, s[24:27], s42 offen{st}', f'buffer_store_dwordx4 v[16:19], v6, s[24:27], s42 offen{st}')
    e(f's_mov_b32 s26, {WSB2}', f's_mov_b32 s42, {WS_CNT}', 'v_lshlrev_b32 v2, 2, v1', f'buffer_store_dword v8, v2, s[24:27], s42 offen{st}')
    e.label('L_k1_end')
    e('s_endpgm')
    return e.text(), dict(name='qkv_kernel', vgpr=252, sgpr=80, grid=256, block=512, lds=163840)


def gen_k2f(st=' sc1', prio=0, PF=8):
    e = E()
    SL = 32768; NSL = 4; BO = NSL*SL; QO = 3*SL
    e.label('attn_kernel')
    e('s_cmp_ge_u32 s2, 256', 's_cbranch_scc1 L_k2_end')
    e('s_load_dwordx2 s[12:13], s[0:1], 64')
    e('s_load_dwordx2 s[4:5], s[0:1], 16', 's_load_dwordx2 s[6:7], s[0:1], 40', 's_load_dwordx2 s[8:9], s[0:1], 48')
    e('v_lshrrev_b32 v1, 6, v0', 'v_and_b32 v0, 63, v0')
    e('s_and_b32 s3, s2, 7', 's_lshl_b32 s30, s3, 1', 's_bfe_u32 s3, s2, 0x10003', 's_add_u32 s30, s30, s3')
    e('v_readfirstlane_b32 s28, v1')
    e('s_lshr_b32 s31, s2, 4')
    e('v_lshlrev_b32 v2, 4, v0', 's_mov_b32 s60, 0', 'v_mov_b32 v1, 0')
    X = 0
    e(f'v_mov_b32 v7, {X+20480}')
    e('s_and_b32 s74, s2, 7', 's_lshl_b32 s74, s74, 1', 's_lshr_b32 s75, s2, 7', 's_add_u32 s74, s74, s75', 's_bfe_u32 s75, s2, 0x40003')
    e('s_cmp_ge_u32 s75, 7', 's_cselect_b32 s72, 1, 0', 's_mul_i32 s73, s72, 7', 's_sub_u32 s73, s75, s73')
    e('s_cmp_ge_u32 s28, 8', 's_cbranch_scc1 L_k2_aux')
    e('s_and_b32 s32, s28, 3', 's_lshr_b32 s33, s28, 2')
    QF = 8; S0, S1 = 16, 32; P = 48; O = 56; KB = 72; VB = 88; TT = 104
    vNxt, vLane, vK8, vKLane, vQ = 120, 121, 122, 123, 124
    e('v_and_b32 v3, 31, v0', 'v_lshrrev_b32 v4, 5, v0', f'v_lshlrev_b32 v{vK8}, 3, v3', f'v_lshl_add_u32 v{vK8}, v4, 8, v{vK8}')
    e('v_bfe_u32 v5, v0, 3, 1', 'v_xor_b32 v5, v5, v4', 'v_lshlrev_b32 v5, 6, v5', 'v_and_b32 v6, 3, v0', 'v_lshl_add_u32 v5, v6, 4, v5', 'v_lshrrev_b32 v6, 2, v3', 'v_lshl_add_u32 v5, v6, 7, v5')
    e('s_lshl_b32 s41, s33, 14', f'v_add_u32 v{vLane}, s41, v5', f'v_add_u32 v{vKLane}, s41, v{vK8}', f'v_add_u32 v{vNxt}, 0x10000, v{vLane}')
    e('s_lshl_b32 s41, s32, 11', f's_add_u32 s41, s41, {QO}', f'v_add_u32 v{vQ}, s41, v{vK8}')
    e('s_mov_b32 s68, 0', 's_mov_b32 s69, -1', 's_mov_b32 s59, 0xffff0000')
    def zero_state():
        z = [f'v_mov_b32 v{O+r}, 0' for r in range(16)]
        for r in range(4): z += [f'v_mov_b32 v{P+4+r}, 0', f'v_mov_b32 v{TT+12+r}, 0', f'v_mov_b32 v{VB+12+r}, 0']
        return z
    e(*zero_state())
    e('s_waitcnt lgkmcnt(0)')
    srd(e, 24, 12, 13, WSB2)
    if prio: e(f's_setprio {prio}')
    e.c('STAMP 0')
    e('s_barrier')
    e.c('STAMP 1')
    e(f'ds_read2st64_b64 {vr(QF,4)}, v{vQ} offset0:0 offset1:1', f'ds_read2st64_b64 {vr(TT,4)}, v{vK8} offset0:0 offset1:1')
    e(f'ds_read2st64_b64 {vr(QF+4,4)}, v{vQ} offset0:2 offset1:3', f'ds_read2st64_b64 {vr(TT+4,4)}, v{vK8} offset0:2 offset1:3')
    e('s_waitcnt lgkmcnt(2)')
    e(f'{MF32} {vr(S1,16)}, {vr(TT,4)}, {vr(QF,4)}, 0')
    e(f'ds_read2st64_b64 {vr(KB,4)}, v{vKLane} offset0:0 offset1:1', f'ds_read2st64_b64 {vr(KB+4,4)}, v{vKLane} offset0:2 offset1:3')
    e('s_waitcnt lgkmcnt(2)')
    e(f'v_cndmask_b32 v{QF+6}, v{QF+6}, v1, s[68:69]', f'v_cndmask_b32 v{QF+7}, v{QF+7}, v1, s[68:69]', 's_nop 1')
    e(f'{MF32} {vr(S1,16)}, {vr(TT+4,4)}, {vr(QF+4,4)}, {vr(S1,16)}')
    e('s_waitcnt lgkmcnt(0)')
    e(f'{MF32} {vr(S0,16)}, {vr(KB,4)}, {vr(QF,4)}, 0')
    e(f'{MF32} {vr(S0,16)}, {vr(KB+4,4)}, {vr(QF+4,4)}, {vr(S0,16)}')
    e(f'ds_read2st64_b64 {vr(KB+8,4)}, v{vKLane} offset0:8 offset1:9', f'ds_read2st64_b64 {vr(KB+12,4)}, v{vKLane} offset0:10 offset1:11')
    e(f'ds_read_b128 {vr(VB,4)}, v{vLane} offset:2048', f'ds_read_b128 {vr(VB+4,4)}, v{vLane} offset:3072')
    e('s_nop 4')
    e(f'v_max3_f32 v3, v{S1}, v{S1+1}, v{S1+2}', f'v_max3_f32 v4, v{S1+3}, v{S1+4}, v{S1+5}')
    e(f'v_max3_f32 v3, v3, v{S1+6}, v{S1+7}', f'v_max3_f32 v4, v4, v{S1+8}, v{S1+9}', f'v_max3_f32 v3, v3, v{S1+10}, v{S1+11}', f'v_max3_f32 v4, v4, v{S1+12}, v{S1+13}')
    e(f'v_max3_f32 v3, v3, v{S1+14}, v{S1+15}', 'v_max_f32 v3, v3, v4')
    e('v_mov_b32 v4, v3', 's_nop 1', 'v_permlane32_swap_b32 v3, v4', 'v_max_f32 v3, v3, v4', f'v_add_f32 v3, {f32(OFFM2)}, v3')
    e.label('L_k2_setmax')
    e('v_sub_f32 v6, 0, v3', 'v_and_b32 v4, s59, v6', 'v_sub_f32 v6, v6, v4', 'v_and_b32 v5, s59, v6', 'v_sub_f32 v6, v6, v5')
    e('v_lshrrev_b32 v4, 16, v4', 'v_or_b32 v4, v4, v5', 'v_lshrrev_b32 v6, 16, v6')
    e(f'v_cndmask_b32 v{QF+6}, v{QF+6}, v4, s[68:69]', f'v_cndmask_b32 v{QF+7}, v{QF+7}, v6, s[68:69]')
    for r in range(16): e(f'v_sub_f32 v{S0+r}, v{S0+r}, v3')
    e.c('STAMP 2')
    def tile_addr(g): return ((g // 4) % NSL)*SL + (g % 4)*4096
    for s in range(8):
        for i in range(4):
            g = 4*s + i
            Sc = S0 if i % 2 == 0 else S1
            Sn = S1 if i % 2 == 0 else S0
            Kn = KB + 8*((i+1) % 2); Kl = KB + 8*(i % 2)
            Vc = VB + 8*(i % 2); Vl = VB + 8*((i+1) % 2)
            def ex(r0): return [f'v_exp_f32 v{TT+r}, v{Sc+r}' for r in range(r0, r0+4)]
            def cv(r0): return [f'v_cvt_pk_bf16_f32 v{P+r0//2}, v{TT+r0}, v{TT+r0+1}', f'v_cvt_pk_bf16_f32 v{P+r0//2+1}, v{TT+r0+2}, v{TT+r0+3}']
            e('s_waitcnt lgkmcnt(0)')
            if i == 2 and s < 7: e('s_barrier')
            t = []
            if g + 1 < 32: t += [f'{MF32} {vr(Sn,16)}, {vr(Kn,4)}, {vr(QF,4)}, 0']
            if g + 2 < 32:
                ko = tile_addr(g+2)//512
                t += [f'ds_read2st64_b64 {vr(Kl,4)}, v{vKLane} offset0:{ko} offset1:{ko+1}', f'ds_read2st64_b64 {vr(Kl+4,4)}, v{vKLane} offset0:{ko+2} offset1:{ko+3}']
            t += cv(12) + ex(0)
            t += [f'{MF32} {vr(O,16)}, {vr(Vl+4,4)}, {vr(P+4,4)}, {vr(O,16)}']
            if g + 1 < 32:
                vo = tile_addr(g+1); va = vLane if vo < 65536 else vNxt; vo %= 65536
                t += [f'ds_read_b128 {vr(Vl,4)}, v{va} offset:{vo+2048}', f'ds_read_b128 {vr(Vl+4,4)}, v{va} offset:{vo+3072}']
            t += cv(0) + ex(4)
            if g + 1 < 32: t += [f'{MF32} {vr(Sn,16)}, {vr(Kn+4,4)}, {vr(QF+4,4)}, {vr(Sn,16)}']
            t += cv(4) + ex(8)
            t += [f'{MF32} {vr(O,16)}, {vr(Vc,4)}, {vr(P,4)}, {vr(O,16)}']
            t += cv(8) + ex(12)
            e(*t)
    e.c('STAMP 3')
    e('s_lshl_b32 s41, s32, 12')
    e(f'v_cvt_pk_bf16_f32 v{P+6}, v{TT+12}, v{TT+13}', f'v_cvt_pk_bf16_f32 v{P+7}, v{TT+14}, v{TT+15}')
    e('s_lshl_b32 s42, s33, 11', 's_add_u32 s43, s41, s42')
    e(f'{MF32} {vr(O,16)}, {vr(VB+12,4)}, {vr(P+4,4)}, {vr(O,16)}')
    e('s_xor_b32 s42, s42, 2048', 's_add_u32 s44, s41, s42')
    e('v_add_u32 v3, s43, v2', 'v_add_u32 v4, s44, v2')
    e('s_lshl_b32 s41, s28, 8', f's_add_u32 s41, s41, {X+16384}', 's_xor_b32 s42, s41, 1024')
    e('v_lshlrev_b32 v5, 2, v0', 'v_add_u32 v6, s42, v5', 'v_add_u32 v5, s41, v5')
    e('s_nop 0')
    e('s_cmp_eq_u32 s33, 0', 's_cbranch_scc1 L_k2_e0')
    e(f'ds_write_b128 v3, {vr(O,4)}', f'ds_write_b128 v3, {vr(O+4,4)} offset:1024', f'ds_write_b32 v5, v{O+12}')
    for r in range(8): e(f'v_mov_b32 v{O+r}, v{O+8+r}')
    e('s_branch L_k2_e1')
    e.label('L_k2_e0')
    e(f'ds_write_b128 v3, {vr(O+8,4)}', f'ds_write_b128 v3, {vr(O+12,4)} offset:1024', f'ds_write_b32 v5, v{O+12}')
    e.label('L_k2_e1')
    e('s_waitcnt lgkmcnt(0)', 's_barrier')
    e(f'ds_read_b32 v{S0+8}, v6', f'ds_read_b128 {vr(S0,4)}, v4', f'ds_read_b128 {vr(S0+4,4)}, v4 offset:1024')
    e('s_lshl_b32 s41, s31, 17', 's_lshl_b32 s42, s32, 15', 's_add_u32 s41, s41, s42', 's_lshl_b32 s42, s30, 11', 's_add_u32 s41, s41, s42', 's_lshl_b32 s42, s33, 10', 's_add_u32 s41, s41, s42', f's_add_u32 s41, s41, {WS_O}')
    e('s_cmp_eq_u32 s33, 1', 's_cselect_b64 s[44:45], s[68:69], 0', 's_mov_b32 s42, 0x7e800000')
    e('s_waitcnt lgkmcnt(2)')
    e(f'v_add_f32 v5, v{O+12}, v{S0+8}', 'v_mov_b32 v6, v5')
    e('s_waitcnt lgkmcnt(0)')
    e(f'v_add_f32 v{O}, v{O}, v{S0}')
    e('v_permlane32_swap_b32 v6, v5')
    for r in range(1, 8): e(f'v_add_f32 v{O+r}, v{O+r}, v{S0+r}')
    e('v_rcp_f32 v4, v5', 'v_cmp_ngt_f32 vcc, s42, v5')
    e(f'v_mul_f32 v6, 0, v{O}', f'v_mul_f32 v3, 0, v{O+1}')
    for r in range(2, 8, 2): e(f'v_fma_f32 v6, v{O+r}, 0, v6', f'v_fma_f32 v3, v{O+r+1}, 0, v3')
    for r in range(8): e(f'v_mul_f32 v{O+r}, v4, v{O+r}')
    for k in range(4): e(f'v_cvt_pk_bf16_f32 v{P+k}, v{O+2*k}, v{O+2*k+1}')
    e(f'v_cndmask_b32 v{P+2}, v{P+2}, v1, s[44:45]', f'v_cndmask_b32 v{P+3}, v{P+3}, v1, s[44:45]')
    e('v_cmp_u_f32 s[46:47], v6, v3')
    e(f'buffer_store_dwordx4 {vr(P,4)}, v2, s[24:27], s41 offen{st}')
    e('s_or_b64 vcc, vcc, s[46:47]', 's_cmp_eq_u32 s60, 1', 's_cselect_b64 vcc, 0, vcc')
    e('s_cmp_eq_u64 vcc, 0', 's_cbranch_scc1 L_k2_ok')
    e('v_mov_b32 v6, 1', 'ds_write_b32 v7, v6', 's_waitcnt lgkmcnt(0)')
    e.label('L_k2_ok')
    e('s_waitcnt vmcnt(0)', 's_barrier')
    e('ds_read_b32 v4, v7', 's_waitcnt lgkmcnt(0)', 'v_readfirstlane_b32 s41, v4', 's_nop 3')
    e('s_cmp_eq_u32 s41, 0', 's_cbranch_scc1 L_k2_proj')
    e('s_barrier')
    e('s_mov_b32 s60, 1')
    e('s_lshl_b32 s41, s30, 18', f's_add_u32 s41, s41, {WS_KV}', 's_mov_b32 s42, 0')
    e(f'v_cndmask_b32 v{QF+6}, v{QF+6}, v1, s[68:69]', f'v_cndmask_b32 v{QF+7}, v{QF+7}, v1, s[68:69]')
    e('v_mov_b32 v3, 0xff800000')
    e(*zero_state())
    e.label('L_k2_maxloop')
    for k in range(4): e(f'buffer_load_dwordx2 {vr(KB+2*k,2)}, v{vK8}, s[24:27], s41 offen offset:{512*k}')
    e('s_waitcnt vmcnt(0)')
    e(f'{MF32} {vr(S0,16)}, {vr(KB,4)}, {vr(QF,4)}, 0')
    e(f'{MF32} {vr(S0,16)}, {vr(KB+4,4)}, {vr(QF+4,4)}, {vr(S0,16)}')
    e('s_nop 7', 's_nop 3')
    for k in range(0, 16, 2): e(f'v_max3_f32 v3, v3, v{S0+k}, v{S0+k+1}')
    e('s_add_u32 s41, s41, 4096', 's_add_u32 s42, s42, 1', 's_cmp_lt_u32 s42, 64', 's_cbranch_scc1 L_k2_maxloop')
    e('v_mov_b32 v4, v3', 's_nop 1', 'v_permlane32_swap_b32 v3, v4', 'v_max_f32 v3, v3, v4')
    e('s_barrier')
    e(f'ds_read2st64_b64 {vr(KB,4)}, v{vKLane} offset0:0 offset1:1', f'ds_read2st64_b64 {vr(KB+4,4)}, v{vKLane} offset0:2 offset1:3')
    e(f'ds_read2st64_b64 {vr(KB+8,4)}, v{vKLane} offset0:8 offset1:9', f'ds_read2st64_b64 {vr(KB+12,4)}, v{vKLane} offset0:10 offset1:11')
    e(f'ds_read_b128 {vr(VB,4)}, v{vLane} offset:2048', f'ds_read_b128 {vr(VB+4,4)}, v{vLane} offset:3072')
    e('s_waitcnt lgkmcnt(0)')
    e(f'{MF32} {vr(S0,16)}, {vr(KB,4)}, {vr(QF,4)}, 0')
    e(f'{MF32} {vr(S0,16)}, {vr(KB+4,4)}, {vr(QF+4,4)}, {vr(S0,16)}')
    e('s_nop 7', 's_nop 3')
    e('s_branch L_k2_setmax')
    e.label('L_k2_aux')
    e('s_sub_u32 s28, s28, 8')
    e('s_lshl_b32 s36, s28, 10', 'v_add_u32 v8, s36, v2')
    for t in range(1, 4): e(f'v_add_u32 v{8+t}, {4096*t}, v8')
    e('s_lshl_b32 s41, s30, 18', f's_add_u32 s34, s41, {WS_KV}')
    e('s_lshl_b32 s37, s30, 17', 's_lshl_b32 s38, s31, 13', 's_add_u32 s37, s37, s38')
    e(f's_add_u32 s39, s37, {WS_PSTRIDE + WS_Q}')
    e('s_lshl_b32 s40, s31, 14', 's_add_u32 s40, s40, s41', f's_add_u32 s40, s40, {WS_PSTRIDE + WS_KV}')
    e('s_sub_u32 s42, s40, 4096', 's_cmp_eq_u32 s31, 0', 's_cselect_b32 s42, s40, s42')
    bQ, bKp, bKc, bV0, bV1, bS, bC, bT = 16, 24, 32, 40, 48, 56, 72, 84
    def bsetup():
        e('v_and_b32 v3, 15, v0', 'v_lshrrev_b32 v4, 4, v0', 'v_lshrrev_b32 v5, 1, v4', 'v_and_b32 v6, 1, v4')
        e('v_lshlrev_b32 v12, 10, v5', 'v_lshl_add_u32 v12, v6, 8, v12', 'v_lshl_add_u32 v12, v3, 3, v12')
        e('v_lshlrev_b32 v13, 9, v6', 'v_lshl_add_u32 v13, v3, 4, v13', 'v_lshl_add_u32 v13, v5, 10, v13')
        e('v_bfe_u32 v14, v0, 3, 1', 'v_xor_b32 v14, v14, v6', 'v_lshlrev_b32 v14, 6, v14', 'v_and_b32 v6, 3, v0', 'v_lshl_add_u32 v14, v6, 4, v14', 'v_lshrrev_b32 v6, 2, v3', 'v_lshl_add_u32 v14, v6, 7, v14', 'v_lshl_add_u32 v14, v5, 3, v14')
        e('s_lshl_b32 s43, s28, 11', f's_add_u32 s43, s43, {BO}', 'v_add_u32 v15, s43, v12')
        e('s_lshl_b32 s44, s28, 12', f's_add_u32 s44, s44, {BO + 8192}', 'v_add_u32 v12, s44, v12', 'v_add_u32 v14, s44, v14')
        e('v_mov_b32 v5, 0xf149f2ca', 's_or_b32 s55, s31, s28')
        for r in range(12):
            m = 0
            for l in range(64):
                d = (l & 15) - 4*(l >> 4) - (r % 4) + (0 if 4 <= r < 8 else 16)
                if 0 <= d <= 14 and d % 2 == 0: m |= 1 << l
            sp = 64 + 2*(r % 2)
            e(f's_mov_b32 s{sp}, 0x{m & 0xffffffff:08x}', f's_mov_b32 s{sp+1}, 0x{m >> 32:08x}')
            if r >= 8: e('s_cmp_eq_u32 s55, 0', f's_cselect_b64 s[{sp}:{sp+1}], 0, s[{sp}:{sp+1}]')
            e(f'v_cndmask_b32 v{bC+r}, v5, v1, s[{sp}:{sp+1}]')
        e('s_mov_b32 s70, 0', 's_mov_b32 s71, 0xffff0000', f's_mov_b32 s57, {f32(28 ** -0.5 * 1.4426950408889634)}')
        e('s_lshl_b32 s47, s31, 2', 's_add_u32 s47, s47, s28', 's_lshl_b32 s47, s47, 15', 's_lshl_b32 s48, s30, 11', 's_add_u32 s47, s47, s48', f's_add_u32 s47, s47, {WS_O + 0x200000}')
    SETUP_AFTER = True
    e('s_waitcnt lgkmcnt(0)')
    srd(e, 24, 12, 13, WSB2)
    vq = []
    def ld(v, so, m0off, tag):
        e(f's_add_u32 m0, s36, {m0off}', 's_nop 0', f'buffer_load_dwordx4 v{v}, s[24:27], s{so} offen lds'); vq.append(tag)
    def KV(s, tiles=range(4), tag=None):
        for t in tiles:
            for kh in range(2):
                ld(8+t, 62+kh, (s % NSL)*SL + kh*16384 + t*4096, tag or f'KV{s}')
    def setkv(s): e(f's_add_u32 s62, s34, {s*16384}', f's_add_u32 s63, s34, {s*16384 + 131072}')
    def waitfor(tags):
        nonlocal vq
        idx = [k for k, t in enumerate(vq) if t in tags]
        if idx:
            e(f's_waitcnt vmcnt({len(vq)-1-max(idx)})'); vq = vq[max(idx)+1:]
        e('s_barrier')
    ld(8, 37, QO, 'Q'); ld(9, 37, QO + 4096, 'Q')
    e.label('L_k2_aux2')
    setkv(0); KV(0, range(2), 'T01'); KV(0, range(2, 4), 'T23')
    if SETUP_AFTER: bsetup()
    waitfor({'Q', 'T01', 'T23'})
    setkv(1); KV(1)
    setkv(2); KV(2)
    ld(8, 39, BO, 'B'); ld(9, 39, BO + 4096, 'B'); ld(8, 42, BO + 8192, 'B')
    for t in range(4): ld(8+t, 40, BO + 12288 + 4096*t, 'B')
    def bunit(u):
        q, kp, kc, v0_, v1_, S = bQ+4*u, bKp+4*u, bKc+4*u, bV0+4*u, bV1+4*u, bS+8*u
        T = bT + 8*u; a, b2 = T+4, T+5
        cp = bC + (8 if u == 0 else 0)
        kpo, kco = (128, 4096) if u == 0 else (4096, 4096+128)
        vpo, vco = (2048+1024, 4096+2048) if u == 0 else (4096+2048, 4096+3072)
        r = [f'ds_read_b64 {vr(q,2)}, v15 offset:{128*u}', f'ds_read_b64 {vr(q+2,2)}, v15 offset:{128*u+512}',
             f'ds_read_b64 {vr(kp,2)}, v12 offset:{kpo}', f'ds_read_b64 {vr(kp+2,2)}, v12 offset:{kpo+512}',
             f'ds_read_b64 {vr(kc,2)}, v12 offset:{kco}', f'ds_read_b64 {vr(kc+2,2)}, v12 offset:{kco+512}']
        r2 = [f'ds_read_b64 {vr(v0_,2)}, v14 offset:{vpo}', f'ds_read_b64 {vr(v0_+2,2)}, v14 offset:{vco}', f'ds_read_b64 {vr(v1_,2)}, v14 offset:{vpo+512}', f'ds_read_b64 {vr(v1_+2,2)}, v14 offset:{vco+512}']
        b = [f'v_cndmask_b32 v{q+2}, v{q+2}, v1, s[70:71]', f'v_cndmask_b32 v{q+3}, v{q+3}, v1, s[70:71]', 's_nop 1',
             f'{MF16} {vr(S,4)}, {vr(kp,4)}, {vr(q,4)}, {vr(cp,4)}', f'{MF16} {vr(S+4,4)}, {vr(kc,4)}, {vr(q,4)}, {vr(bC+4,4)}', 's_nop 7',
             f'v_max3_f32 v{a}, v{S}, v{S+1}, v{S+2}', f'v_max3_f32 v{b2}, v{S+3}, v{S+4}, v{S+5}', f'v_max3_f32 v{a}, v{a}, v{S+6}, v{S+7}', f'v_max_f32 v{a}, v{a}, v{b2}',
             f'v_mov_b32 v{b2}, v{a}', 's_nop 1', f'v_permlane32_swap_b32 v{a}, v{b2}', f'v_max_f32 v{a}, v{a}, v{b2}',
             f'v_mov_b32 v{b2}, v{a}', 's_nop 1', f'v_permlane16_swap_b32 v{a}, v{b2}', f'v_max_f32 v{a}, v{a}, v{b2}', f'v_mul_f32 v{a}, s57, v{a}']
        b += [f'v_fma_f32 v{S+k}, v{S+k}, s57, -v{a}' for k in range(8)]
        b += [f'v_exp_f32 v{S+k}, v{S+k}' for k in range(8)]
        b += [f'v_cvt_pk_bf16_f32 v{T+k}, v{S+2*k}, v{S+2*k+1}' for k in range(4)]
        b += ['s_nop 1', f'{MF16} {vr(S+4,4)}, {vr(v1_,4)}, {vr(T,4)}, 0', f'{MF16} {vr(S,4)}, {vr(v0_,4)}, {vr(T,4)}, 0', 's_nop 7']
        b += [f'v_mov_b32 v{a}, v{S+4}', f'v_mov_b32 v{b2}, v{S+4}', 's_nop 1', f'v_permlane32_swap_b32 v{b2}, v{a}',
              f'v_mov_b32 v{b2}, v{a}', 's_nop 1', f'v_permlane16_swap_b32 v{b2}, v{a}', f'v_rcp_f32 v{a}, v{a}', 's_nop 0']
        b += [f'v_mul_f32 v{S+k}, v{a}, v{S+k}' for k in range(8)]
        b += [f'v_cvt_pk_bf16_f32 v{T+k}, v{S+2*k}, v{S+2*k+1}' for k in range(4)]
        b += [f'v_cndmask_b32 v{T+2}, v{T+2}, v1, s[70:71]', f'v_cndmask_b32 v{T+3}, v{T+3}, v1, s[70:71]', 's_nop 1',
              f'v_permlane32_swap_b32 v{T}, v{T+2}', f'v_permlane32_swap_b32 v{T+1}, v{T+3}', f'buffer_store_dwordx4 {vr(T,4)}, v13, s[24:27], s47 offen offset:{256*u}{st}']
        return r, r2, b
    for s in range(7):
        waitfor({f'KV{s+1}'} | ({'B'} if s == 1 else set()))
        if s + 3 < 8: setkv(s+3); KV(s+3)
        if s == 1:
            r0, r20, b0 = bunit(0); r1, r21, b1 = bunit(1)
            e(*r0); e(*r1); e('s_waitcnt lgkmcnt(0)'); e(*r20); e(*r21)
            m = []
            for x, y in zip(b0, b1): m += [x, y] if not x.startswith('s_nop') else [x]
            k1_ = next(i for i, x in enumerate(m) if 'v_fma' in x)
            k2_ = max(i for i, x in enumerate(m) if 'v_mfma' in x) + 1
            e(*m[:k1_]); e('s_waitcnt lgkmcnt(0)')
        if s == 2: e(*m[k1_:k2_])
        if s == 3:
            e(*m[k2_:]); vq += ['st', 'st']
        if s == 4 or s == 6:
            if s == 4:
                e('s_cmp_eq_u32 s72, 0', 's_cselect_b32 s16, s4, s6', 's_cselect_b32 s17, s5, s7', f's_mov_b32 s18, {448*896}', 's_mov_b32 s19, 0x00020000')
                e('v_lshrrev_b32 v3, 3, v0', 's_lshl_b32 s41, s28, 3', 'v_add_u32 v3, s41, v3', 'v_mul_u32_u24 v3, 896, v3')
                e('v_and_b32 v5, 7, v0', 'v_bfe_u32 v6, v0, 4, 1', 'v_lshlrev_b32 v6, 2, v6', 'v_xor_b32 v5, v5, v6', 'v_lshl_add_u32 v4, v5, 4, v3')
                e('s_lshl_b32 s41, s73, 7', 'v_add_u32 v4, s41, v4')
            for k in range(7):
                e(f's_add_u32 m0, s36, {(BO if s == 4 else SL) + k*4096}', f's_mov_b32 s50, {((0 if s == 4 else 224) + k*32)*896}', 'buffer_load_dwordx4 v4, s[16:19], s50 offen lds'); vq.append('wo')
        if s == 5: e('ds_write_b32 v7, v1')
    e('s_waitcnt vmcnt(0) lgkmcnt(0)')
    e('s_barrier', 's_barrier')
    e('ds_read_b32 v4, v7', 's_waitcnt lgkmcnt(0)', 'v_readfirstlane_b32 s41, v4', 's_nop 3')
    e('s_cmp_lg_u32 s41, 0', 's_cbranch_scc1 L_k2_auxfb')
    e('s_cmp_lg_u32 s28, 0', 's_cbranch_scc1 L_k2_end')
    e('s_lshl_b32 s41, s31, 7', f's_add_u32 s41, s41, {WS_CNT}', 's_mov_b64 exec, 1', 'v_mov_b32 v3, 1')
    e('buffer_atomic_add v3, v1, s[24:27], s41 offen sc1')
    e('s_cmp_ge_u32 s75, 14', 's_cbranch_scc1 L_k2_end')
    e('s_mov_b32 s42, 0', 's_lshl_b32 s41, s74, 7', f's_add_u32 s41, s41, {WS_CNT}')
    e.label('L_k2_poll')
    e('buffer_load_dword v4, v1, s[24:27], s41 offen sc1', 's_add_u32 s42, s42, 1', 's_waitcnt vmcnt(0)', 'v_readfirstlane_b32 s43, v4', 's_nop 3')
    e('s_cmp_ge_u32 s43, 16', 's_cbranch_scc1 L_k2_go')
    e('s_cmp_lt_u32 s42, 0x100000', 's_cbranch_scc1 L_k2_poll')
    e.label('L_k2_go')
    e('s_barrier')
    e('s_endpgm')
    e.label('L_k2_auxfb')
    e('s_waitcnt vmcnt(0)', 's_barrier')
    e('s_branch L_k2_aux2')
    e.label('L_k2_proj')
    e('s_cmp_ge_u32 s28, 4', 's_cbranch_scc1 L_k2_end', 's_cmp_ge_u32 s75, 14', 's_cbranch_scc1 L_k2_end')
    e('s_lshl_b32 s34, s74, 2', 's_add_u32 s34, s34, s28', 's_lshl_b32 s34, s34, 15', 's_lshl_b32 s35, s72, 21', 's_add_u32 s34, s34, s35', f's_add_u32 s34, s34, {WS_O}')
    srd(e, 20, 8, 9, 2048*1792)
    OF = 16; AF = 80; ACC = 112
    e('v_lshrrev_b32 v145, 5, v0', 'v_bfe_u32 v146, v0, 2, 2', 'v_lshl_add_u32 v147, v145, 2, v146', 'v_lshlrev_b32 v147, 7, v147')
    e('v_bfe_u32 v148, v0, 4, 1', 'v_lshl_add_u32 v147, v148, 5, v147', 'v_and_b32 v148, 3, v0', 'v_lshl_add_u32 v147, v148, 3, v147')
    e('v_lshrrev_b32 v146, 1, v146', 'v_lshl_add_u32 v147, v146, 6, v147', f'v_add_u32 v3, {BO}, v147', 'v_xor_b32 v4, 64, v3')
    e('v_lshlrev_b32 v148, 10, v145', 'v_sub_u32 v5, v3, v148', 'v_sub_u32 v6, v4, v148')
    for k in range(4): e(f'v_subrev_u32 v{8+k}, {BO-SL}, v{3+k}')
    RS = 144
    e('s_mul_i32 s37, s28, 4608', f's_add_u32 s37, s37, {2*SL}')
    e('v_and_b32 v146, 31, v0', f'v_mul_u32_u24 v12, {RS}, v146', 'v_lshl_add_u32 v12, v145, 3, v12', 'v_add_u32 v12, s37, v12')
    e('v_lshrrev_b32 v146, 3, v0', 'v_and_b32 v147, 7, v0', f'v_mul_u32_u24 v13, {RS}, v146', 'v_lshl_add_u32 v13, v147, 4, v13', 'v_add_u32 v13, s37, v13')
    e('v_mul_u32_u24 v14, 1792, v146', 'v_lshl_add_u32 v14, v147, 4, v14')
    e('s_lshl_b32 s39, s74, 7', 's_lshl_b32 s40, s28, 5', 's_add_u32 s39, s39, s40', 's_mul_i32 s39, s39, 1792', 's_mul_i32 s40, s72, 896', 's_add_u32 s39, s39, s40', 's_lshl_b32 s40, s73, 7', 's_add_u32 s39, s39, s40')
    def oload(hd):
        if hd % 2 == 0: e(f's_add_u32 s36, s34, {hd*2048}')
        o = (hd % 2)*2048; r = OF + 8*(hd % 8)
        e(f'buffer_load_dwordx4 {vr(r,4)}, v2, s[24:27], s36 offen offset:{o} sc1', f'buffer_load_dwordx4 {vr(r+4,4)}, v2, s[24:27], s36 offen offset:{o+1024} sc1')
    def preads(hd):
        b = AF + 16*(hd % 2); r = []; base = 3 if hd < 8 else 8
        for nt in range(2):
            for t in range(2):
                for ee in range(2):
                    a_ = base + (2+nt if (t == 1 and ee == 1) else nt)
                    r.append(f'ds_read_b64_tr_b16 {vr(b+8*nt+4*t+2*ee,2)}, v{a_} offset:{(hd % 8)*3584 + t*2048 + ee*1024}')
        return r
    e(*preads(0))
    e('s_barrier')
    for hd in range(PF): oload(hd)
    nload = PF
    for hd in range(16):
        b = AF + 16*(hd % 2)
        e(f's_waitcnt vmcnt({2*(nload-1-hd)}) lgkmcnt(0)')
        rd = preads(hd+1) if hd + 1 < 16 else []
        k = 0
        for t in range(2):
            for nt in range(2):
                Cc = '0' if (hd == 0 and t == 0) else vr(ACC+16*nt, 16)
                e(f'{MF32} {vr(ACC+16*nt,16)}, {vr(b+8*nt+4*t,4)}, {vr(OF+8*(hd%8)+4*t,4)}, {Cc}')
                e(*rd[2*k:2*k+2]); k += 1
        if nload < 16: oload(nload); nload += 1
    e('s_nop 7', 's_nop 3')
    for nt in range(2):
        for rg in range(4):
            a_ = ACC + 16*nt + 4*rg; d = 16 + 8*nt + 2*rg
            e(f'v_cvt_pk_bf16_f32 v{d}, v{a_}, v{a_+1}', f'v_cvt_pk_bf16_f32 v{d+1}, v{a_+2}, v{a_+3}')
            e(f'ds_write_b64 v12, {vr(d,2)} offset:{64*nt + 16*rg}')
    e('s_waitcnt lgkmcnt(0)')
    for i in range(4): e(f'ds_read_b128 {vr(32+4*i,4)}, v13 offset:{8*RS*i}')
    for i in range(4):
        e(f's_add_u32 s40, s39, {8*1792*i}', f's_waitcnt lgkmcnt({3-i})', f'buffer_store_dwordx4 {vr(32+4*i,4)}, v14, s[20:23], s40 offen{st}')
    e.label('L_k2_end')
    e('s_endpgm')
    return e.text(), dict(name='attn_kernel', vgpr=152, sgpr=80, grid=256, block=768, lds=BO+32768)


if __name__ == '__main__':
    ks = [gen_k1f(), gen_k2f()]
    assemble(ks, sys.argv[1] if len(sys.argv) > 1 else 'k.s')
```

```python
from g16 import *
WS_CNT = 0x1000000
WSB2 = WS_CNT + 2048

def gen_k1f(st=' sc1', rot=True, ahead=2, touch=0, tstart=1, ktouch=0, groups=(7,)):
    e = E()
    CH = 32768; NS = 5; WVR = 2*CH
    e.label('qkv_kernel')
    e('s_cmp_ge_u32 s2, 256', 's_cbranch_scc1 L_k1_end')
    e('s_load_dwordx4 s[4:7], s[0:1], 0', 's_load_dwordx4 s[8:11], s[0:1], 24', 's_load_dwordx2 s[12:13], s[0:1], 64')
    e('v_lshrrev_b32 v1, 6, v0', 'v_and_b32 v0, 63, v0')
    e('s_and_b32 s32, s2, 7', 's_lshr_b32 s33, s2, 3')
    e('v_readfirstlane_b32 s28, v1')
    e('s_cmp_ge_u32 s33, 28', 's_cbranch_scc1 L_k1_pads')
    e('s_lshr_b32 s29, s32, 2')
    e('s_and_b32 s31, s32, 3', 's_lshl_b32 s31, s31, 2', 's_and_b32 s34, s33, 3', 's_add_u32 s31, s31, s34')
    e('s_lshr_b32 s30, s33, 2')
    e('s_cmp_ge_u32 s28, 4', 's_cbranch_scc1 L_k1_loader')
    e('v_and_b32 v20, 31, v0', 'v_lshrrev_b32 v21, 5, v0')
    e('v_bfe_u32 v22, v20, 1, 3', 'v_xor_b32 v22, v22, v21')
    e('s_lshl_b32 s36, s28, 12')
    e('v_lshlrev_b32 v23, 7, v20', 'v_add_u32 v23, s36, v23')
    for t in range(4):
        e(f'v_xor_b32 v24, {2*t}, v22', f'v_lshl_add_u32 v{10+t}, v24, 4, v23')
    e('v_bfe_u32 v24, v0, 2, 2', 'v_lshl_add_u32 v25, v21, 3, v24', 'v_lshlrev_b32 v25, 7, v25')
    e('v_lshrrev_b32 v24, 1, v24', 'v_lshl_add_u32 v25, v24, 6, v25')
    e('v_bfe_u32 v24, v0, 4, 1', 'v_lshl_add_u32 v25, v24, 5, v25', 'v_and_b32 v24, 3, v0', 'v_lshl_add_u32 v14, v24, 3, v25')
    e('v_xor_b32 v15, 64, v14', 'v_add_u32 v16, 0x10000, v14', 'v_add_u32 v17, 0x10000, v15', 'v_add_u32 v18, 0x20000, v14', 'v_add_u32 v19, 0x20000, v15')
    for t in range(4): e(f'v_add_u32 v{2+t}, 0x10000, v{10+t}', f'v_add_u32 v{6+t}, 0x20000, v{10+t}')
    e('s_lshl_b32 s36, s30, 4')
    e('v_and_b32 v30, 1, v0', 'v_lshl_add_u32 v31, v30, 1, v21', 'v_and_b32 v30, 30, v20')
    for ch in range(2):
        for k in range(2):
            e(f'v_add_u32 v24, {8*ch+4*k}, v31', 'v_add_u32 v24, s36, v24')
            e('v_mul_u32_u24 v25, 147, v24', 'v_lshrrev_b32 v25, 10, v25')
            e('v_mul_u32_u24 v26, 7, v25', 'v_sub_u32 v26, v24, v26')
            e('v_lshlrev_b32 v27, 8, v26', 'v_lshl_add_u32 v27, v30, 3, v27')
            e(f'v_lshl_add_u32 v{192+2*ch+k}, v25, 17, v27', f'v_lshl_add_u32 v{196+2*ch+k}, v25, 18, v27')
    e('s_mov_b32 s56, 0x55555555', 's_mov_b32 s57, 0x55555555', 's_mov_b32 s58, 0xaaaaaaaa', 's_mov_b32 s59, 0xaaaaaaaa')
    e('s_lshl_b32 s36, s30, 6')
    for ch in range(2):
        e(f'v_add_u32 v24, {32*ch}, v20', 'v_add_u32 v24, s36, v24', 'v_mul_u32_u24 v25, 2341, v24', 'v_lshrrev_b32 v25, 16, v25')
        e('v_mul_u32_u24 v26, 28, v25', 'v_sub_u32 v26, v24, v26')
        e('v_bfe_u32 v27, v26, 3, 1', 'v_xor_b32 v27, v27, v21', 'v_lshlrev_b32 v27, 6, v27', 'v_and_b32 v24, 3, v26', 'v_lshl_add_u32 v27, v24, 4, v27')
        e('v_lshrrev_b32 v26, 2, v26', 'v_lshl_add_u32 v27, v26, 7, v27', f'v_lshl_add_u32 v{200+ch}, v25, 18, v27')
    e('s_mul_i32 s50, s29, %d' % WS_PSTRIDE)
    e('s_lshl_b32 s51, s31, 2', 's_add_u32 s51, s51, s28')
    e('s_lshl_b32 s52, s51, 11', 's_add_u32 s52, s52, s50')
    e('s_lshl_b32 s54, s51, 12', 's_add_u32 s54, s54, s50', f's_add_u32 s54, s54, {WS_KV}')
    e(f's_mov_b32 s55, {f32(QSCALE)}', 's_cmp_eq_u32 s29, 0', 's_cselect_b32 s55, s55, 1.0')
    e('s_waitcnt lgkmcnt(0)')
    srd(e, 24, 12, 13, WS_BYTES)
    XF = 32; WF = 144
    accs = {0: (204, 220), 1: (236, 176-8+8), 2: (204, 220)}
    accs = {0: (204, 220), 1: (236, 176), 2: (204, 220)}
    def ldsref(base3, off):
        return base3[off >> 16], off & 0xffff
    def readsA(T):
        b = WF + 16*(T % 2); r = []
        j, t = divmod(T, 4)
        so = (j % NS)*CH
        v, o = ldsref((10+t, 2+t, 6+t), so)
        r.append(f'ds_read_b128 {vr(XF+4*T,4)}, v{v} offset:{o}')
        for L in range(2):
            for ch in range(2):
                for ee in range(2):
                    v, o = ldsref((14+ch, 16+ch, 18+ch), so + 16384 + L*8192 + t*2048 + ee*512)
                    r.append(f'ds_read_b64_tr_b16 {vr(b+8*L+4*ch+2*ee,2)}, v{v} offset:{o}')
        return r
    def readsB(n):
        ch, T = divmod(n, 28)
        b = WF + 4*(n % 4)
        return [f'ds_read_b64_tr_b16 {vr(b+2*ee,2)}, v{16+ch} offset:{WVR - 0x10000 + T*2048 + ee*512}' for ee in range(2)]
    def epi(ps, chs=(0, 1)):
        o = []
        for ch in chs:
            a = accs[ps][ch]
            if ps == 0: o += [f'v_mul_f32 v{a+r}, s55, v{a+r}' for r in range(16)]
            o += [f'v_cvt_pk_bf16_f32 v{a+k}, v{a+2*k}, v{a+2*k+1}' for k in range(8)]
            if ps < 2:
                dp = 'quad_perm:[1,0,3,2] row_mask:0xf bank_mask:0xf'
                o += ['s_mov_b64 vcc, s[56:57]', 's_nop 0']
                for k in range(2):
                    A = a+4*k; B = A+2; D = a+8+4*k
                    o += [f'v_cndmask_b32_dpp v{D}, v{B}, v{A}, vcc {dp}', f'v_cndmask_b32_dpp v{D+1}, v{B+1}, v{A+1}, vcc {dp}']
                o += ['s_mov_b64 vcc, s[58:59]', 's_nop 0']
                for k in range(2):
                    A = a+4*k; B = A+2; D = a+8+4*k
                    o += [f'v_cndmask_b32_dpp v{D+2}, v{A}, v{B}, vcc {dp}', f'v_cndmask_b32_dpp v{D+3}, v{A+1}, v{B+1}, vcc {dp}']
                ab, so = (192, 52) if ps == 0 else (196, 54)
                o += [f'buffer_store_dwordx4 {vr(a+8+4*k,4)}, v{ab+2*ch+k}, s[24:27], s{so} offen{st}' for k in range(2)]
            else:
                o += [f'buffer_store_dwordx4 {vr(a,4)}, v{200+ch}, s[24:27], s54 offen offset:2048{st}', f'buffer_store_dwordx4 {vr(a+4,4)}, v{200+ch}, s[24:27], s54 offen offset:3072{st}']
        return o
    vacc = (160, 204)
    def epiV(ch):
        a = vacc[ch]
        o = [f'v_cvt_pk_bf16_f32 v{a+k}, v{a+2*k}, v{a+2*k+1}' for k in range(8)]
        return o + [f'buffer_store_dwordx4 {vr(a,4)}, v{200+ch}, s[24:27], s54 offen offset:2048{st}', f'buffer_store_dwordx4 {vr(a+4,4)}, v{200+ch}, s[24:27], s54 offen offset:3072{st}']
    if ktouch:
        e('s_cmp_eq_u32 s29, 0', 's_cselect_b32 s16, s4, s8', 's_cselect_b32 s17, s5, s9', f's_mov_b32 s18, {2048*896}', 's_mov_b32 s19, 0x00020000')
        e('s_cselect_b32 s20, s6, s10', 's_cselect_b32 s21, s7, s11', f's_mov_b32 s22, {448*2688}', 's_mov_b32 s23, 0x00020000')
        e('v_mul_u32_u24 v24, 27, v0', 'v_lshrrev_b32 v24, 9, v24', 'v_min_u32 v24, 2, v24', 'v_mul_u32_u24 v25, 19, v24', 'v_sub_u32 v25, v0, v25')
        e('s_mul_i32 s42, s30, 19', 'v_add_u32 v25, s42, v25', 'v_min_u32 v25, 0x7f, v25', 's_lshl_b32 s42, s31, 7', 'v_add_u32 v25, s42, v25', 'v_mul_u32_u24 v25, 896, v25', 'v_lshl_add_u32 v28, v24, 7, v25')
        e('s_and_b32 s42, s31, 3', 's_lshl_b32 s43, s42, 4', 'v_bfe_u32 v24, v0, 1, 4', 'v_add_u32 v24, s43, v24', 'v_lshl_add_u32 v24, v21, 6, v24', 'v_mul_u32_u24 v24, 2688, v24')
        e('v_and_b32 v25, 1, v0', 'v_mul_u32_u24 v25, 896, v25', 's_lshl_b32 s43, s30, 7', 'v_add3_u32 v29, v24, v25, s43')
        e('s_mul_i32 s42, s42, 112', 'v_min_u32 v24, 55, v0', 'v_add_u32 v24, s42, v24', 'v_mul_u32_u24 v24, 2688, v24', 's_add_u32 s43, s43, 1792', 'v_add_u32 v30, s43, v24')
        e('s_barrier')
        e('s_cmp_eq_u32 s28, 1', 's_cbranch_scc1 L_k1_t1', 's_cmp_eq_u32 s28, 2', 's_cbranch_scc1 L_k1_t2', 's_cmp_eq_u32 s28, 3', 's_cbranch_scc1 L_k1_t3')
        e('buffer_load_dword v31, v28, s[16:19], 0 offen offset:128', 'buffer_load_dword v31, v30, s[20:23], 0 offen', 's_branch L_k1_td')
        e.label('L_k1_t1')
        e(f's_mov_b32 s42, {172032}', f's_mov_b32 s43, {5*172032}', 'buffer_load_dword v31, v29, s[20:23], s42 offen', 'buffer_load_dword v31, v29, s[20:23], s43 offen', 's_branch L_k1_td')
        e.label('L_k1_t2')
        e(f's_mov_b32 s42, {3*172032}', 'buffer_load_dword v31, v29, s[20:23], s42 offen', 's_branch L_k1_td')
        e.label('L_k1_t3')
        e(f's_mov_b32 s42, {56*2688}', 'buffer_load_dword v31, v28, s[16:19], 0 offen offset:512', 'buffer_load_dword v31, v30, s[20:23], s42 offen')
        e.label('L_k1_td')
    e.c('STAMP 0')
    e('s_barrier')
    e.c('STAMP 1')
    e(*readsA(0))
    for T in range(28):
        b = WF + 16*(T % 2)
        e('s_waitcnt lgkmcnt(0)')
        if T + 1 < 28:
            if (T+1) % 4 == 0: e('s_barrier')
            rd = readsA(T+1)
        else:
            e('s_barrier')
            rd = []
        k = 0
        for L in range(2):
            for ch in range(2):
                a = accs[L][ch]
                Cc = '0' if T == 0 else vr(a, 16)
                e(f'{MF32} {vr(a,16)}, {vr(b+8*L+4*ch,4)}, {vr(XF+4*T,4)}, {Cc}')
                e(*rd[3*k:3*k+3]); k += 1
    e.c('STAMP 2')
    VA = (160, 252-16)
    pend = epi(0) + epi(1)
    e(*readsB(0)); e(*readsB(1)); e(*readsB(2))
    vacc = (160, 204)
    for n in range(56):
        ch, T = divmod(n, 28)
        if n + 3 < 56:
            if n + 3 == 16: e('s_barrier')
        e(f's_waitcnt lgkmcnt({2*min(2, 55-n)})')
        a = vacc[ch]
        Cc = '0' if T == 0 else vr(a, 16)
        e(f'{MF32} {vr(a,16)}, {vr(XF+4*T,4)}, {vr(WF+4*(n%4),4)}, {Cc}')
        if n + 3 < 56: e(*readsB(n+3))
        if n == 30: pend += epiV(0)
        if n >= 3 and pend:
            e(*pend[:4]); pend = pend[4:]
    assert not pend
    e.c('STAMP 3')
    e('s_nop 7', 's_nop 3')
    e(*epiV(1))
    e('s_endpgm')
    e.label('L_k1_loader')
    e('s_sub_u32 s28, s28, 4')
    e('s_lshl_b32 s35, s31, 7', 's_lshl_b32 s36, s28, 5', 's_add_u32 s35, s35, s36')
    e('v_lshrrev_b32 v7, 3, v0', 'v_add_u32 v4, s35, v7', 'v_mul_u32_u24 v4, 896, v4')
    e('v_and_b32 v5, 7, v0', 'v_lshrrev_b32 v6, 4, v0', 'v_xor_b32 v8, v5, v6')
    e('v_lshl_add_u32 v2, v8, 4, v4', 'v_xor_b32 v8, 4, v8', 'v_lshl_add_u32 v3, v8, 4, v4')
    e('v_add_u32 v3, 7168, v3', 'v_add_u32 v9, 14336, v2', 'v_add_u32 v10, 14336, v3')
    e('s_lshl_b32 s36, s28, 4', 'v_add_u32 v7, s36, v7', 'v_mul_u32_u24 v7, 2688, v7', 'v_and_b32 v6, 1, v6', 'v_lshlrev_b32 v6, 2, v6', 'v_xor_b32 v5, v5, v6')
    e('v_lshl_add_u32 v4, v5, 4, v7', 's_lshl_b32 s37, s30, 7', 'v_add_u32 v4, s37, v4', 'v_add_u32 v5, 21504, v4')
    e('s_lshl_b32 s48, s28, 12', 's_lshl_b32 s49, s28, 11')
    e('s_add_u32 s37, s31, s30')
    j0 = 0
    for gsz in (groups if rot else (1,)*7):
        M = -(-65536 // gsz)
        e(f's_mul_i32 s39, s37, {M}', 's_lshr_b32 s39, s39, 16', f's_mul_i32 s39, s39, {gsz}', 's_sub_u32 s38, s37, s39')
        for j in range(j0, j0+gsz):
            e(f's_add_u32 s39, s38, {j0}', f's_lshl_b32 s{60+j}, s39, 7', f's_mul_i32 s{50+j}, s39, 172032', 's_add_u32 s38, s38, 1', f's_cmp_eq_u32 s38, {gsz}', 's_cselect_b32 s38, 0, s38')
        j0 += gsz
    assert j0 == 7
    e('s_waitcnt lgkmcnt(0)')
    e('s_cmp_eq_u32 s29, 0', 's_cselect_b32 s14, s4, s8', 's_cselect_b32 s15, s5, s9', 's_cselect_b32 s40, s6, s10', 's_cselect_b32 s41, s7, s11')
    srd(e, 16, 14, 15, 2048*896)
    srd(e, 20, 40, 41, 448*2688)
    q_ = []
    def X(j):
        for q, v in enumerate((2, 3, 9, 10)):
            e(f's_add_u32 m0, s48, {(j % NS)*CH + q*1024}', 's_nop 0', f'buffer_load_dwordx4 v{v}, s[16:19], s{60+j} offen lds'); q_.append(('C', j))
    def W(L, j):
        base = (j % NS)*CH + 16384 + L*8192 if L < 2 else WVR + j*8192
        for i in range(2):
            e(f's_add_u32 m0, s49, {base + i*1024 - L*896}', 's_nop 0', f'buffer_load_dwordx4 v{4+i}, s[20:23], s{50+j} offen offset:{L*896} lds'); q_.append(('C', j) if L < 2 else ('V', j))
    def Cc(j): X(j); W(0, j); W(1, j)
    def waitfor(tags):
        last = max(i for i, t in enumerate(q_) if t in tags)
        e(f's_waitcnt vmcnt({len(q_)-1-last})', 's_barrier')
    e.c('STAMP 0')
    for j in range(ahead):
        Cc(j)
        if ktouch and j == ktouch - 1: e('s_barrier')
    e.c('STAMP 1')
    nxt = ahead
    for k in range(7):
        waitfor({('C', k)})
        if k == 0: e.c('STAMP 2')
        if nxt < 7 and (nxt < NS or nxt - NS <= k - 1): Cc(nxt); nxt += 1
        if k == 0 and nxt < 7 and ahead < 3: Cc(nxt); nxt += 1
        if k <= 1 and nxt < NS and ahead < 2: Cc(nxt); nxt += 1
        if k == 4: [W(2, j) for j in range(4)]
        if k == 5: [W(2, j) for j in range(4, 7)]
    assert nxt == 7
    e.c('STAMP 3')
    waitfor({('V', j) for j in range(4)})
    waitfor({('V', j) for j in range(7)})
    e('s_endpgm')
    e.label('L_k1_pads')
    e('s_sub_u32 s33, s33, 28', 's_lshl_b32 s33, s33, 3', 's_add_u32 s33, s33, s32', 's_lshl_b32 s33, s33, 3', 's_add_u32 s33, s33, s28', 's_lshl_b32 s33, s33, 6')
    e('v_add_u32 v1, s33, v0')
    e('v_mov_b32 v8, 0', 'v_mov_b32 v12, 0x3f803f80', 'v_mov_b32 v13, 0x00003f80', 'v_mov_b32 v14, 0x3f803f80', 'v_mov_b32 v15, 0x00003f80')
    e('v_and_b32 v2, 15, v1', 'v_lshrrev_b32 v6, 4, v1', 'v_lshlrev_b32 v6, 12, v6', 'v_lshl_add_u32 v5, v2, 4, v6', 'v_add_u32 v5, 1792, v5')
    e('v_and_b32 v2, 3, v1', 'v_bfe_u32 v3, v1, 3, 1', 'v_and_b32 v4, 7, v1')
    e('v_lshl_add_u32 v6, v3, 10, v6', 'v_lshl_add_u32 v6, v4, 4, v6', 'v_add_u32 v6, %d, v6' % (2048 + 896))
    e('v_cmp_eq_u32 vcc, 0, v2', 's_nop 1')
    for k in range(4): e(f'v_cndmask_b32 v{16+k}, v8, v12, vcc')
    e('s_waitcnt lgkmcnt(0)')
    srd(e, 24, 12, 13, WS_BYTES)
    for p in range(2):
        e(f's_mov_b32 s42, {p*WS_PSTRIDE + WS_KV}', f'buffer_store_dwordx4 v[12:15], v5, s[24:27], s42 offen{st}', f'buffer_store_dwordx4 v[16:19], v6, s[24:27], s42 offen{st}')
    if touch:
        e('s_lshr_b32 s34, s33, 6')
        e('s_cmp_ge_u32 s34, 212', 's_cbranch_scc1 L_k1_notouch')
        e('s_cmp_ge_u32 s34, 128', 's_cbranch_scc1 L_k1_touchw')
        e('s_cmp_lt_u32 s34, 64', 's_cselect_b32 s16, s4, s8', 's_cselect_b32 s17, s5, s9', f's_mov_b32 s18, {2048*896}', 's_mov_b32 s19, 0x00020000')
        e('v_and_b32 v24, 0xfff, v1', 'v_lshrrev_b32 v25, 1, v24', 'v_mul_u32_u24 v25, 896, v25', 'v_and_b32 v24, 1, v24', 'v_lshl_add_u32 v25, v24, 7, v25', f's_mov_b32 s43, {128*tstart}', 's_mov_b32 s44, 256', 's_branch L_k1_touch')
        e.label('L_k1_touchw')
        e('s_cmp_lt_u32 s34, 170', 's_cselect_b32 s16, s6, s10', 's_cselect_b32 s17, s7, s11', f's_mov_b32 s18, {448*2688}', 's_mov_b32 s19, 0x00020000', 's_cselect_b32 s35, 0, 42', 's_add_u32 s35, s35, 128')
        e('s_sub_u32 s34, s34, s35', 's_lshl_b32 s34, s34, 13', 'v_lshlrev_b32 v25, 7, v0', 'v_add_u32 v25, s34, v25', f's_mov_b32 s43, {172032*tstart}', 's_mov_b32 s44, 344064')
        e.label('L_k1_touch')
        for r in range(3):
            e('buffer_load_dword v26, v25, s[16:19], s43 offen', 's_add_u32 s43, s43, s44')
            if r < 2 and touch == 1: e('s_waitcnt vmcnt(0)')
        e.label('L_k1_notouch')
    e(f's_mov_b32 s26, {WSB2}', f's_mov_b32 s42, {WS_CNT}', 'v_lshlrev_b32 v2, 2, v1', f'buffer_store_dword v8, v2, s[24:27], s42 offen{st}')
    e.label('L_k1_end')
    e('s_endpgm')
    return e.text(), dict(name='qkv_kernel', vgpr=252, sgpr=80, grid=256, block=512, lds=163840)


def gen_k2f(st=' sc1', prio=0, PF=8):
    e = E()
    SL = 32768; NSL = 4; BO = NSL*SL; QO = 3*SL
    e.label('attn_kernel')
    e('s_cmp_ge_u32 s2, 256', 's_cbranch_scc1 L_k2_end')
    e('s_load_dwordx2 s[12:13], s[0:1], 64')
    e('s_load_dwordx2 s[4:5], s[0:1], 16', 's_load_dwordx2 s[6:7], s[0:1], 40', 's_load_dwordx2 s[8:9], s[0:1], 48')
    e('v_lshrrev_b32 v1, 6, v0', 'v_and_b32 v0, 63, v0')
    e('s_and_b32 s3, s2, 7', 's_lshl_b32 s30, s3, 1', 's_bfe_u32 s3, s2, 0x10003', 's_add_u32 s30, s30, s3')
    e('v_readfirstlane_b32 s28, v1')
    e('s_lshr_b32 s31, s2, 4')
    e('v_lshlrev_b32 v2, 4, v0', 's_mov_b32 s60, 0', 'v_mov_b32 v1, 0')
    X = 0
    e(f'v_mov_b32 v7, {X+20480}')
    e('s_and_b32 s74, s2, 7', 's_lshl_b32 s74, s74, 1', 's_lshr_b32 s75, s2, 7', 's_add_u32 s74, s74, s75', 's_bfe_u32 s75, s2, 0x40003')
    e('s_cmp_ge_u32 s75, 7', 's_cselect_b32 s72, 1, 0', 's_mul_i32 s73, s72, 7', 's_sub_u32 s73, s75, s73')
    e('s_cmp_ge_u32 s28, 8', 's_cbranch_scc1 L_k2_aux')
    e('s_and_b32 s32, s28, 3', 's_lshr_b32 s33, s28, 2')
    QF = 8; S0, S1 = 16, 32; P = 48; O = 56; KB = 72; VB = 88; TT = 104
    vNxt, vLane, vK8, vKLane, vQ = 120, 121, 122, 123, 124
    e('v_and_b32 v3, 31, v0', 'v_lshrrev_b32 v4, 5, v0', f'v_lshlrev_b32 v{vK8}, 3, v3', f'v_lshl_add_u32 v{vK8}, v4, 8, v{vK8}')
    e('v_bfe_u32 v5, v0, 3, 1', 'v_xor_b32 v5, v5, v4', 'v_lshlrev_b32 v5, 6, v5', 'v_and_b32 v6, 3, v0', 'v_lshl_add_u32 v5, v6, 4, v5', 'v_lshrrev_b32 v6, 2, v3', 'v_lshl_add_u32 v5, v6, 7, v5')
    e('s_lshl_b32 s41, s33, 14', f'v_add_u32 v{vLane}, s41, v5', f'v_add_u32 v{vKLane}, s41, v{vK8}', f'v_add_u32 v{vNxt}, 0x10000, v{vLane}')
    e('s_lshl_b32 s41, s32, 11', f's_add_u32 s41, s41, {QO}', f'v_add_u32 v{vQ}, s41, v{vK8}')
    e('s_mov_b32 s68, 0', 's_mov_b32 s69, -1', 's_mov_b32 s59, 0xffff0000')
    def zero_state():
        z = [f'v_mov_b32 v{O+r}, 0' for r in range(16)]
        for r in range(4): z += [f'v_mov_b32 v{P+4+r}, 0', f'v_mov_b32 v{TT+12+r}, 0', f'v_mov_b32 v{VB+12+r}, 0']
        return z
    e(*zero_state())
    e('s_waitcnt lgkmcnt(0)')
    srd(e, 24, 12, 13, WSB2)
    if prio: e(f's_setprio {prio}')
    e.c('STAMP 0')
    e('s_barrier')
    e.c('STAMP 1')
    e(f'ds_read2st64_b64 {vr(QF,4)}, v{vQ} offset0:0 offset1:1', f'ds_read2st64_b64 {vr(TT,4)}, v{vK8} offset0:0 offset1:1')
    e(f'ds_read2st64_b64 {vr(QF+4,4)}, v{vQ} offset0:2 offset1:3', f'ds_read2st64_b64 {vr(TT+4,4)}, v{vK8} offset0:2 offset1:3')
    e('s_waitcnt lgkmcnt(2)')
    e(f'{MF32} {vr(S1,16)}, {vr(TT,4)}, {vr(QF,4)}, 0')
    e(f'ds_read2st64_b64 {vr(KB,4)}, v{vKLane} offset0:0 offset1:1', f'ds_read2st64_b64 {vr(KB+4,4)}, v{vKLane} offset0:2 offset1:3')
    e('s_waitcnt lgkmcnt(2)')
    e(f'v_cndmask_b32 v{QF+6}, v{QF+6}, v1, s[68:69]', f'v_cndmask_b32 v{QF+7}, v{QF+7}, v1, s[68:69]', 's_nop 1')
    e(f'{MF32} {vr(S1,16)}, {vr(TT+4,4)}, {vr(QF+4,4)}, {vr(S1,16)}')
    e('s_waitcnt lgkmcnt(0)')
    e(f'{MF32} {vr(S0,16)}, {vr(KB,4)}, {vr(QF,4)}, 0')
    e(f'{MF32} {vr(S0,16)}, {vr(KB+4,4)}, {vr(QF+4,4)}, {vr(S0,16)}')
    e(f'ds_read2st64_b64 {vr(KB+8,4)}, v{vKLane} offset0:8 offset1:9', f'ds_read2st64_b64 {vr(KB+12,4)}, v{vKLane} offset0:10 offset1:11')
    e(f'ds_read_b128 {vr(VB,4)}, v{vLane} offset:2048', f'ds_read_b128 {vr(VB+4,4)}, v{vLane} offset:3072')
    e('s_nop 4')
    e(f'v_max3_f32 v3, v{S1}, v{S1+1}, v{S1+2}', f'v_max3_f32 v4, v{S1+3}, v{S1+4}, v{S1+5}')
    e(f'v_max3_f32 v3, v3, v{S1+6}, v{S1+7}', f'v_max3_f32 v4, v4, v{S1+8}, v{S1+9}', f'v_max3_f32 v3, v3, v{S1+10}, v{S1+11}', f'v_max3_f32 v4, v4, v{S1+12}, v{S1+13}')
    e(f'v_max3_f32 v3, v3, v{S1+14}, v{S1+15}', 'v_max_f32 v3, v3, v4')
    e('v_mov_b32 v4, v3', 's_nop 1', 'v_permlane32_swap_b32 v3, v4', 'v_max_f32 v3, v3, v4', f'v_add_f32 v3, {f32(OFFM2)}, v3')
    e.label('L_k2_setmax')
    e('v_sub_f32 v6, 0, v3', 'v_and_b32 v4, s59, v6', 'v_sub_f32 v6, v6, v4', 'v_and_b32 v5, s59, v6', 'v_sub_f32 v6, v6, v5')
    e('v_lshrrev_b32 v4, 16, v4', 'v_or_b32 v4, v4, v5', 'v_lshrrev_b32 v6, 16, v6')
    e(f'v_cndmask_b32 v{QF+6}, v{QF+6}, v4, s[68:69]', f'v_cndmask_b32 v{QF+7}, v{QF+7}, v6, s[68:69]')
    for r in range(16): e(f'v_sub_f32 v{S0+r}, v{S0+r}, v3')
    e.c('STAMP 2')
    def tile_addr(g): return ((g // 4) % NSL)*SL + (g % 4)*4096
    for s in range(8):
        for i in range(4):
            g = 4*s + i
            Sc = S0 if i % 2 == 0 else S1
            Sn = S1 if i % 2 == 0 else S0
            Kn = KB + 8*((i+1) % 2); Kl = KB + 8*(i % 2)
            Vc = VB + 8*(i % 2); Vl = VB + 8*((i+1) % 2)
            def ex(r0): return [f'v_exp_f32 v{TT+r}, v{Sc+r}' for r in range(r0, r0+4)]
            def cv(r0): return [f'v_cvt_pk_bf16_f32 v{P+r0//2}, v{TT+r0}, v{TT+r0+1}', f'v_cvt_pk_bf16_f32 v{P+r0//2+1}, v{TT+r0+2}, v{TT+r0+3}']
            e('s_waitcnt lgkmcnt(0)')
            if i == 2 and s < 7: e('s_barrier')
            t = []
            if g + 1 < 32: t += [f'{MF32} {vr(Sn,16)}, {vr(Kn,4)}, {vr(QF,4)}, 0']
            if g + 2 < 32:
                ko = tile_addr(g+2)//512
                t += [f'ds_read2st64_b64 {vr(Kl,4)}, v{vKLane} offset0:{ko} offset1:{ko+1}', f'ds_read2st64_b64 {vr(Kl+4,4)}, v{vKLane} offset0:{ko+2} offset1:{ko+3}']
            t += cv(12) + ex(0)
            t += [f'{MF32} {vr(O,16)}, {vr(Vl+4,4)}, {vr(P+4,4)}, {vr(O,16)}']
            if g + 1 < 32:
                vo = tile_addr(g+1); va = vLane if vo < 65536 else vNxt; vo %= 65536
                t += [f'ds_read_b128 {vr(Vl,4)}, v{va} offset:{vo+2048}', f'ds_read_b128 {vr(Vl+4,4)}, v{va} offset:{vo+3072}']
            t += cv(0) + ex(4)
            if g + 1 < 32: t += [f'{MF32} {vr(Sn,16)}, {vr(Kn+4,4)}, {vr(QF+4,4)}, {vr(Sn,16)}']
            t += cv(4) + ex(8)
            t += [f'{MF32} {vr(O,16)}, {vr(Vc,4)}, {vr(P,4)}, {vr(O,16)}']
            t += cv(8) + ex(12)
            e(*t)
    e.c('STAMP 3')
    e('s_lshl_b32 s41, s32, 12')
    e(f'v_cvt_pk_bf16_f32 v{P+6}, v{TT+12}, v{TT+13}', f'v_cvt_pk_bf16_f32 v{P+7}, v{TT+14}, v{TT+15}')
    e('s_lshl_b32 s42, s33, 11', 's_add_u32 s43, s41, s42')
    e(f'{MF32} {vr(O,16)}, {vr(VB+12,4)}, {vr(P+4,4)}, {vr(O,16)}')
    e('s_xor_b32 s42, s42, 2048', 's_add_u32 s44, s41, s42')
    e('v_add_u32 v3, s43, v2', 'v_add_u32 v4, s44, v2')
    e('s_lshl_b32 s41, s28, 8', f's_add_u32 s41, s41, {X+16384}', 's_xor_b32 s42, s41, 1024')
    e('v_lshlrev_b32 v5, 2, v0', 'v_add_u32 v6, s42, v5', 'v_add_u32 v5, s41, v5')
    e('s_nop 0')
    e('s_cmp_eq_u32 s33, 0', 's_cbranch_scc1 L_k2_e0')
    e(f'ds_write_b128 v3, {vr(O,4)}', f'ds_write_b128 v3, {vr(O+4,4)} offset:1024', f'ds_write_b32 v5, v{O+12}')
    for r in range(8): e(f'v_mov_b32 v{O+r}, v{O+8+r}')
    e('s_branch L_k2_e1')
    e.label('L_k2_e0')
    e(f'ds_write_b128 v3, {vr(O+8,4)}', f'ds_write_b128 v3, {vr(O+12,4)} offset:1024', f'ds_write_b32 v5, v{O+12}')
    e.label('L_k2_e1')
    e('s_waitcnt lgkmcnt(0)', 's_barrier')
    e(f'ds_read_b32 v{S0+8}, v6', f'ds_read_b128 {vr(S0,4)}, v4', f'ds_read_b128 {vr(S0+4,4)}, v4 offset:1024')
    e('s_lshl_b32 s41, s31, 17', 's_lshl_b32 s42, s32, 15', 's_add_u32 s41, s41, s42', 's_lshl_b32 s42, s30, 11', 's_add_u32 s41, s41, s42', 's_lshl_b32 s42, s33, 10', 's_add_u32 s41, s41, s42', f's_add_u32 s41, s41, {WS_O}')
    e('s_cmp_eq_u32 s33, 1', 's_cselect_b64 s[44:45], s[68:69], 0', 's_mov_b32 s42, 0x7e800000')
    e('s_waitcnt lgkmcnt(2)')
    e(f'v_add_f32 v5, v{O+12}, v{S0+8}', 'v_mov_b32 v6, v5')
    e('s_waitcnt lgkmcnt(0)')
    e(f'v_add_f32 v{O}, v{O}, v{S0}')
    e('v_permlane32_swap_b32 v6, v5')
    for r in range(1, 8): e(f'v_add_f32 v{O+r}, v{O+r}, v{S0+r}')
    e('v_rcp_f32 v4, v5', 'v_cmp_ngt_f32 vcc, s42, v5')
    e(f'v_mul_f32 v6, 0, v{O}', f'v_mul_f32 v3, 0, v{O+1}')
    for r in range(2, 8, 2): e(f'v_fma_f32 v6, v{O+r}, 0, v6', f'v_fma_f32 v3, v{O+r+1}, 0, v3')
    for r in range(8): e(f'v_mul_f32 v{O+r}, v4, v{O+r}')
    for k in range(4): e(f'v_cvt_pk_bf16_f32 v{P+k}, v{O+2*k}, v{O+2*k+1}')
    e(f'v_cndmask_b32 v{P+2}, v{P+2}, v1, s[44:45]', f'v_cndmask_b32 v{P+3}, v{P+3}, v1, s[44:45]')
    e('v_cmp_u_f32 s[46:47], v6, v3')
    e(f'buffer_store_dwordx4 {vr(P,4)}, v2, s[24:27], s41 offen{st}')
    e('s_or_b64 vcc, vcc, s[46:47]', 's_cmp_eq_u32 s60, 1', 's_cselect_b64 vcc, 0, vcc')
    e('s_cmp_eq_u64 vcc, 0', 's_cbranch_scc1 L_k2_ok')
    e('v_mov_b32 v6, 1', 'ds_write_b32 v7, v6', 's_waitcnt lgkmcnt(0)')
    e.label('L_k2_ok')
    e('s_waitcnt vmcnt(0)', 's_barrier')
    e('ds_read_b32 v4, v7', 's_waitcnt lgkmcnt(0)', 'v_readfirstlane_b32 s41, v4', 's_nop 3')
    e('s_cmp_eq_u32 s41, 0', 's_cbranch_scc1 L_k2_proj')
    e('s_barrier')
    e('s_mov_b32 s60, 1')
    e('s_lshl_b32 s41, s30, 18', f's_add_u32 s41, s41, {WS_KV}', 's_mov_b32 s42, 0')
    e(f'v_cndmask_b32 v{QF+6}, v{QF+6}, v1, s[68:69]', f'v_cndmask_b32 v{QF+7}, v{QF+7}, v1, s[68:69]')
    e('v_mov_b32 v3, 0xff800000')
    e(*zero_state())
    e.label('L_k2_maxloop')
    for k in range(4): e(f'buffer_load_dwordx2 {vr(KB+2*k,2)}, v{vK8}, s[24:27], s41 offen offset:{512*k}')
    e('s_waitcnt vmcnt(0)')
    e(f'{MF32} {vr(S0,16)}, {vr(KB,4)}, {vr(QF,4)}, 0')
    e(f'{MF32} {vr(S0,16)}, {vr(KB+4,4)}, {vr(QF+4,4)}, {vr(S0,16)}')
    e('s_nop 7', 's_nop 3')
    for k in range(0, 16, 2): e(f'v_max3_f32 v3, v3, v{S0+k}, v{S0+k+1}')
    e('s_add_u32 s41, s41, 4096', 's_add_u32 s42, s42, 1', 's_cmp_lt_u32 s42, 64', 's_cbranch_scc1 L_k2_maxloop')
    e('v_mov_b32 v4, v3', 's_nop 1', 'v_permlane32_swap_b32 v3, v4', 'v_max_f32 v3, v3, v4')
    e('s_barrier')
    e(f'ds_read2st64_b64 {vr(KB,4)}, v{vKLane} offset0:0 offset1:1', f'ds_read2st64_b64 {vr(KB+4,4)}, v{vKLane} offset0:2 offset1:3')
    e(f'ds_read2st64_b64 {vr(KB+8,4)}, v{vKLane} offset0:8 offset1:9', f'ds_read2st64_b64 {vr(KB+12,4)}, v{vKLane} offset0:10 offset1:11')
    e(f'ds_read_b128 {vr(VB,4)}, v{vLane} offset:2048', f'ds_read_b128 {vr(VB+4,4)}, v{vLane} offset:3072')
    e('s_waitcnt lgkmcnt(0)')
    e(f'{MF32} {vr(S0,16)}, {vr(KB,4)}, {vr(QF,4)}, 0')
    e(f'{MF32} {vr(S0,16)}, {vr(KB+4,4)}, {vr(QF+4,4)}, {vr(S0,16)}')
    e('s_nop 7', 's_nop 3')
    e('s_branch L_k2_setmax')
    e.label('L_k2_aux')
    e('s_sub_u32 s28, s28, 8')
    e('s_lshl_b32 s36, s28, 10', 'v_add_u32 v8, s36, v2')
    for t in range(1, 4): e(f'v_add_u32 v{8+t}, {4096*t}, v8')
    e('s_lshl_b32 s41, s30, 18', f's_add_u32 s34, s41, {WS_KV}')
    e('s_lshl_b32 s37, s30, 17', 's_lshl_b32 s38, s31, 13', 's_add_u32 s37, s37, s38')
    e(f's_add_u32 s39, s37, {WS_PSTRIDE + WS_Q}')
    e('s_lshl_b32 s40, s31, 14', 's_add_u32 s40, s40, s41', f's_add_u32 s40, s40, {WS_PSTRIDE + WS_KV}')
    e('s_sub_u32 s42, s40, 4096', 's_cmp_eq_u32 s31, 0', 's_cselect_b32 s42, s40, s42')
    bQ, bKp, bKc, bV0, bV1, bS, bC, bT = 16, 24, 32, 40, 48, 56, 72, 84
    def bsetup():
        e('v_and_b32 v3, 15, v0', 'v_lshrrev_b32 v4, 4, v0', 'v_lshrrev_b32 v5, 1, v4', 'v_and_b32 v6, 1, v4')
        e('v_lshlrev_b32 v12, 10, v5', 'v_lshl_add_u32 v12, v6, 8, v12', 'v_lshl_add_u32 v12, v3, 3, v12')
        e('v_lshlrev_b32 v13, 9, v6', 'v_lshl_add_u32 v13, v3, 4, v13', 'v_lshl_add_u32 v13, v5, 10, v13')
        e('v_bfe_u32 v14, v0, 3, 1', 'v_xor_b32 v14, v14, v6', 'v_lshlrev_b32 v14, 6, v14', 'v_and_b32 v6, 3, v0', 'v_lshl_add_u32 v14, v6, 4, v14', 'v_lshrrev_b32 v6, 2, v3', 'v_lshl_add_u32 v14, v6, 7, v14', 'v_lshl_add_u32 v14, v5, 3, v14')
        e('s_lshl_b32 s43, s28, 11', f's_add_u32 s43, s43, {BO}', 'v_add_u32 v15, s43, v12')
        e('s_lshl_b32 s44, s28, 12', f's_add_u32 s44, s44, {BO + 8192}', 'v_add_u32 v12, s44, v12', 'v_add_u32 v14, s44, v14')
        e('v_mov_b32 v5, 0xf149f2ca', 's_or_b32 s55, s31, s28')
        for r in range(12):
            m = 0
            for l in range(64):
                d = (l & 15) - 4*(l >> 4) - (r % 4) + (0 if 4 <= r < 8 else 16)
                if 0 <= d <= 14 and d % 2 == 0: m |= 1 << l
            sp = 64 + 2*(r % 2)
            e(f's_mov_b32 s{sp}, 0x{m & 0xffffffff:08x}', f's_mov_b32 s{sp+1}, 0x{m >> 32:08x}')
            if r >= 8: e('s_cmp_eq_u32 s55, 0', f's_cselect_b64 s[{sp}:{sp+1}], 0, s[{sp}:{sp+1}]')
            e(f'v_cndmask_b32 v{bC+r}, v5, v1, s[{sp}:{sp+1}]')
        e('s_mov_b32 s70, 0', 's_mov_b32 s71, 0xffff0000', f's_mov_b32 s57, {f32(28 ** -0.5 * 1.4426950408889634)}')
        e('s_lshl_b32 s47, s31, 2', 's_add_u32 s47, s47, s28', 's_lshl_b32 s47, s47, 15', 's_lshl_b32 s48, s30, 11', 's_add_u32 s47, s47, s48', f's_add_u32 s47, s47, {WS_O + 0x200000}')
    SETUP_AFTER = True
    e('s_waitcnt lgkmcnt(0)')
    srd(e, 24, 12, 13, WSB2)
    vq = []
    def ld(v, so, m0off, tag):
        e(f's_add_u32 m0, s36, {m0off}', 's_nop 0', f'buffer_load_dwordx4 v{v}, s[24:27], s{so} offen lds'); vq.append(tag)
    def KV(s, tiles=range(4), tag=None):
        for t in tiles:
            for kh in range(2):
                ld(8+t, 62+kh, (s % NSL)*SL + kh*16384 + t*4096, tag or f'KV{s}')
    def setkv(s): e(f's_add_u32 s62, s34, {s*16384}', f's_add_u32 s63, s34, {s*16384 + 131072}')
    def waitfor(tags):
        nonlocal vq
        idx = [k for k, t in enumerate(vq) if t in tags]
        if idx:
            e(f's_waitcnt vmcnt({len(vq)-1-max(idx)})'); vq = vq[max(idx)+1:]
        e('s_barrier')
    ld(8, 37, QO, 'Q'); ld(9, 37, QO + 4096, 'Q')
    e.label('L_k2_aux2')
    setkv(0); KV(0, range(2), 'T01'); KV(0, range(2, 4), 'T23')
    if SETUP_AFTER: bsetup()
    waitfor({'Q', 'T01', 'T23'})
    setkv(1); KV(1)
    setkv(2); KV(2)
    ld(8, 39, BO, 'B'); ld(9, 39, BO + 4096, 'B'); ld(8, 42, BO + 8192, 'B')
    for t in range(4): ld(8+t, 40, BO + 12288 + 4096*t, 'B')
    def bunit(u):
        q, kp, kc, v0_, v1_, S = bQ+4*u, bKp+4*u, bKc+4*u, bV0+4*u, bV1+4*u, bS+8*u
        T = bT + 8*u; a, b2 = T+4, T+5
        cp = bC + (8 if u == 0 else 0)
        kpo, kco = (128, 4096) if u == 0 else (4096, 4096+128)
        vpo, vco = (2048+1024, 4096+2048) if u == 0 else (4096+2048, 4096+3072)
        r = [f'ds_read_b64 {vr(q,2)}, v15 offset:{128*u}', f'ds_read_b64 {vr(q+2,2)}, v15 offset:{128*u+512}',
             f'ds_read_b64 {vr(kp,2)}, v12 offset:{kpo}', f'ds_read_b64 {vr(kp+2,2)}, v12 offset:{kpo+512}',
             f'ds_read_b64 {vr(kc,2)}, v12 offset:{kco}', f'ds_read_b64 {vr(kc+2,2)}, v12 offset:{kco+512}']
        r2 = [f'ds_read_b64 {vr(v0_,2)}, v14 offset:{vpo}', f'ds_read_b64 {vr(v0_+2,2)}, v14 offset:{vco}', f'ds_read_b64 {vr(v1_,2)}, v14 offset:{vpo+512}', f'ds_read_b64 {vr(v1_+2,2)}, v14 offset:{vco+512}']
        b = [f'v_cndmask_b32 v{q+2}, v{q+2}, v1, s[70:71]', f'v_cndmask_b32 v{q+3}, v{q+3}, v1, s[70:71]', 's_nop 1',
             f'{MF16} {vr(S,4)}, {vr(kp,4)}, {vr(q,4)}, {vr(cp,4)}', f'{MF16} {vr(S+4,4)}, {vr(kc,4)}, {vr(q,4)}, {vr(bC+4,4)}', 's_nop 7',
             f'v_max3_f32 v{a}, v{S}, v{S+1}, v{S+2}', f'v_max3_f32 v{b2}, v{S+3}, v{S+4}, v{S+5}', f'v_max3_f32 v{a}, v{a}, v{S+6}, v{S+7}', f'v_max_f32 v{a}, v{a}, v{b2}',
             f'v_mov_b32 v{b2}, v{a}', 's_nop 1', f'v_permlane32_swap_b32 v{a}, v{b2}', f'v_max_f32 v{a}, v{a}, v{b2}',
             f'v_mov_b32 v{b2}, v{a}', 's_nop 1', f'v_permlane16_swap_b32 v{a}, v{b2}', f'v_max_f32 v{a}, v{a}, v{b2}', f'v_mul_f32 v{a}, s57, v{a}']
        b += [f'v_fma_f32 v{S+k}, v{S+k}, s57, -v{a}' for k in range(8)]
        b += [f'v_exp_f32 v{S+k}, v{S+k}' for k in range(8)]
        b += [f'v_cvt_pk_bf16_f32 v{T+k}, v{S+2*k}, v{S+2*k+1}' for k in range(4)]
        b += ['s_nop 1', f'{MF16} {vr(S+4,4)}, {vr(v1_,4)}, {vr(T,4)}, 0', f'{MF16} {vr(S,4)}, {vr(v0_,4)}, {vr(T,4)}, 0', 's_nop 7']
        b += [f'v_mov_b32 v{a}, v{S+4}', f'v_mov_b32 v{b2}, v{S+4}', 's_nop 1', f'v_permlane32_swap_b32 v{b2}, v{a}',
              f'v_mov_b32 v{b2}, v{a}', 's_nop 1', f'v_permlane16_swap_b32 v{b2}, v{a}', f'v_rcp_f32 v{a}, v{a}', 's_nop 0']
        b += [f'v_mul_f32 v{S+k}, v{a}, v{S+k}' for k in range(8)]
        b += [f'v_cvt_pk_bf16_f32 v{T+k}, v{S+2*k}, v{S+2*k+1}' for k in range(4)]
        b += [f'v_cndmask_b32 v{T+2}, v{T+2}, v1, s[70:71]', f'v_cndmask_b32 v{T+3}, v{T+3}, v1, s[70:71]', 's_nop 1',
              f'v_permlane32_swap_b32 v{T}, v{T+2}', f'v_permlane32_swap_b32 v{T+1}, v{T+3}', f'buffer_store_dwordx4 {vr(T,4)}, v13, s[24:27], s47 offen offset:{256*u}{st}']
        return r, r2, b
    for s in range(7):
        waitfor({f'KV{s+1}'} | ({'B'} if s == 1 else set()))
        if s + 3 < 8: setkv(s+3); KV(s+3)
        if s == 1:
            r0, r20, b0 = bunit(0); r1, r21, b1 = bunit(1)
            e(*r0); e(*r1); e('s_waitcnt lgkmcnt(0)'); e(*r20); e(*r21)
            m = []
            for x, y in zip(b0, b1): m += [x, y] if not x.startswith('s_nop') else [x]
            k1_ = next(i for i, x in enumerate(m) if 'v_fma' in x)
            k2_ = max(i for i, x in enumerate(m) if 'v_mfma' in x) + 1
            e(*m[:k1_]); e('s_waitcnt lgkmcnt(0)')
        if s == 2: e(*m[k1_:k2_])
        if s == 3:
            e(*m[k2_:]); vq += ['st', 'st']
        if s == 4 or s == 6:
            if s == 4:
                e('s_cmp_eq_u32 s72, 0', 's_cselect_b32 s16, s4, s6', 's_cselect_b32 s17, s5, s7', f's_mov_b32 s18, {448*896}', 's_mov_b32 s19, 0x00020000')
                e('v_lshrrev_b32 v3, 3, v0', 's_lshl_b32 s41, s28, 3', 'v_add_u32 v3, s41, v3', 'v_mul_u32_u24 v3, 896, v3')
                e('v_and_b32 v5, 7, v0', 'v_bfe_u32 v6, v0, 4, 1', 'v_lshlrev_b32 v6, 2, v6', 'v_xor_b32 v5, v5, v6', 'v_lshl_add_u32 v4, v5, 4, v3')
                e('s_lshl_b32 s41, s73, 7', 'v_add_u32 v4, s41, v4')
            for k in range(7):
                e(f's_add_u32 m0, s36, {(BO if s == 4 else SL) + k*4096}', f's_mov_b32 s50, {((0 if s == 4 else 224) + k*32)*896}', 'buffer_load_dwordx4 v4, s[16:19], s50 offen lds'); vq.append('wo')
        if s == 5: e('ds_write_b32 v7, v1')
    e('s_waitcnt vmcnt(0) lgkmcnt(0)')
    e('s_barrier', 's_barrier')
    e('ds_read_b32 v4, v7', 's_waitcnt lgkmcnt(0)', 'v_readfirstlane_b32 s41, v4', 's_nop 3')
    e('s_cmp_lg_u32 s41, 0', 's_cbranch_scc1 L_k2_auxfb')
    e('s_cmp_lg_u32 s28, 0', 's_cbranch_scc1 L_k2_end')
    e('s_lshl_b32 s41, s31, 7', f's_add_u32 s41, s41, {WS_CNT}', 's_mov_b64 exec, 1', 'v_mov_b32 v3, 1')
    e('buffer_atomic_add v3, v1, s[24:27], s41 offen sc1')
    e('s_cmp_ge_u32 s75, 14', 's_cbranch_scc1 L_k2_end')
    e('s_mov_b32 s42, 0', 's_lshl_b32 s41, s74, 7', f's_add_u32 s41, s41, {WS_CNT}')
    e.label('L_k2_poll')
    e('s_sleep 8')
    e('buffer_load_dword v4, v1, s[24:27], s41 offen sc1', 's_add_u32 s42, s42, 1', 's_waitcnt vmcnt(0)', 'v_readfirstlane_b32 s43, v4', 's_nop 3')
    e('s_cmp_ge_u32 s43, 16', 's_cbranch_scc1 L_k2_go')
    e('s_cmp_lt_u32 s42, 0x40000', 's_cbranch_scc1 L_k2_poll')
    e.label('L_k2_go')
    e('s_barrier')
    e('s_endpgm')
    e.label('L_k2_auxfb')
    e('s_waitcnt vmcnt(0)', 's_barrier')
    e('s_branch L_k2_aux2')
    e.label('L_k2_proj')
    e('s_cmp_ge_u32 s28, 4', 's_cbranch_scc1 L_k2_end', 's_cmp_ge_u32 s75, 14', 's_cbranch_scc1 L_k2_end')
    e('s_lshl_b32 s34, s74, 2', 's_add_u32 s34, s34, s28', 's_lshl_b32 s34, s34, 15', 's_lshl_b32 s35, s72, 21', 's_add_u32 s34, s34, s35', f's_add_u32 s34, s34, {WS_O}')
    srd(e, 20, 8, 9, 2048*1792)
    OF = 16; AF = 80; ACC = 112
    e('v_lshrrev_b32 v145, 5, v0', 'v_bfe_u32 v146, v0, 2, 2', 'v_lshl_add_u32 v147, v145, 2, v146', 'v_lshlrev_b32 v147, 7, v147')
    e('v_bfe_u32 v148, v0, 4, 1', 'v_lshl_add_u32 v147, v148, 5, v147', 'v_and_b32 v148, 3, v0', 'v_lshl_add_u32 v147, v148, 3, v147')
    e('v_lshrrev_b32 v146, 1, v146', 'v_lshl_add_u32 v147, v146, 6, v147', f'v_add_u32 v3, {BO}, v147', 'v_xor_b32 v4, 64, v3')
    e('v_lshlrev_b32 v148, 10, v145', 'v_sub_u32 v5, v3, v148', 'v_sub_u32 v6, v4, v148')
    for k in range(4): e(f'v_subrev_u32 v{8+k}, {BO-SL}, v{3+k}')
    RS = 144
    e('s_mul_i32 s37, s28, 4608', f's_add_u32 s37, s37, {2*SL}')
    e('v_and_b32 v146, 31, v0', f'v_mul_u32_u24 v12, {RS}, v146', 'v_lshl_add_u32 v12, v145, 3, v12', 'v_add_u32 v12, s37, v12')
    e('v_lshrrev_b32 v146, 3, v0', 'v_and_b32 v147, 7, v0', f'v_mul_u32_u24 v13, {RS}, v146', 'v_lshl_add_u32 v13, v147, 4, v13', 'v_add_u32 v13, s37, v13')
    e('v_mul_u32_u24 v14, 1792, v146', 'v_lshl_add_u32 v14, v147, 4, v14')
    e('s_lshl_b32 s39, s74, 7', 's_lshl_b32 s40, s28, 5', 's_add_u32 s39, s39, s40', 's_mul_i32 s39, s39, 1792', 's_mul_i32 s40, s72, 896', 's_add_u32 s39, s39, s40', 's_lshl_b32 s40, s73, 7', 's_add_u32 s39, s39, s40')
    def oload(hd):
        if hd % 2 == 0: e(f's_add_u32 s36, s34, {hd*2048}')
        o = (hd % 2)*2048; r = OF + 8*(hd % 8)
        e(f'buffer_load_dwordx4 {vr(r,4)}, v2, s[24:27], s36 offen offset:{o} sc1', f'buffer_load_dwordx4 {vr(r+4,4)}, v2, s[24:27], s36 offen offset:{o+1024} sc1')
    def preads(hd):
        b = AF + 16*(hd % 2); r = []; base = 3 if hd < 8 else 8
        for nt in range(2):
            for t in range(2):
                for ee in range(2):
                    a_ = base + (2+nt if (t == 1 and ee == 1) else nt)
                    r.append(f'ds_read_b64_tr_b16 {vr(b+8*nt+4*t+2*ee,2)}, v{a_} offset:{(hd % 8)*3584 + t*2048 + ee*1024}')
        return r
    e(*preads(0))
    e('s_barrier')
    for hd in range(PF): oload(hd)
    nload = PF
    for hd in range(16):
        b = AF + 16*(hd % 2)
        e(f's_waitcnt vmcnt({2*(nload-1-hd)}) lgkmcnt(0)')
        rd = preads(hd+1) if hd + 1 < 16 else []
        k = 0
        for t in range(2):
            for nt in range(2):
                Cc = '0' if (hd == 0 and t == 0) else vr(ACC+16*nt, 16)
                e(f'{MF32} {vr(ACC+16*nt,16)}, {vr(b+8*nt+4*t,4)}, {vr(OF+8*(hd%8)+4*t,4)}, {Cc}')
                e(*rd[2*k:2*k+2]); k += 1
        if nload < 16: oload(nload); nload += 1
    e('s_nop 7', 's_nop 3')
    for nt in range(2):
        for rg in range(4):
            a_ = ACC + 16*nt + 4*rg; d = 16 + 8*nt + 2*rg
            e(f'v_cvt_pk_bf16_f32 v{d}, v{a_}, v{a_+1}', f'v_cvt_pk_bf16_f32 v{d+1}, v{a_+2}, v{a_+3}')
            e(f'ds_write_b64 v12, {vr(d,2)} offset:{64*nt + 16*rg}')
    e('s_waitcnt lgkmcnt(0)')
    for i in range(4): e(f'ds_read_b128 {vr(32+4*i,4)}, v13 offset:{8*RS*i}')
    for i in range(4):
        e(f's_add_u32 s40, s39, {8*1792*i}', f's_waitcnt lgkmcnt({3-i})', f'buffer_store_dwordx4 {vr(32+4*i,4)}, v14, s[20:23], s40 offen{st}')
    e.label('L_k2_end')
    e('s_endpgm')
    return e.text(), dict(name='attn_kernel', vgpr=152, sgpr=80, grid=256, block=768, lds=BO+32768)


if __name__ == '__main__':
    ks = [gen_k1f(), gen_k2f()]
    assemble(ks, sys.argv[1] if len(sys.argv) > 1 else 'k.s')
```

```python
from g16 import *
WS_CNT = 0x1000000
WSB2 = WS_CNT + 2048


def code_touch(e, la, lb, n, vt, st0, uniq):
    e(f's_getpc_b64 s[{st0}:{st0+1}]')
    e.label(f'L_pc{uniq}')
    e(f's_add_u32 s{st0}, s{st0}, {la}-L_pc{uniq}', f's_addc_u32 s{st0+1}, s{st0+1}, ({la}-L_pc{uniq})>>32')
    for k in range(n):
        e(f'v_lshlrev_b32 v{vt}, 7, v0', f'v_add_u32 v{vt}, {8192*k}, v{vt}', f'v_min_u32 v{vt}, {lb}-{la}-4, v{vt}', f'global_load_dword v{vt+1}, v{vt}, s[{st0}:{st0+1}]')

def gen_k1f(st=' sc1', rot=True, ahead=2, touch=0, tstart=1, ktouch=0, groups=(7,), cpf=True, tlb=False, early=False, lfirst=True):
    e = E()
    CH = 32768; NS = 5; WVR = 2*CH
    e.label('qkv_kernel')
    e('s_cmp_ge_u32 s2, 256', 's_cbranch_scc1 L_k1_end')
    e('s_load_dwordx4 s[4:7], s[0:1], 0', 's_load_dwordx4 s[8:11], s[0:1], 24', 's_load_dwordx2 s[12:13], s[0:1], 64')
    e('v_lshrrev_b32 v1, 6, v0', 'v_and_b32 v0, 63, v0')
    e('s_and_b32 s32, s2, 7', 's_lshr_b32 s33, s2, 3')
    e('v_readfirstlane_b32 s28, v1')
    if cpf and early:
        e('s_cmp_lg_u32 s28, 0', 's_cbranch_scc1 L_k1_nocpf')
        code_touch(e, 'qkv_kernel', 'L_k1_end', 2, 24, 44, 'a')
        e.label('L_k1_nocpf')
    e('s_cmp_ge_u32 s33, 28', 's_cbranch_scc1 L_k1_pads')
    e('s_lshr_b32 s29, s32, 2')
    e('s_and_b32 s31, s32, 3', 's_lshl_b32 s31, s31, 2', 's_and_b32 s34, s33, 3', 's_add_u32 s31, s31, s34')
    e('s_lshr_b32 s30, s33, 2')
    e('s_cmp_ge_u32 s28, 4', 's_cbranch_scc1 L_k1_loader')
    e('v_and_b32 v20, 31, v0', 'v_lshrrev_b32 v21, 5, v0')
    e('v_bfe_u32 v22, v20, 1, 3', 'v_xor_b32 v22, v22, v21')
    e('s_lshl_b32 s36, s28, 12')
    e('v_lshlrev_b32 v23, 7, v20', 'v_add_u32 v23, s36, v23')
    for t in range(4):
        e(f'v_xor_b32 v24, {2*t}, v22', f'v_lshl_add_u32 v{10+t}, v24, 4, v23')
    e('v_bfe_u32 v24, v0, 2, 2', 'v_lshl_add_u32 v25, v21, 3, v24', 'v_lshlrev_b32 v25, 7, v25')
    e('v_lshrrev_b32 v24, 1, v24', 'v_lshl_add_u32 v25, v24, 6, v25')
    e('v_bfe_u32 v24, v0, 4, 1', 'v_lshl_add_u32 v25, v24, 5, v25', 'v_and_b32 v24, 3, v0', 'v_lshl_add_u32 v14, v24, 3, v25')
    e('v_xor_b32 v15, 64, v14', 'v_add_u32 v16, 0x10000, v14', 'v_add_u32 v17, 0x10000, v15', 'v_add_u32 v18, 0x20000, v14', 'v_add_u32 v19, 0x20000, v15')
    for t in range(4): e(f'v_add_u32 v{2+t}, 0x10000, v{10+t}', f'v_add_u32 v{6+t}, 0x20000, v{10+t}')
    e('s_lshl_b32 s36, s30, 4')
    e('v_and_b32 v30, 1, v0', 'v_lshl_add_u32 v31, v30, 1, v21', 'v_and_b32 v30, 30, v20')
    for ch in range(2):
        for k in range(2):
            e(f'v_add_u32 v24, {8*ch+4*k}, v31', 'v_add_u32 v24, s36, v24')
            e('v_mul_u32_u24 v25, 147, v24', 'v_lshrrev_b32 v25, 10, v25')
            e('v_mul_u32_u24 v26, 7, v25', 'v_sub_u32 v26, v24, v26')
            e('v_lshlrev_b32 v27, 8, v26', 'v_lshl_add_u32 v27, v30, 3, v27')
            e(f'v_lshl_add_u32 v{192+2*ch+k}, v25, 17, v27', f'v_lshl_add_u32 v{196+2*ch+k}, v25, 18, v27')
    e('s_mov_b32 s56, 0x55555555', 's_mov_b32 s57, 0x55555555', 's_mov_b32 s58, 0xaaaaaaaa', 's_mov_b32 s59, 0xaaaaaaaa')
    e('s_lshl_b32 s36, s30, 6')
    for ch in range(2):
        e(f'v_add_u32 v24, {32*ch}, v20', 'v_add_u32 v24, s36, v24', 'v_mul_u32_u24 v25, 2341, v24', 'v_lshrrev_b32 v25, 16, v25')
        e('v_mul_u32_u24 v26, 28, v25', 'v_sub_u32 v26, v24, v26')
        e('v_bfe_u32 v27, v26, 3, 1', 'v_xor_b32 v27, v27, v21', 'v_lshlrev_b32 v27, 6, v27', 'v_and_b32 v24, 3, v26', 'v_lshl_add_u32 v27, v24, 4, v27')
        e('v_lshrrev_b32 v26, 2, v26', 'v_lshl_add_u32 v27, v26, 7, v27', f'v_lshl_add_u32 v{200+ch}, v25, 18, v27')
    e('s_mul_i32 s50, s29, %d' % WS_PSTRIDE)
    e('s_lshl_b32 s51, s31, 2', 's_add_u32 s51, s51, s28')
    e('s_lshl_b32 s52, s51, 11', 's_add_u32 s52, s52, s50')
    e('s_lshl_b32 s54, s51, 12', 's_add_u32 s54, s54, s50', f's_add_u32 s54, s54, {WS_KV}')
    e(f's_mov_b32 s55, {f32(QSCALE)}', 's_cmp_eq_u32 s29, 0', 's_cselect_b32 s55, s55, 1.0')
    e('s_waitcnt lgkmcnt(0)')
    srd(e, 24, 12, 13, WS_BYTES)
    XF = 32; WF = 144
    accs = {0: (204, 220), 1: (236, 176-8+8), 2: (204, 220)}
    accs = {0: (204, 220), 1: (236, 176), 2: (204, 220)}
    def ldsref(base3, off):
        return base3[off >> 16], off & 0xffff
    def readsA(T):
        b = WF + 16*(T % 2); r = []
        j, t = divmod(T, 4)
        so = (j % NS)*CH
        v, o = ldsref((10+t, 2+t, 6+t), so)
        r.append(f'ds_read_b128 {vr(XF+4*T,4)}, v{v} offset:{o}')
        for L in range(2):
            for ch in range(2):
                for ee in range(2):
                    v, o = ldsref((14+ch, 16+ch, 18+ch), so + 16384 + L*8192 + t*2048 + ee*512)
                    r.append(f'ds_read_b64_tr_b16 {vr(b+8*L+4*ch+2*ee,2)}, v{v} offset:{o}')
        return r
    def readsB(n):
        ch, T = divmod(n, 28)
        b = WF + 4*(n % 4)
        return [f'ds_read_b64_tr_b16 {vr(b+2*ee,2)}, v{16+ch} offset:{WVR - 0x10000 + T*2048 + ee*512}' for ee in range(2)]
    def epi(ps, chs=(0, 1)):
        o = []
        for ch in chs:
            a = accs[ps][ch]
            if ps == 0: o += [f'v_mul_f32 v{a+r}, s55, v{a+r}' for r in range(16)]
            o += [f'v_cvt_pk_bf16_f32 v{a+k}, v{a+2*k}, v{a+2*k+1}' for k in range(8)]
            if ps < 2:
                dp = 'quad_perm:[1,0,3,2] row_mask:0xf bank_mask:0xf'
                o += ['s_mov_b64 vcc, s[56:57]', 's_nop 0']
                for k in range(2):
                    A = a+4*k; B = A+2; D = a+8+4*k
                    o += [f'v_cndmask_b32_dpp v{D}, v{B}, v{A}, vcc {dp}', f'v_cndmask_b32_dpp v{D+1}, v{B+1}, v{A+1}, vcc {dp}']
                o += ['s_mov_b64 vcc, s[58:59]', 's_nop 0']
                for k in range(2):
                    A = a+4*k; B = A+2; D = a+8+4*k
                    o += [f'v_cndmask_b32_dpp v{D+2}, v{A}, v{B}, vcc {dp}', f'v_cndmask_b32_dpp v{D+3}, v{A+1}, v{B+1}, vcc {dp}']
                ab, so = (192, 52) if ps == 0 else (196, 54)
                o += [f'buffer_store_dwordx4 {vr(a+8+4*k,4)}, v{ab+2*ch+k}, s[24:27], s{so} offen{st}' for k in range(2)]
            else:
                o += [f'buffer_store_dwordx4 {vr(a,4)}, v{200+ch}, s[24:27], s54 offen offset:2048{st}', f'buffer_store_dwordx4 {vr(a+4,4)}, v{200+ch}, s[24:27], s54 offen offset:3072{st}']
        return o
    vacc = (160, 204)
    def epiV(ch):
        a = vacc[ch]
        o = [f'v_cvt_pk_bf16_f32 v{a+k}, v{a+2*k}, v{a+2*k+1}' for k in range(8)]
        return o + [f'buffer_store_dwordx4 {vr(a,4)}, v{200+ch}, s[24:27], s54 offen offset:2048{st}', f'buffer_store_dwordx4 {vr(a+4,4)}, v{200+ch}, s[24:27], s54 offen offset:3072{st}']
    if ktouch:
        e('s_cmp_eq_u32 s29, 0', 's_cselect_b32 s16, s4, s8', 's_cselect_b32 s17, s5, s9', f's_mov_b32 s18, {2048*896}', 's_mov_b32 s19, 0x00020000')
        e('s_cselect_b32 s20, s6, s10', 's_cselect_b32 s21, s7, s11', f's_mov_b32 s22, {448*2688}', 's_mov_b32 s23, 0x00020000')
        e('v_mul_u32_u24 v24, 27, v0', 'v_lshrrev_b32 v24, 9, v24', 'v_min_u32 v24, 2, v24', 'v_mul_u32_u24 v25, 19, v24', 'v_sub_u32 v25, v0, v25')
        e('s_mul_i32 s42, s30, 19', 'v_add_u32 v25, s42, v25', 'v_min_u32 v25, 0x7f, v25', 's_lshl_b32 s42, s31, 7', 'v_add_u32 v25, s42, v25', 'v_mul_u32_u24 v25, 896, v25', 'v_lshl_add_u32 v28, v24, 7, v25')
        e('s_and_b32 s42, s31, 3', 's_lshl_b32 s43, s42, 4', 'v_bfe_u32 v24, v0, 1, 4', 'v_add_u32 v24, s43, v24', 'v_lshl_add_u32 v24, v21, 6, v24', 'v_mul_u32_u24 v24, 2688, v24')
        e('v_and_b32 v25, 1, v0', 'v_mul_u32_u24 v25, 896, v25', 's_lshl_b32 s43, s30, 7', 'v_add3_u32 v29, v24, v25, s43')
        e('s_mul_i32 s42, s42, 112', 'v_min_u32 v24, 55, v0', 'v_add_u32 v24, s42, v24', 'v_mul_u32_u24 v24, 2688, v24', 's_add_u32 s43, s43, 1792', 'v_add_u32 v30, s43, v24')
        e('s_barrier')
        e('s_cmp_eq_u32 s28, 1', 's_cbranch_scc1 L_k1_t1', 's_cmp_eq_u32 s28, 2', 's_cbranch_scc1 L_k1_t2', 's_cmp_eq_u32 s28, 3', 's_cbranch_scc1 L_k1_t3')
        e('buffer_load_dword v31, v28, s[16:19], 0 offen offset:128', 'buffer_load_dword v31, v30, s[20:23], 0 offen', 's_branch L_k1_td')
        e.label('L_k1_t1')
        e(f's_mov_b32 s42, {172032}', f's_mov_b32 s43, {5*172032}', 'buffer_load_dword v31, v29, s[20:23], s42 offen', 'buffer_load_dword v31, v29, s[20:23], s43 offen', 's_branch L_k1_td')
        e.label('L_k1_t2')
        e(f's_mov_b32 s42, {3*172032}', 'buffer_load_dword v31, v29, s[20:23], s42 offen', 's_branch L_k1_td')
        e.label('L_k1_t3')
        e(f's_mov_b32 s42, {56*2688}', 'buffer_load_dword v31, v28, s[16:19], 0 offen offset:512', 'buffer_load_dword v31, v30, s[20:23], s42 offen')
        e.label('L_k1_td')
    if cpf and not early:
        e('s_cmp_lg_u32 s28, 0', 's_cbranch_scc1 L_k1_nocpf')
        code_touch(e, 'qkv_kernel', 'L_k1_pads', 2, 24, 44, 'a')
        e.label('L_k1_nocpf')
    if tlb:
        e('s_mov_b64 exec, 1', 'buffer_load_dword v26, v192, s[24:27], s52 offen', 'buffer_load_dword v26, v196, s[24:27], s54 offen', 'buffer_load_dword v26, v199, s[24:27], s54 offen', 's_mov_b64 exec, -1')
    e.c('STAMP 0')
    e('s_barrier')
    e.c('STAMP 1')
    e(*readsA(0))
    for T in range(28):
        b = WF + 16*(T % 2)
        e('s_waitcnt lgkmcnt(0)')
        if T + 1 < 28:
            if (T+1) % 4 == 0: e('s_barrier')
            rd = readsA(T+1)
        else:
            e('s_barrier')
            rd = []
        k = 0
        for L in range(2):
            for ch in range(2):
                a = accs[L][ch]
                Cc = '0' if T == 0 else vr(a, 16)
                e(f'{MF32} {vr(a,16)}, {vr(b+8*L+4*ch,4)}, {vr(XF+4*T,4)}, {Cc}')
                e(*rd[3*k:3*k+3]); k += 1
    e.c('STAMP 2')
    VA = (160, 252-16)
    pend = epi(0) + epi(1)
    e(*readsB(0)); e(*readsB(1)); e(*readsB(2))
    vacc = (160, 204)
    for n in range(56):
        ch, T = divmod(n, 28)
        if n + 3 < 56:
            if n + 3 == 16: e('s_barrier')
        e(f's_waitcnt lgkmcnt({2*min(2, 55-n)})')
        a = vacc[ch]
        Cc = '0' if T == 0 else vr(a, 16)
        e(f'{MF32} {vr(a,16)}, {vr(XF+4*T,4)}, {vr(WF+4*(n%4),4)}, {Cc}')
        if n + 3 < 56: e(*readsB(n+3))
        if n == 30: pend += epiV(0)
        if n >= 3 and pend:
            e(*pend[:4]); pend = pend[4:]
    assert not pend
    e.c('STAMP 3')
    e('s_nop 7', 's_nop 3')
    e(*epiV(1))
    e('s_endpgm')
    e.label('L_k1_loader')
    e('s_sub_u32 s28, s28, 4')
    e('s_lshl_b32 s35, s31, 7', 's_lshl_b32 s36, s28, 5', 's_add_u32 s35, s35, s36')
    e('v_lshrrev_b32 v7, 3, v0', 'v_add_u32 v4, s35, v7', 'v_mul_u32_u24 v4, 896, v4')
    e('v_and_b32 v5, 7, v0', 'v_lshrrev_b32 v6, 4, v0', 'v_xor_b32 v8, v5, v6')
    e('v_lshl_add_u32 v2, v8, 4, v4', 'v_xor_b32 v8, 4, v8', 'v_lshl_add_u32 v3, v8, 4, v4')
    e('v_add_u32 v3, 7168, v3', 'v_add_u32 v9, 14336, v2', 'v_add_u32 v10, 14336, v3')
    e('s_lshl_b32 s36, s28, 4', 'v_add_u32 v7, s36, v7', 'v_mul_u32_u24 v7, 2688, v7', 'v_and_b32 v6, 1, v6', 'v_lshlrev_b32 v6, 2, v6', 'v_xor_b32 v5, v5, v6')
    e('v_lshl_add_u32 v4, v5, 4, v7', 's_lshl_b32 s37, s30, 7', 'v_add_u32 v4, s37, v4', 'v_add_u32 v5, 21504, v4')
    e('s_lshl_b32 s48, s28, 12', 's_lshl_b32 s49, s28, 11')
    e('s_add_u32 s37, s31, s30')
    tbl = []
    j0 = 0
    for gsz in (groups if rot else (1,)*7):
        M = -(-65536 // gsz)
        pre = [f's_mul_i32 s39, s37, {M}', 's_lshr_b32 s39, s39, 16', f's_mul_i32 s39, s39, {gsz}', 's_sub_u32 s38, s37, s39']
        for j in range(j0, j0+gsz):
            tbl.append(pre + [f's_add_u32 s39, s38, {j0}', f's_lshl_b32 s{60+j}, s39, 7', f's_mul_i32 s{50+j}, s39, 172032', 's_add_u32 s38, s38, 1', f's_cmp_eq_u32 s38, {gsz}', 's_cselect_b32 s38, 0, s38']); pre = []
        j0 += gsz
    assert j0 == 7
    for j in range(ahead): e(*tbl[j])
    e('s_waitcnt lgkmcnt(0)')
    e('s_cmp_eq_u32 s29, 0', 's_cselect_b32 s14, s4, s8', 's_cselect_b32 s15, s5, s9', 's_cselect_b32 s40, s6, s10', 's_cselect_b32 s41, s7, s11')
    srd(e, 16, 14, 15, 2048*896)
    srd(e, 20, 40, 41, 448*2688)
    q_ = []
    def X(j):
        for q, v in enumerate((2, 3, 9, 10)):
            e(f's_add_u32 m0, s48, {(j % NS)*CH + q*1024}', 's_nop 0', f'buffer_load_dwordx4 v{v}, s[16:19], s{60+j} offen nt lds'); q_.append(('C', j))
    def W(L, j):
        base = (j % NS)*CH + 16384 + L*8192 if L < 2 else WVR + j*8192
        for i in range(2):
            e(f's_add_u32 m0, s49, {base + i*1024 - L*896}', 's_nop 0', f'buffer_load_dwordx4 v{4+i}, s[20:23], s{50+j} offen offset:{L*896} lds'); q_.append(('C', j) if L < 2 else ('V', j))
    def Cc(j): X(j); W(0, j); W(1, j)
    def waitfor(tags):
        last = max(i for i, t in enumerate(q_) if t in tags)
        e(f's_waitcnt vmcnt({len(q_)-1-last})', 's_barrier')
    e.c('STAMP 0')
    for j in range(ahead):
        Cc(j)
        if ktouch and j == ktouch - 1: e('s_barrier')
    for j in range(ahead, 7): e(*tbl[j])
    e.c('STAMP 1')
    nxt = ahead
    for k in range(7):
        waitfor({('C', k)})
        if k == 0: e.c('STAMP 2')
        if nxt < 7 and (nxt < NS or nxt - NS <= k - 1): Cc(nxt); nxt += 1
        if k == 0 and nxt < 7 and ahead < 3: Cc(nxt); nxt += 1
        if k <= 1 and nxt < NS and ahead < 2: Cc(nxt); nxt += 1
        if k == 4: [W(2, j) for j in range(4)]
        if k == 5: [W(2, j) for j in range(4, 7)]
    assert nxt == 7
    e.c('STAMP 3')
    waitfor({('V', j) for j in range(4)})
    waitfor({('V', j) for j in range(7)})
    e('s_endpgm')
    e.label('L_k1_pads')
    e('s_sub_u32 s33, s33, 28', 's_lshl_b32 s33, s33, 3', 's_add_u32 s33, s33, s32', 's_lshl_b32 s33, s33, 3', 's_add_u32 s33, s33, s28', 's_lshl_b32 s33, s33, 6')
    e('v_add_u32 v1, s33, v0')
    e('v_mov_b32 v8, 0', 'v_mov_b32 v12, 0x3f803f80', 'v_mov_b32 v13, 0x00003f80', 'v_mov_b32 v14, 0x3f803f80', 'v_mov_b32 v15, 0x00003f80')
    e('v_and_b32 v2, 15, v1', 'v_lshrrev_b32 v6, 4, v1', 'v_lshlrev_b32 v6, 12, v6', 'v_lshl_add_u32 v5, v2, 4, v6', 'v_add_u32 v5, 1792, v5')
    e('v_and_b32 v2, 3, v1', 'v_bfe_u32 v3, v1, 3, 1', 'v_and_b32 v4, 7, v1')
    e('v_lshl_add_u32 v6, v3, 10, v6', 'v_lshl_add_u32 v6, v4, 4, v6', 'v_add_u32 v6, %d, v6' % (2048 + 896))
    e('v_cmp_eq_u32 vcc, 0, v2', 's_nop 1')
    for k in range(4): e(f'v_cndmask_b32 v{16+k}, v8, v12, vcc')
    e('s_waitcnt lgkmcnt(0)')
    srd(e, 24, 12, 13, WS_BYTES)
    for p in range(2):
        e(f's_mov_b32 s42, {p*WS_PSTRIDE + WS_KV}', f'buffer_store_dwordx4 v[12:15], v5, s[24:27], s42 offen{st}', f'buffer_store_dwordx4 v[16:19], v6, s[24:27], s42 offen{st}')
    if touch:
        e('s_lshr_b32 s34, s33, 6')
        e('s_cmp_ge_u32 s34, 212', 's_cbranch_scc1 L_k1_notouch')
        e('s_cmp_ge_u32 s34, 128', 's_cbranch_scc1 L_k1_touchw')
        e('s_cmp_lt_u32 s34, 64', 's_cselect_b32 s16, s4, s8', 's_cselect_b32 s17, s5, s9', f's_mov_b32 s18, {2048*896}', 's_mov_b32 s19, 0x00020000')
        e('v_and_b32 v24, 0xfff, v1', 'v_lshrrev_b32 v25, 1, v24', 'v_mul_u32_u24 v25, 896, v25', 'v_and_b32 v24, 1, v24', 'v_lshl_add_u32 v25, v24, 7, v25', f's_mov_b32 s43, {128*tstart}', 's_mov_b32 s44, 256', 's_branch L_k1_touch')
        e.label('L_k1_touchw')
        e('s_cmp_lt_u32 s34, 170', 's_cselect_b32 s16, s6, s10', 's_cselect_b32 s17, s7, s11', f's_mov_b32 s18, {448*2688}', 's_mov_b32 s19, 0x00020000', 's_cselect_b32 s35, 0, 42', 's_add_u32 s35, s35, 128')
        e('s_sub_u32 s34, s34, s35', 's_lshl_b32 s34, s34, 13', 'v_lshlrev_b32 v25, 7, v0', 'v_add_u32 v25, s34, v25', f's_mov_b32 s43, {172032*tstart}', 's_mov_b32 s44, 344064')
        e.label('L_k1_touch')
        for r in range(3):
            e('buffer_load_dword v26, v25, s[16:19], s43 offen', 's_add_u32 s43, s43, s44')
            if r < 2 and touch == 1: e('s_waitcnt vmcnt(0)')
        e.label('L_k1_notouch')
    if cpf:
        e('s_cmp_lg_u32 s28, 0', 's_cbranch_scc1 L_k1_nocpf2')
        code_touch(e, 'attn_kernel', 'L_k2_end', 2, 24, 44, 'b')
        e.label('L_k1_nocpf2')
    e(f's_mov_b32 s26, {WSB2}', f's_mov_b32 s42, {WS_CNT}', 'v_lshlrev_b32 v2, 2, v1', f'buffer_store_dword v8, v2, s[24:27], s42 offen{st}')
    e.label('L_k1_end')
    e('s_endpgm')
    txt = e.text()
    if lfirst:
        br = '    s_cmp_ge_u32 s28, 4\n    s_cbranch_scc1 L_k1_loader\n'
        head, rest = txt.split(br)
        comp, rest = rest.split('L_k1_loader:\n')
        load, pads = rest.split('L_k1_pads:\n')
        txt = head + '    s_cmp_lt_u32 s28, 4\n    s_cbranch_scc1 L_k1_comp\n' + load + 'L_k1_comp:\n' + comp + 'L_k1_pads:\n' + pads
    return txt, dict(name='qkv_kernel', vgpr=252, sgpr=80, grid=256, block=512, lds=163840)


def gen_k2f(st=' sc1', prio=0, PF=8, cpf=False, tlb=False):
    e = E()
    SL = 32768; NSL = 4; BO = NSL*SL; QO = 3*SL
    e.label('attn_kernel')
    e('s_cmp_ge_u32 s2, 256', 's_cbranch_scc1 L_k2_end')
    e('s_load_dwordx2 s[12:13], s[0:1], 64')
    e('s_load_dwordx2 s[4:5], s[0:1], 16', 's_load_dwordx2 s[6:7], s[0:1], 40', 's_load_dwordx2 s[8:9], s[0:1], 48')
    e('v_lshrrev_b32 v1, 6, v0', 'v_and_b32 v0, 63, v0')
    e('s_and_b32 s3, s2, 7', 's_lshl_b32 s30, s3, 1', 's_bfe_u32 s3, s2, 0x10003', 's_add_u32 s30, s30, s3')
    e('v_readfirstlane_b32 s28, v1')
    e('s_lshr_b32 s31, s2, 4')
    e('v_lshlrev_b32 v2, 4, v0', 's_mov_b32 s60, 0', 'v_mov_b32 v1, 0')
    X = 0
    e(f'v_mov_b32 v7, {X+20480}')
    e('s_and_b32 s74, s2, 7', 's_lshl_b32 s74, s74, 1', 's_lshr_b32 s75, s2, 7', 's_add_u32 s74, s74, s75', 's_bfe_u32 s75, s2, 0x40003')
    e('s_cmp_ge_u32 s75, 7', 's_cselect_b32 s72, 1, 0', 's_mul_i32 s73, s72, 7', 's_sub_u32 s73, s75, s73')
    e('s_cmp_ge_u32 s28, 8', 's_cbranch_scc1 L_k2_aux')
    e('s_and_b32 s32, s28, 3', 's_lshr_b32 s33, s28, 2')
    QF = 8; S0, S1 = 16, 32; P = 48; O = 56; KB = 72; VB = 88; TT = 104
    vNxt, vLane, vK8, vKLane, vQ = 120, 121, 122, 123, 124
    e('v_and_b32 v3, 31, v0', 'v_lshrrev_b32 v4, 5, v0', f'v_lshlrev_b32 v{vK8}, 3, v3', f'v_lshl_add_u32 v{vK8}, v4, 8, v{vK8}')
    e('v_bfe_u32 v5, v0, 3, 1', 'v_xor_b32 v5, v5, v4', 'v_lshlrev_b32 v5, 6, v5', 'v_and_b32 v6, 3, v0', 'v_lshl_add_u32 v5, v6, 4, v5', 'v_lshrrev_b32 v6, 2, v3', 'v_lshl_add_u32 v5, v6, 7, v5')
    e('s_lshl_b32 s41, s33, 14', f'v_add_u32 v{vLane}, s41, v5', f'v_add_u32 v{vKLane}, s41, v{vK8}', f'v_add_u32 v{vNxt}, 0x10000, v{vLane}')
    e('s_lshl_b32 s41, s32, 11', f's_add_u32 s41, s41, {QO}', f'v_add_u32 v{vQ}, s41, v{vK8}')
    e('s_mov_b32 s68, 0', 's_mov_b32 s69, -1', 's_mov_b32 s59, 0xffff0000')
    def zero_state():
        z = [f'v_mov_b32 v{O+r}, 0' for r in range(16)]
        for r in range(4): z += [f'v_mov_b32 v{P+4+r}, 0', f'v_mov_b32 v{TT+12+r}, 0', f'v_mov_b32 v{VB+12+r}, 0']
        return z
    e(*zero_state())
    e('s_waitcnt lgkmcnt(0)')
    srd(e, 24, 12, 13, WSB2)
    if prio: e(f's_setprio {prio}')
    e.c('STAMP 0')
    e('s_barrier')
    e.c('STAMP 1')
    e(f'ds_read2st64_b64 {vr(QF,4)}, v{vQ} offset0:0 offset1:1', f'ds_read2st64_b64 {vr(TT,4)}, v{vK8} offset0:0 offset1:1')
    e(f'ds_read2st64_b64 {vr(QF+4,4)}, v{vQ} offset0:2 offset1:3', f'ds_read2st64_b64 {vr(TT+4,4)}, v{vK8} offset0:2 offset1:3')
    e('s_waitcnt lgkmcnt(2)')
    e(f'{MF32} {vr(S1,16)}, {vr(TT,4)}, {vr(QF,4)}, 0')
    e(f'ds_read2st64_b64 {vr(KB,4)}, v{vKLane} offset0:0 offset1:1', f'ds_read2st64_b64 {vr(KB+4,4)}, v{vKLane} offset0:2 offset1:3')
    e('s_waitcnt lgkmcnt(2)')
    e(f'v_cndmask_b32 v{QF+6}, v{QF+6}, v1, s[68:69]', f'v_cndmask_b32 v{QF+7}, v{QF+7}, v1, s[68:69]', 's_nop 1')
    e(f'{MF32} {vr(S1,16)}, {vr(TT+4,4)}, {vr(QF+4,4)}, {vr(S1,16)}')
    e('s_waitcnt lgkmcnt(0)')
    e(f'{MF32} {vr(S0,16)}, {vr(KB,4)}, {vr(QF,4)}, 0')
    e(f'{MF32} {vr(S0,16)}, {vr(KB+4,4)}, {vr(QF+4,4)}, {vr(S0,16)}')
    e(f'ds_read2st64_b64 {vr(KB+8,4)}, v{vKLane} offset0:8 offset1:9', f'ds_read2st64_b64 {vr(KB+12,4)}, v{vKLane} offset0:10 offset1:11')
    e(f'ds_read_b128 {vr(VB,4)}, v{vLane} offset:2048', f'ds_read_b128 {vr(VB+4,4)}, v{vLane} offset:3072')
    e('s_nop 4')
    e(f'v_max3_f32 v3, v{S1}, v{S1+1}, v{S1+2}', f'v_max3_f32 v4, v{S1+3}, v{S1+4}, v{S1+5}')
    e(f'v_max3_f32 v3, v3, v{S1+6}, v{S1+7}', f'v_max3_f32 v4, v4, v{S1+8}, v{S1+9}', f'v_max3_f32 v3, v3, v{S1+10}, v{S1+11}', f'v_max3_f32 v4, v4, v{S1+12}, v{S1+13}')
    e(f'v_max3_f32 v3, v3, v{S1+14}, v{S1+15}', 'v_max_f32 v3, v3, v4')
    e('v_mov_b32 v4, v3', 's_nop 1', 'v_permlane32_swap_b32 v3, v4', 'v_max_f32 v3, v3, v4', f'v_add_f32 v3, {f32(OFFM2)}, v3')
    e.label('L_k2_setmax')
    e('v_sub_f32 v6, 0, v3', 'v_and_b32 v4, s59, v6', 'v_sub_f32 v6, v6, v4', 'v_and_b32 v5, s59, v6', 'v_sub_f32 v6, v6, v5')
    e('v_lshrrev_b32 v4, 16, v4', 'v_or_b32 v4, v4, v5', 'v_lshrrev_b32 v6, 16, v6')
    e(f'v_cndmask_b32 v{QF+6}, v{QF+6}, v4, s[68:69]', f'v_cndmask_b32 v{QF+7}, v{QF+7}, v6, s[68:69]')
    for r in range(16): e(f'v_sub_f32 v{S0+r}, v{S0+r}, v3')
    e.c('STAMP 2')
    def tile_addr(g): return ((g // 4) % NSL)*SL + (g % 4)*4096
    for s in range(8):
        for i in range(4):
            g = 4*s + i
            Sc = S0 if i % 2 == 0 else S1
            Sn = S1 if i % 2 == 0 else S0
            Kn = KB + 8*((i+1) % 2); Kl = KB + 8*(i % 2)
            Vc = VB + 8*(i % 2); Vl = VB + 8*((i+1) % 2)
            def ex(r0): return [f'v_exp_f32 v{TT+r}, v{Sc+r}' for r in range(r0, r0+4)]
            def cv(r0): return [f'v_cvt_pk_bf16_f32 v{P+r0//2}, v{TT+r0}, v{TT+r0+1}', f'v_cvt_pk_bf16_f32 v{P+r0//2+1}, v{TT+r0+2}, v{TT+r0+3}']
            e('s_waitcnt lgkmcnt(0)')
            if i == 2 and s < 7: e('s_barrier')
            t = []
            if g + 1 < 32: t += [f'{MF32} {vr(Sn,16)}, {vr(Kn,4)}, {vr(QF,4)}, 0']
            if g + 2 < 32:
                ko = tile_addr(g+2)//512
                t += [f'ds_read2st64_b64 {vr(Kl,4)}, v{vKLane} offset0:{ko} offset1:{ko+1}', f'ds_read2st64_b64 {vr(Kl+4,4)}, v{vKLane} offset0:{ko+2} offset1:{ko+3}']
            t += cv(12) + ex(0)
            t += [f'{MF32} {vr(O,16)}, {vr(Vl+4,4)}, {vr(P+4,4)}, {vr(O,16)}']
            if g + 1 < 32:
                vo = tile_addr(g+1); va = vLane if vo < 65536 else vNxt; vo %= 65536
                t += [f'ds_read_b128 {vr(Vl,4)}, v{va} offset:{vo+2048}', f'ds_read_b128 {vr(Vl+4,4)}, v{va} offset:{vo+3072}']
            t += cv(0) + ex(4)
            if g + 1 < 32: t += [f'{MF32} {vr(Sn,16)}, {vr(Kn+4,4)}, {vr(QF+4,4)}, {vr(Sn,16)}']
            t += cv(4) + ex(8)
            t += [f'{MF32} {vr(O,16)}, {vr(Vc,4)}, {vr(P,4)}, {vr(O,16)}']
            t += cv(8) + ex(12)
            e(*t)
    e.c('STAMP 3')
    e('s_lshl_b32 s41, s32, 12')
    e(f'v_cvt_pk_bf16_f32 v{P+6}, v{TT+12}, v{TT+13}', f'v_cvt_pk_bf16_f32 v{P+7}, v{TT+14}, v{TT+15}')
    e('s_lshl_b32 s42, s33, 11', 's_add_u32 s43, s41, s42')
    e(f'{MF32} {vr(O,16)}, {vr(VB+12,4)}, {vr(P+4,4)}, {vr(O,16)}')
    e('s_xor_b32 s42, s42, 2048', 's_add_u32 s44, s41, s42')
    e('v_add_u32 v3, s43, v2', 'v_add_u32 v4, s44, v2')
    e('s_lshl_b32 s41, s28, 8', f's_add_u32 s41, s41, {X+16384}', 's_xor_b32 s42, s41, 1024')
    e('v_lshlrev_b32 v5, 2, v0', 'v_add_u32 v6, s42, v5', 'v_add_u32 v5, s41, v5')
    e('s_nop 0')
    e('s_cmp_eq_u32 s33, 0', 's_cbranch_scc1 L_k2_e0')
    e(f'ds_write_b128 v3, {vr(O,4)}', f'ds_write_b128 v3, {vr(O+4,4)} offset:1024', f'ds_write_b32 v5, v{O+12}')
    for r in range(8): e(f'v_mov_b32 v{O+r}, v{O+8+r}')
    e('s_branch L_k2_e1')
    e.label('L_k2_e0')
    e(f'ds_write_b128 v3, {vr(O+8,4)}', f'ds_write_b128 v3, {vr(O+12,4)} offset:1024', f'ds_write_b32 v5, v{O+12}')
    e.label('L_k2_e1')
    e('s_waitcnt lgkmcnt(0)', 's_barrier')
    e(f'ds_read_b32 v{S0+8}, v6', f'ds_read_b128 {vr(S0,4)}, v4', f'ds_read_b128 {vr(S0+4,4)}, v4 offset:1024')
    e('s_lshl_b32 s41, s31, 17', 's_lshl_b32 s42, s32, 15', 's_add_u32 s41, s41, s42', 's_lshl_b32 s42, s30, 11', 's_add_u32 s41, s41, s42', 's_lshl_b32 s42, s33, 10', 's_add_u32 s41, s41, s42', f's_add_u32 s41, s41, {WS_O}')
    e('s_cmp_eq_u32 s33, 1', 's_cselect_b64 s[44:45], s[68:69], 0', 's_mov_b32 s42, 0x7e800000')
    e('s_waitcnt lgkmcnt(2)')
    e(f'v_add_f32 v5, v{O+12}, v{S0+8}', 'v_mov_b32 v6, v5')
    e('s_waitcnt lgkmcnt(0)')
    e(f'v_add_f32 v{O}, v{O}, v{S0}')
    e('v_permlane32_swap_b32 v6, v5')
    for r in range(1, 8): e(f'v_add_f32 v{O+r}, v{O+r}, v{S0+r}')
    e('v_rcp_f32 v4, v5', 'v_cmp_ngt_f32 vcc, s42, v5')
    e(f'v_mul_f32 v6, 0, v{O}', f'v_mul_f32 v3, 0, v{O+1}')
    for r in range(2, 8, 2): e(f'v_fma_f32 v6, v{O+r}, 0, v6', f'v_fma_f32 v3, v{O+r+1}, 0, v3')
    for r in range(8): e(f'v_mul_f32 v{O+r}, v4, v{O+r}')
    for k in range(4): e(f'v_cvt_pk_bf16_f32 v{P+k}, v{O+2*k}, v{O+2*k+1}')
    e(f'v_cndmask_b32 v{P+2}, v{P+2}, v1, s[44:45]', f'v_cndmask_b32 v{P+3}, v{P+3}, v1, s[44:45]')
    e('v_cmp_u_f32 s[46:47], v6, v3')
    e(f'buffer_store_dwordx4 {vr(P,4)}, v2, s[24:27], s41 offen{st}')
    e('s_or_b64 vcc, vcc, s[46:47]', 's_cmp_eq_u32 s60, 1', 's_cselect_b64 vcc, 0, vcc')
    e('s_cmp_eq_u64 vcc, 0', 's_cbranch_scc1 L_k2_ok')
    e('v_mov_b32 v6, 1', 'ds_write_b32 v7, v6', 's_waitcnt lgkmcnt(0)')
    e.label('L_k2_ok')
    e('s_waitcnt vmcnt(0)', 's_barrier')
    e('ds_read_b32 v4, v7', 's_waitcnt lgkmcnt(0)', 'v_readfirstlane_b32 s41, v4', 's_nop 3')
    e('s_cmp_eq_u32 s41, 0', 's_cbranch_scc1 L_k2_proj')
    e('s_barrier')
    e('s_mov_b32 s60, 1')
    e('s_lshl_b32 s41, s30, 18', f's_add_u32 s41, s41, {WS_KV}', 's_mov_b32 s42, 0')
    e(f'v_cndmask_b32 v{QF+6}, v{QF+6}, v1, s[68:69]', f'v_cndmask_b32 v{QF+7}, v{QF+7}, v1, s[68:69]')
    e('v_mov_b32 v3, 0xff800000')
    e(*zero_state())
    e.label('L_k2_maxloop')
    for k in range(4): e(f'buffer_load_dwordx2 {vr(KB+2*k,2)}, v{vK8}, s[24:27], s41 offen offset:{512*k}')
    e('s_waitcnt vmcnt(0)')
    e(f'{MF32} {vr(S0,16)}, {vr(KB,4)}, {vr(QF,4)}, 0')
    e(f'{MF32} {vr(S0,16)}, {vr(KB+4,4)}, {vr(QF+4,4)}, {vr(S0,16)}')
    e('s_nop 7', 's_nop 3')
    for k in range(0, 16, 2): e(f'v_max3_f32 v3, v3, v{S0+k}, v{S0+k+1}')
    e('s_add_u32 s41, s41, 4096', 's_add_u32 s42, s42, 1', 's_cmp_lt_u32 s42, 64', 's_cbranch_scc1 L_k2_maxloop')
    e('v_mov_b32 v4, v3', 's_nop 1', 'v_permlane32_swap_b32 v3, v4', 'v_max_f32 v3, v3, v4')
    e('s_barrier')
    e(f'ds_read2st64_b64 {vr(KB,4)}, v{vKLane} offset0:0 offset1:1', f'ds_read2st64_b64 {vr(KB+4,4)}, v{vKLane} offset0:2 offset1:3')
    e(f'ds_read2st64_b64 {vr(KB+8,4)}, v{vKLane} offset0:8 offset1:9', f'ds_read2st64_b64 {vr(KB+12,4)}, v{vKLane} offset0:10 offset1:11')
    e(f'ds_read_b128 {vr(VB,4)}, v{vLane} offset:2048', f'ds_read_b128 {vr(VB+4,4)}, v{vLane} offset:3072')
    e('s_waitcnt lgkmcnt(0)')
    e(f'{MF32} {vr(S0,16)}, {vr(KB,4)}, {vr(QF,4)}, 0')
    e(f'{MF32} {vr(S0,16)}, {vr(KB+4,4)}, {vr(QF+4,4)}, {vr(S0,16)}')
    e('s_nop 7', 's_nop 3')
    e('s_branch L_k2_setmax')
    e.label('L_k2_aux')
    e('s_sub_u32 s28, s28, 8')
    e('s_lshl_b32 s36, s28, 10', 'v_add_u32 v8, s36, v2')
    for t in range(1, 4): e(f'v_add_u32 v{8+t}, {4096*t}, v8')
    e('s_lshl_b32 s41, s30, 18', f's_add_u32 s34, s41, {WS_KV}')
    e('s_lshl_b32 s37, s30, 17', 's_lshl_b32 s38, s31, 13', 's_add_u32 s37, s37, s38')
    e(f's_add_u32 s39, s37, {WS_PSTRIDE + WS_Q}')
    e('s_lshl_b32 s40, s31, 14', 's_add_u32 s40, s40, s41', f's_add_u32 s40, s40, {WS_PSTRIDE + WS_KV}')
    e('s_sub_u32 s42, s40, 4096', 's_cmp_eq_u32 s31, 0', 's_cselect_b32 s42, s40, s42')
    bQ, bKp, bKc, bV0, bV1, bS, bC, bT = 16, 24, 32, 40, 48, 56, 72, 84
    def bsetup():
        e('v_and_b32 v3, 15, v0', 'v_lshrrev_b32 v4, 4, v0', 'v_lshrrev_b32 v5, 1, v4', 'v_and_b32 v6, 1, v4')
        e('v_lshlrev_b32 v12, 10, v5', 'v_lshl_add_u32 v12, v6, 8, v12', 'v_lshl_add_u32 v12, v3, 3, v12')
        e('v_lshlrev_b32 v13, 9, v6', 'v_lshl_add_u32 v13, v3, 4, v13', 'v_lshl_add_u32 v13, v5, 10, v13')
        e('v_bfe_u32 v14, v0, 3, 1', 'v_xor_b32 v14, v14, v6', 'v_lshlrev_b32 v14, 6, v14', 'v_and_b32 v6, 3, v0', 'v_lshl_add_u32 v14, v6, 4, v14', 'v_lshrrev_b32 v6, 2, v3', 'v_lshl_add_u32 v14, v6, 7, v14', 'v_lshl_add_u32 v14, v5, 3, v14')
        e('s_lshl_b32 s43, s28, 11', f's_add_u32 s43, s43, {BO}', 'v_add_u32 v15, s43, v12')
        e('s_lshl_b32 s44, s28, 12', f's_add_u32 s44, s44, {BO + 8192}', 'v_add_u32 v12, s44, v12', 'v_add_u32 v14, s44, v14')
        e('v_mov_b32 v5, 0xf149f2ca', 's_or_b32 s55, s31, s28')
        for r in range(12):
            m = 0
            for l in range(64):
                d = (l & 15) - 4*(l >> 4) - (r % 4) + (0 if 4 <= r < 8 else 16)
                if 0 <= d <= 14 and d % 2 == 0: m |= 1 << l
            sp = 64 + 2*(r % 2)
            e(f's_mov_b32 s{sp}, 0x{m & 0xffffffff:08x}', f's_mov_b32 s{sp+1}, 0x{m >> 32:08x}')
            if r >= 8: e('s_cmp_eq_u32 s55, 0', f's_cselect_b64 s[{sp}:{sp+1}], 0, s[{sp}:{sp+1}]')
            e(f'v_cndmask_b32 v{bC+r}, v5, v1, s[{sp}:{sp+1}]')
        e('s_mov_b32 s70, 0', 's_mov_b32 s71, 0xffff0000', f's_mov_b32 s57, {f32(28 ** -0.5 * 1.4426950408889634)}')
        e('s_lshl_b32 s47, s31, 2', 's_add_u32 s47, s47, s28', 's_lshl_b32 s47, s47, 15', 's_lshl_b32 s48, s30, 11', 's_add_u32 s47, s47, s48', f's_add_u32 s47, s47, {WS_O + 0x200000}')
    SETUP_AFTER = True
    e('s_waitcnt lgkmcnt(0)')
    srd(e, 24, 12, 13, WSB2)
    vq = []
    def ld(v, so, m0off, tag):
        e(f's_add_u32 m0, s36, {m0off}', 's_nop 0', f'buffer_load_dwordx4 v{v}, s[24:27], s{so} offen lds'); vq.append(tag)
    def KV(s, tiles=range(4), tag=None):
        for t in tiles:
            for kh in range(2):
                ld(8+t, 62+kh, (s % NSL)*SL + kh*16384 + t*4096, tag or f'KV{s}')
    def setkv(s): e(f's_add_u32 s62, s34, {s*16384}', f's_add_u32 s63, s34, {s*16384 + 131072}')
    def waitfor(tags):
        nonlocal vq
        idx = [k for k, t in enumerate(vq) if t in tags]
        if idx:
            e(f's_waitcnt vmcnt({len(vq)-1-max(idx)})'); vq = vq[max(idx)+1:]
        e('s_barrier')
    ld(8, 37, QO, 'Q'); ld(9, 37, QO + 4096, 'Q')
    e.label('L_k2_aux2')
    setkv(0); KV(0, range(2), 'T01'); KV(0, range(2, 4), 'T23')
    if SETUP_AFTER: bsetup()
    waitfor({'Q', 'T01', 'T23'})
    setkv(1); KV(1)
    setkv(2); KV(2)
    if cpf:
        code_touch(e, 'attn_kernel', 'L_k2_end', 2, 98, 52, 'c'); vq.extend(['cp', 'cp'])
    ld(8, 39, BO, 'B'); ld(9, 39, BO + 4096, 'B'); ld(8, 42, BO + 8192, 'B')
    for t in range(4): ld(8+t, 40, BO + 12288 + 4096*t, 'B')
    if tlb:
        srd(e, 20, 8, 9, 2048*1792)
        e('s_lshl_b32 s41, s74, 17', 's_lshl_b32 s43, s72, 21', 's_add_u32 s41, s41, s43', f's_add_u32 s41, s41, {WS_O}', 's_mul_i32 s43, s74, 229376', 's_sub_u32 s44, s47, 0x200000', f's_mov_b32 s45, {WS_CNT + 2044}')
        e('s_mov_b64 exec, 1')
        e('buffer_load_dword v98, v1, s[24:27], s47 offen', 'buffer_load_dword v98, v1, s[24:27], s44 offen', 'buffer_load_dword v98, v1, s[24:27], s45 offen', 'buffer_load_dword v98, v1, s[20:23], s43 offen')
        e('s_mov_b64 exec, -1'); vq.extend(['tl']*4)
    def bunit(u):
        q, kp, kc, v0_, v1_, S = bQ+4*u, bKp+4*u, bKc+4*u, bV0+4*u, bV1+4*u, bS+8*u
        T = bT + 8*u; a, b2 = T+4, T+5
        cp = bC + (8 if u == 0 else 0)
        kpo, kco = (128, 4096) if u == 0 else (4096, 4096+128)
        vpo, vco = (2048+1024, 4096+2048) if u == 0 else (4096+2048, 4096+3072)
        r = [f'ds_read_b64 {vr(q,2)}, v15 offset:{128*u}', f'ds_read_b64 {vr(q+2,2)}, v15 offset:{128*u+512}',
             f'ds_read_b64 {vr(kp,2)}, v12 offset:{kpo}', f'ds_read_b64 {vr(kp+2,2)}, v12 offset:{kpo+512}',
             f'ds_read_b64 {vr(kc,2)}, v12 offset:{kco}', f'ds_read_b64 {vr(kc+2,2)}, v12 offset:{kco+512}']
        r2 = [f'ds_read_b64 {vr(v0_,2)}, v14 offset:{vpo}', f'ds_read_b64 {vr(v0_+2,2)}, v14 offset:{vco}', f'ds_read_b64 {vr(v1_,2)}, v14 offset:{vpo+512}', f'ds_read_b64 {vr(v1_+2,2)}, v14 offset:{vco+512}']
        b = [f'v_cndmask_b32 v{q+2}, v{q+2}, v1, s[70:71]', f'v_cndmask_b32 v{q+3}, v{q+3}, v1, s[70:71]', 's_nop 1',
             f'{MF16} {vr(S,4)}, {vr(kp,4)}, {vr(q,4)}, {vr(cp,4)}', f'{MF16} {vr(S+4,4)}, {vr(kc,4)}, {vr(q,4)}, {vr(bC+4,4)}', 's_nop 7',
             f'v_max3_f32 v{a}, v{S}, v{S+1}, v{S+2}', f'v_max3_f32 v{b2}, v{S+3}, v{S+4}, v{S+5}', f'v_max3_f32 v{a}, v{a}, v{S+6}, v{S+7}', f'v_max_f32 v{a}, v{a}, v{b2}',
             f'v_mov_b32 v{b2}, v{a}', 's_nop 1', f'v_permlane32_swap_b32 v{a}, v{b2}', f'v_max_f32 v{a}, v{a}, v{b2}',
             f'v_mov_b32 v{b2}, v{a}', 's_nop 1', f'v_permlane16_swap_b32 v{a}, v{b2}', f'v_max_f32 v{a}, v{a}, v{b2}', f'v_mul_f32 v{a}, s57, v{a}']
        b += [f'v_fma_f32 v{S+k}, v{S+k}, s57, -v{a}' for k in range(8)]
        b += [f'v_exp_f32 v{S+k}, v{S+k}' for k in range(8)]
        b += [f'v_cvt_pk_bf16_f32 v{T+k}, v{S+2*k}, v{S+2*k+1}' for k in range(4)]
        b += ['s_nop 1', f'{MF16} {vr(S+4,4)}, {vr(v1_,4)}, {vr(T,4)}, 0', f'{MF16} {vr(S,4)}, {vr(v0_,4)}, {vr(T,4)}, 0', 's_nop 7']
        b += [f'v_mov_b32 v{a}, v{S+4}', f'v_mov_b32 v{b2}, v{S+4}', 's_nop 1', f'v_permlane32_swap_b32 v{b2}, v{a}',
              f'v_mov_b32 v{b2}, v{a}', 's_nop 1', f'v_permlane16_swap_b32 v{b2}, v{a}', f'v_rcp_f32 v{a}, v{a}', 's_nop 0']
        b += [f'v_mul_f32 v{S+k}, v{a}, v{S+k}' for k in range(8)]
        b += [f'v_cvt_pk_bf16_f32 v{T+k}, v{S+2*k}, v{S+2*k+1}' for k in range(4)]
        b += [f'v_cndmask_b32 v{T+2}, v{T+2}, v1, s[70:71]', f'v_cndmask_b32 v{T+3}, v{T+3}, v1, s[70:71]', 's_nop 1',
              f'v_permlane32_swap_b32 v{T}, v{T+2}', f'v_permlane32_swap_b32 v{T+1}, v{T+3}', f'buffer_store_dwordx4 {vr(T,4)}, v13, s[24:27], s47 offen offset:{256*u}{st}']
        return r, r2, b
    for s in range(7):
        waitfor({f'KV{s+1}'} | ({'B'} if s == 1 else set()))
        if s + 3 < 8: setkv(s+3); KV(s+3)
        if s == 1:
            r0, r20, b0 = bunit(0); r1, r21, b1 = bunit(1)
            e(*r0); e(*r1); e('s_waitcnt lgkmcnt(0)'); e(*r20); e(*r21)
            m = []
            for x, y in zip(b0, b1): m += [x, y] if not x.startswith('s_nop') else [x]
            k1_ = next(i for i, x in enumerate(m) if 'v_fma' in x)
            k2_ = max(i for i, x in enumerate(m) if 'v_mfma' in x) + 1
            e(*m[:k1_]); e('s_waitcnt lgkmcnt(0)')
        if s == 2: e(*m[k1_:k2_])
        if s == 3:
            e(*m[k2_:]); vq += ['st', 'st']
        if s == 4 or s == 6:
            if s == 4:
                e('s_cmp_eq_u32 s72, 0', 's_cselect_b32 s16, s4, s6', 's_cselect_b32 s17, s5, s7', f's_mov_b32 s18, {448*896}', 's_mov_b32 s19, 0x00020000')
                e('v_lshrrev_b32 v3, 3, v0', 's_lshl_b32 s41, s28, 3', 'v_add_u32 v3, s41, v3', 'v_mul_u32_u24 v3, 896, v3')
                e('v_and_b32 v5, 7, v0', 'v_bfe_u32 v6, v0, 4, 1', 'v_lshlrev_b32 v6, 2, v6', 'v_xor_b32 v5, v5, v6', 'v_lshl_add_u32 v4, v5, 4, v3')
                e('s_lshl_b32 s41, s73, 7', 'v_add_u32 v4, s41, v4')
            for k in range(7):
                e(f's_add_u32 m0, s36, {(BO if s == 4 else SL) + k*4096}', f's_mov_b32 s50, {((0 if s == 4 else 224) + k*32)*896}', 'buffer_load_dwordx4 v4, s[16:19], s50 offen lds'); vq.append('wo')
        if s == 5: e('ds_write_b32 v7, v1')
    e('s_waitcnt vmcnt(0) lgkmcnt(0)')
    e('s_barrier', 's_barrier')
    e('ds_read_b32 v4, v7', 's_waitcnt lgkmcnt(0)', 'v_readfirstlane_b32 s41, v4', 's_nop 3')
    e('s_cmp_lg_u32 s41, 0', 's_cbranch_scc1 L_k2_auxfb')
    e('s_cmp_lg_u32 s28, 0', 's_cbranch_scc1 L_k2_end')
    e('s_lshl_b32 s41, s31, 7', f's_add_u32 s41, s41, {WS_CNT}', 's_mov_b64 exec, 1', 'v_mov_b32 v3, 1')
    e('buffer_atomic_add v3, v1, s[24:27], s41 offen sc1')
    e('s_cmp_ge_u32 s75, 14', 's_cbranch_scc1 L_k2_end')
    e('s_mov_b32 s42, 0', 's_lshl_b32 s41, s74, 7', f's_add_u32 s41, s41, {WS_CNT}')
    e.label('L_k2_poll')
    e('s_sleep 8')
    e('buffer_load_dword v4, v1, s[24:27], s41 offen sc1', 's_add_u32 s42, s42, 1', 's_waitcnt vmcnt(0)', 'v_readfirstlane_b32 s43, v4', 's_nop 3')
    e('s_cmp_ge_u32 s43, 16', 's_cbranch_scc1 L_k2_go')
    e('s_cmp_lt_u32 s42, 0x40000', 's_cbranch_scc1 L_k2_poll')
    e.label('L_k2_go')
    e('s_barrier')
    e('s_endpgm')
    e.label('L_k2_auxfb')
    e('s_waitcnt vmcnt(0)', 's_barrier')
    e('s_branch L_k2_aux2')
    e.label('L_k2_proj')
    e('s_cmp_ge_u32 s28, 4', 's_cbranch_scc1 L_k2_end', 's_cmp_ge_u32 s75, 14', 's_cbranch_scc1 L_k2_end')
    e('s_lshl_b32 s34, s74, 2', 's_add_u32 s34, s34, s28', 's_lshl_b32 s34, s34, 15', 's_lshl_b32 s35, s72, 21', 's_add_u32 s34, s34, s35', f's_add_u32 s34, s34, {WS_O}')
    srd(e, 20, 8, 9, 2048*1792)
    OF = 16; AF = 80; ACC = 112
    e('v_lshrrev_b32 v145, 5, v0', 'v_bfe_u32 v146, v0, 2, 2', 'v_lshl_add_u32 v147, v145, 2, v146', 'v_lshlrev_b32 v147, 7, v147')
    e('v_bfe_u32 v148, v0, 4, 1', 'v_lshl_add_u32 v147, v148, 5, v147', 'v_and_b32 v148, 3, v0', 'v_lshl_add_u32 v147, v148, 3, v147')
    e('v_lshrrev_b32 v146, 1, v146', 'v_lshl_add_u32 v147, v146, 6, v147', f'v_add_u32 v3, {BO}, v147', 'v_xor_b32 v4, 64, v3')
    e('v_lshlrev_b32 v148, 10, v145', 'v_sub_u32 v5, v3, v148', 'v_sub_u32 v6, v4, v148')
    for k in range(4): e(f'v_subrev_u32 v{8+k}, {BO-SL}, v{3+k}')
    RS = 144
    e('s_mul_i32 s37, s28, 4608', f's_add_u32 s37, s37, {2*SL}')
    e('v_and_b32 v146, 31, v0', f'v_mul_u32_u24 v12, {RS}, v146', 'v_lshl_add_u32 v12, v145, 3, v12', 'v_add_u32 v12, s37, v12')
    e('v_lshrrev_b32 v146, 3, v0', 'v_and_b32 v147, 7, v0', f'v_mul_u32_u24 v13, {RS}, v146', 'v_lshl_add_u32 v13, v147, 4, v13', 'v_add_u32 v13, s37, v13')
    e('v_mul_u32_u24 v14, 1792, v146', 'v_lshl_add_u32 v14, v147, 4, v14')
    e('s_lshl_b32 s39, s74, 7', 's_lshl_b32 s40, s28, 5', 's_add_u32 s39, s39, s40', 's_mul_i32 s39, s39, 1792', 's_mul_i32 s40, s72, 896', 's_add_u32 s39, s39, s40', 's_lshl_b32 s40, s73, 7', 's_add_u32 s39, s39, s40')
    def oload(hd):
        if hd % 2 == 0: e(f's_add_u32 s36, s34, {hd*2048}')
        o = (hd % 2)*2048; r = OF + 8*(hd % 8)
        e(f'buffer_load_dwordx4 {vr(r,4)}, v2, s[24:27], s36 offen offset:{o} sc1', f'buffer_load_dwordx4 {vr(r+4,4)}, v2, s[24:27], s36 offen offset:{o+1024} sc1')
    def preads(hd):
        b = AF + 16*(hd % 2); r = []; base = 3 if hd < 8 else 8
        for nt in range(2):
            for t in range(2):
                for ee in range(2):
                    a_ = base + (2+nt if (t == 1 and ee == 1) else nt)
                    r.append(f'ds_read_b64_tr_b16 {vr(b+8*nt+4*t+2*ee,2)}, v{a_} offset:{(hd % 8)*3584 + t*2048 + ee*1024}')
        return r
    e(*preads(0))
    e('s_barrier')
    for hd in range(PF): oload(hd)
    nload = PF
    for hd in range(16):
        b = AF + 16*(hd % 2)
        e(f's_waitcnt vmcnt({2*(nload-1-hd)}) lgkmcnt(0)')
        rd = preads(hd+1) if hd + 1 < 16 else []
        k = 0
        for t in range(2):
            for nt in range(2):
                Cc = '0' if (hd == 0 and t == 0) else vr(ACC+16*nt, 16)
                e(f'{MF32} {vr(ACC+16*nt,16)}, {vr(b+8*nt+4*t,4)}, {vr(OF+8*(hd%8)+4*t,4)}, {Cc}')
                e(*rd[2*k:2*k+2]); k += 1
        if nload < 16: oload(nload); nload += 1
    e('s_nop 7', 's_nop 3')
    for nt in range(2):
        for rg in range(4):
            a_ = ACC + 16*nt + 4*rg; d = 16 + 8*nt + 2*rg
            e(f'v_cvt_pk_bf16_f32 v{d}, v{a_}, v{a_+1}', f'v_cvt_pk_bf16_f32 v{d+1}, v{a_+2}, v{a_+3}')
            e(f'ds_write_b64 v12, {vr(d,2)} offset:{64*nt + 16*rg}')
    e('s_waitcnt lgkmcnt(0)')
    for i in range(4): e(f'ds_read_b128 {vr(32+4*i,4)}, v13 offset:{8*RS*i}')
    for i in range(4):
        e(f's_add_u32 s40, s39, {8*1792*i}', f's_waitcnt lgkmcnt({3-i})', f'buffer_store_dwordx4 {vr(32+4*i,4)}, v14, s[20:23], s40 offen{st}')
    e.label('L_k2_end')
    e('s_endpgm')
    return e.text(), dict(name='attn_kernel', vgpr=152, sgpr=80, grid=256, block=768, lds=BO+32768)


if __name__ == '__main__':
    ks = [gen_k1f(), gen_k2f()]
    assemble(ks, sys.argv[1] if len(sys.argv) > 1 else 'k.s')
```
